```python
import torch

def _softmax(x, axis=-1):
    return torch.softmax(x, dim=axis)
def _gelu(x):
    return torch.nn.functional.gelu(x, approximate="tanh")
def _silu(x):
    return torch.nn.functional.silu(x)
def _sigmoid(x):
    return torch.sigmoid(x)
def _layernorm(x, axis=-1, eps=1e-5):
    m = x.mean(dim=axis, keepdim=True)
    v = x.var(dim=axis, keepdim=True, unbiased=False)
    return (x - m) / torch.sqrt(v + eps)
def _scatter_add(tgt, idx, src, axis=0):
    return tgt.clone().index_add_(axis, idx, src)
def _segment_sum(src, seg, n):
    out = torch.zeros((n,) + src.shape[1:], dtype=src.dtype)
    return out.index_add_(0, seg, src)
def _pad(x, pw):
    flat = tuple(v for pair in reversed(pw) for v in pair)
    return torch.nn.functional.pad(x, flat)

kernel_name = 'concat_heads__softmax_full_mha__ssm_conv_h3__prompt'

def setup_inputs():

    _w = (lambda a: (lambda t: t.to(torch.bfloat16) if t.is_floating_point() else t)(torch.as_tensor(a)))
    def _A_setup():
        B, S, D = 1, 2048, 576
        return {
            "x": _w((lambda *s: torch.randn(*s, dtype=torch.bfloat16) * 0.2)(B, S, D)),
            "wqkv": _w((lambda *s: torch.randn(*s, dtype=torch.bfloat16) * 0.2)(D, 3 * D)),
            "wo": _w((lambda *s: torch.randn(*s, dtype=torch.bfloat16) * 0.05)(D, D)),
        }
    _A_in = _A_setup()

    def _B_setup():
        B, S, D = 1, 2048, 576
        ks = 4
        return {
            "q": _w((lambda *s: torch.randn(*s, dtype=torch.bfloat16) * 0.05)(B, S, D)),
            "k": _w((lambda *s: torch.randn(*s, dtype=torch.bfloat16) * 0.4)(B, S, D)),
            "v": _w((lambda *s: torch.randn(*s, dtype=torch.bfloat16) * 0.4)(B, S, D)),
            "shift_k": _w((lambda *s: torch.randn(*s, dtype=torch.bfloat16) * 0.4)(D, ks) * 0.5),
            "ssm_k": _w((lambda *s: torch.randn(*s, dtype=torch.bfloat16) * 1.6)(D, S) * (1.0 / S ** 0.5)),
            "ssm_D": _w((lambda *s: torch.randn(*s, dtype=torch.bfloat16) * 0.4)(D)),
        }
    _B_in = _B_setup()

    return {
        "A_x": _A_in["x"],
        "A_wqkv": _A_in["wqkv"],
        "A_wo": _A_in["wo"],
        "B_q": _B_in["q"],
        "B_k": _B_in["k"],
        "B_v": _B_in["v"],
        "B_shift_k": _B_in["shift_k"],
        "B_ssm_k": _B_in["ssm_k"],
        "B_ssm_D": _B_in["ssm_D"],
    }

def reference(A_x, A_wqkv, A_wo, B_q, B_k, B_v, B_shift_k, B_ssm_k, B_ssm_D):
    def _A_ref(x, wqkv, wo):
        B, S, D = x.shape
        H = 32; Dh = D // H
        qkv = (lambda x, *d: x.permute(*d))((x @ wqkv).reshape(B, S, 3, H, Dh), 2, 0, 3, 1, 4)
        q, k, v = qkv[0], qkv[1], qkv[2]
        scale = Dh ** -0.5
        scores = torch.einsum("bhqd,bhkd->bhqk", q, k) * scale
        p = _softmax(scores, axis=-1)
        o = torch.einsum("bhqk,bhkd->bhqd", p, v)
        return (lambda x, *d: x.permute(*d))(o, 0, 2, 1, 3).reshape(B, S, D) @ wo

    def _B_ref(q, k, v, shift_k, ssm_k, ssm_D):
        B, S, D = q.shape
        ks = shift_k.shape[-1]
        k_pad = _pad(k, ((0, 0), (ks - 1, 0), (0, 0)))
        k_shift = torch.zeros_like(k)
        for t in range(ks):
            k_shift = k_shift + k_pad[:, t:t + S, :] * shift_k[:, ks - 1 - t][None, None, :]
        kv = k_shift * v
        L = 2 * S
        kv_pad = _pad(kv, ((0, 0), (0, S), (0, 0)))
        kf_pad = _pad(ssm_k, ((0, 0), (0, S)))
        kv_f = (lambda x, axes=(-2,-1): torch.fft.rfft2(x.float(), dim=axes))(kv_pad[:, None, :, :], axes=(1, 2))
        kf_f = (lambda x, axes=(-2,-1): torch.fft.rfft2(x.float(), dim=axes))(kf_pad[:, None, :], axes=(1, 2))
        kf_f = (lambda x, *d: x.permute(*d))(kf_f, 1, 2, 0)
        y_f = kv_f * kf_f[None, :, :, :]
        y = (lambda x, s, axes=(-2,-1): torch.fft.irfft2(x, s=s, dim=axes).to(torch.bfloat16))(y_f, (1, L), axes=(1, 2))[:, 0, :S, :]
        y = y + kv * ssm_D[None, None, :]
        return q * y

    a = _A_ref(A_x, A_wqkv, A_wo)
    b = _B_ref(B_q, B_k, B_v, B_shift_k, B_ssm_k, B_ssm_D)
    return torch.concatenate([a, b], axis=-1)
```

```python
S, D, H, DH = 2048, 576, 32, 18
QM_OFF = 0x000000
QX_OFF = 0x200000
KV_OFF = 0x240000
KV_CHUNK = 9728
KV_HEAD = KV_CHUNK * 16
O_OFF = 0x700000
UT_OFF = 0x940000
YT_OFF = 0xB80000
WS_USED = 0xDC0000
QSCALE = 1.4426950408889634 / (18 ** 0.5)

import struct
def f2u(x):
    return struct.unpack("<I", struct.pack("<f", x))[0]

class Asm:
    def __init__(self):
        self.lines = []
    def __call__(self, s):
        for l in s.strip("\n").split("\n"):
            l = l.strip()
            if not l: continue
            if l.endswith(":") or l.startswith("."):
                self.lines.append(l)
            else:
                self.lines.append("    " + l)
    def text(self):
        return "\n".join(self.lines) + "\n"

def vr(base, n=1):
    return f"v{base}" if n == 1 else f"v[{base}:{base+n-1}]"
def sr(base, n=1):
    return f"s{base}" if n == 1 else f"s[{base}:{base+n-1}]"

def kernel_header(e, name):
    e(f""".globl {name}
.p2align 8
.type {name},@function
{name}:""")

def kernel_desc(name, vgpr, sgpr=102):
    acc = (vgpr + 3) // 4 * 4
    return f""".amdhsa_kernel {name}
  .amdhsa_next_free_vgpr {vgpr}
  .amdhsa_next_free_sgpr {sgpr}
  .amdhsa_accum_offset {acc}
  .amdhsa_group_segment_fixed_size 0
  .amdhsa_kernarg_size 96
  .amdhsa_user_sgpr_count 2
  .amdhsa_user_sgpr_kernarg_segment_ptr 1
  .amdhsa_system_sgpr_workgroup_id_x 1
  .amdhsa_float_denorm_mode_32 3
.end_amdhsa_kernel
"""

ST_OFF = 0xE00000
def stamp(e, on, i, wait=False):
    if on:
        e(f"s_memtime s[{64+2*i}:{65+2*i}]")
        if wait: e("s_waitcnt lgkmcnt(0)")
def stamp_begin(e, on):
    if on:
        e("s_memrealtime s[96:97]\ns_memtime s[64:65]")
def stamp_flush(e, on, n, srd, sW):
    if not on: return
    e("s_waitcnt vmcnt(0)")
    e(f"s_memtime s[{64+2*(n-1)}:{65+2*(n-1)}]\ns_memrealtime s[98:99]\ns_waitcnt lgkmcnt(0)")
    e("s_mov_b64 exec, 1")
    for i in range(14):
        if 1 <= i < n:
            e(f"s_sub_u32 s{64+2*i}, s{64+2*i}, s64\nv_mov_b32 v{i}, s{64+2*i}")
        else:
            e(f"v_mov_b32 v{i}, 0")
    e(f"""
    s_sub_u32 s98, s98, s96
    v_mov_b32 v14, s98
    v_mov_b32 v15, s96
    s_lshl_b32 s98, s2, 4
    s_add_u32 s98, s98, s{sW}
    s_lshl_b32 s98, s98, 6
    s_add_u32 s98, s98, {ST_OFF}
    s_mov_b32 s{srd+2}, 0x1000000
    v_mov_b32 v16, 0
    buffer_store_dwordx4 v[0:3], v16, s[{srd}:{srd+3}], s98 offen
    buffer_store_dwordx4 v[4:7], v16, s[{srd}:{srd+3}], s98 offen offset:16
    buffer_store_dwordx4 v[8:11], v16, s[{srd}:{srd+3}], s98 offen offset:32
    buffer_store_dwordx4 v[12:15], v16, s[{srd}:{srd+3}], s98 offen offset:48
    """)
```

```python
from common import *

def gen_qkv(e, name="qkv_kernel", NSLOT=4, X=()):
    ACC = [0, 16]
    XF = [32, 36]
    WF = [[40, 44], [48, 52]]
    XA = [56, 57, 58, 59]
    WA = [60, 61]
    DX = [62, 63]; DW = [64, 65]
    TID, LANE, T0, T1, T2, T3 = 66, 67, 68, 69, 70, 71
    KR = 72
    VRg = 83
    WR = 92
    KF = 96
    WFp = 118
    UA = 126
    SA0, SA1, SA2, SA3 = 128, 129, 130, 131
    U = 132; VT = 148; OUT = 152
    NV = 160
    PRE = 3 if 'pre3' in X else 2
    SSM_LD = next((int(x[2:]) for x in X if x.startswith('ld')), -1)
    SSM_CP = next((int(x[2:]) for x in X if x.startswith('cp')), 1)
    sX, sWq, sK, sV, sSH, sWS = 8, 12, 16, 20, 24, 28
    sW, sTW, sMP, sTT, sCT, sT, sT2, sT3 = 32, 33, 34, 35, 36, 37, 38, 39
    sXO, sWO, sM0, sKB = 40, 41, 42, 43
    SLOT = 32768

    kernel_header(e, name)
    e(f"""
    s_cmp_ge_u32 s2, 256
    s_cbranch_scc1 L_{name}_end
    """)
    ST = "st" in X
    stamp_begin(e, ST)
    e(f"""
    s_load_dwordx4 s[44:47], s[0:1], 0
    s_load_dwordx4 s[48:51], s[0:1], 32
    s_load_dwordx2 s[{sSH}:{sSH+1}], s[0:1], 48
    s_load_dwordx2 s[{sWS}:{sWS+1}], s[0:1], 88
    v_mov_b32 v{TID}, v0
    v_lshrrev_b32 v{T0}, 6, v0
    v_and_b32 v{LANE}, 63, v0
    s_and_b32 s{sT}, s2, 7
    v_readfirstlane_b32 s{sW}, v{T0}
    s_lshr_b32 s{sT2}, s2, 3
    s_lshr_b32 s{sTT}, s{sT}, 1
    s_lshl_b32 s{sTT}, s{sTT}, 2
    s_lshr_b32 s{sT3}, s{sT2}, 3
    s_add_u32 s{sTT}, s{sTT}, s{sT3}
    s_and_b32 s{sCT}, s{sT}, 1
    s_lshl_b32 s{sCT}, s{sCT}, 3
    s_and_b32 s{sT3}, s{sT2}, 7
    s_add_u32 s{sCT}, s{sCT}, s{sT3}
    s_and_b32 s{sTW}, s{sW}, 3
    s_lshr_b32 s{sMP}, s{sW}, 2
    s_lshr_b32 s{sKB}, s{sT2}, 3
    s_lshl_b32 s{sKB}, s{sKB}, 1
    s_add_u32 s{sKB}, s{sKB}, s{sT3}
    s_cmp_ge_u32 s{sKB}, 9
    s_cselect_b32 s{sT}, 9, 0
    s_sub_u32 s{sKB}, s{sKB}, s{sT}
    {"s_mov_b32 s%d, 0" % sKB if "norot" in X else ""}
    """)
    e(f"""
    s_mul_i32 s{sT}, s2, {8*1152}
    v_lshl_add_u32 v{SA2}, v{TID}, 4, s{sT}
    v_mov_b32 v{T3}, 0x40000000
    v_cmp_gt_u32 vcc, {(11*1152-8192)//16}, v{TID}
    v_cmp_gt_u32 s[60:61], 64, v{TID}
    v_subrev_u32 v{SA0}, {3*1152}, v{SA2}
    v_add_u32 v{SA1}, 8192, v{SA0}
    v_add_u32 v{SA3}, 8192, v{SA2}
    v_cndmask_b32 v{SA1}, v{T3}, v{SA1}, vcc
    v_cndmask_b32 v{SA3}, v{T3}, v{SA3}, s[60:61]
    v_lshlrev_b32 v{UA}, 4, v{TID}
    """)
    for base, nb in ((sX, S*D*2), (sWq, D*1728*2), (sK, S*D*2), (sV, S*D*2), (sSH, D*8), (sWS, WS_USED)):
        e(f"s_mov_b32 s{base+2}, {nb}\ns_mov_b32 s{base+3}, 0x20000")
    e(f"""
    s_waitcnt lgkmcnt(0)
    s_mov_b64 s[{sK}:{sK+1}], s[48:49]
    s_mov_b64 s[{sV}:{sV+1}], s[50:51]
    s_mov_b64 s[{sX}:{sX+1}], s[44:45]
    s_mov_b64 s[{sWq}:{sWq+1}], s[46:47]
    """)
    vm = []
    def vmwait(tag, extra=""):
        last = max(i for i, t in enumerate(vm) if t[0] == tag)
        n = sum(1 for t in vm[last+1:] if not t[1])
        e(f"s_waitcnt vmcnt({n}){extra}")
    SSM_LDS = NSLOT * SLOT
    def ssm_loads():
        e(f"""
        s_lshl_b32 s58, s{sW}, 10
        s_add_u32 m0, s58, {SSM_LDS}
        buffer_load_dwordx4 {vr(WR,4)}, v{UA}, s[{sSH}:{sSH+3}], 0 offen
        buffer_load_dwordx4 v{SA0}, s[{sK}:{sK+3}], 0 offen lds
        s_add_u32 m0, s58, {SSM_LDS + 8192}
        s_nop 0
        buffer_load_dwordx4 v{SA1}, s[{sK}:{sK+3}], 0 offen lds
        s_add_u32 m0, s58, {SSM_LDS + 16384}
        s_nop 0
        buffer_load_dwordx4 v{SA2}, s[{sV}:{sV+3}], 0 offen lds
        s_add_u32 m0, s58, {SSM_LDS + 16384 + 8192}
        s_nop 0
        buffer_load_dwordx4 v{SA3}, s[{sV}:{sV+3}], 0 offen lds
        """)
        vm.extend([("ssm", False)] * 5)
    e(f"""
    v_lshrrev_b32 v{T0}, 3, v{LANE}
    s_lshl_b32 s{sT}, s{sTT}, 7
    s_lshl_b32 s{sT2}, s{sW}, 4
    s_add_u32 s{sT}, s{sT}, s{sT2}
    v_add_u32 v{T0}, s{sT}, v{T0}
    v_mul_u32_u24 v{T0}, 1152, v{T0}
    v_lshrrev_b32 v{T1}, 4, v{LANE}
    v_and_b32 v{T2}, 7, v{LANE}
    v_xor_b32 v{T2}, v{T2}, v{T1}
    v_lshl_add_u32 v{DX[0]}, v{T2}, 4, v{T0}
    v_xor_b32 v{T2}, 4, v{T2}
    v_lshl_add_u32 v{DX[1]}, v{T2}, 4, v{T0}
    v_add_u32 v{DX[1]}, {8*1152}, v{DX[1]}
    """)
    e(f"""
    v_and_b32 v{T2}, 15, v{LANE}
    v_lshlrev_b32 v{T3}, 2, v{T1}
    v_xor_b32 v{T2}, v{T2}, v{T3}
    v_lshrrev_b32 v{T3}, 2, v{T2}
    v_mul_u32_u24 v{T0}, 72, v{T3}
    v_bfe_u32 v{T3}, v{T2}, 1, 1
    v_mad_u32_u24 v{T0}, v{T3}, 40, v{T0}
    v_and_b32 v{T3}, 1, v{T2}
    v_lshl_add_u32 v{T0}, v{T3}, 4, v{T0}
    v_and_b32 v{T3}, 3, v{T2}
    v_min_u32 v{T3}, 2, v{T3}
    v_mul_u32_u24 v{T3}, 72, v{T3}
    v_cmp_gt_u32 vcc, 12, v{T2}
    v_add_u32 v{T3}, 32, v{T3}
    s_lshl_b32 s{sT}, s{sW}, 3
    v_cndmask_b32 v{T0}, v{T3}, v{T0}, vcc
    v_add_u32 v{T1}, s{sT}, v{T1}
    v_mul_u32_u24 v{T1}, 3456, v{T1}
    s_mul_i32 s{sT}, s{sCT}, 216
    v_add3_u32 v{DW[0]}, v{T0}, v{T1}, s{sT}
    v_cmp_eq_u32 vcc, 15, v{T2}
    v_mov_b32 v{T3}, 0x40000000
    s_nop 0
    v_cndmask_b32 v{DW[0]}, v{DW[0]}, v{T3}, vcc
    v_add_u32 v{DW[1]}, {4*3456}, v{DW[0]}
    s_lshl_b32 s{sM0}, s{sW}, 11
    """)
    def dma_piece(st, i):
        slot = st % NSLOT
        vm.append((st, False))
        if i == 0:
            e(f"""
            s_add_u32 m0, s{sM0}, {slot*SLOT}
            s_lshl_b32 s{sXO}, s{sKB}, 7
            buffer_load_dwordx4 v{DX[0]}, s[{sX}:{sX+3}], s{sXO} offen lds
            """)
        elif i == 1:
            e(f"""
            s_add_u32 m0, s{sM0}, {slot*SLOT + 16384}
            s_mul_i32 s{sWO}, s{sKB}, {64*3456}
            buffer_load_dwordx4 v{DW[0]}, s[{sWq}:{sWq+3}], s{sWO} offen lds
            """)
        elif i == 2:
            e(f"""
            s_add_u32 m0, s{sM0}, {slot*SLOT + 1024}
            s_add_u32 s{sKB}, s{sKB}, 1
            buffer_load_dwordx4 v{DX[1]}, s[{sX}:{sX+3}], s{sXO} offen lds
            """)
        else:
            e(f"""
            s_add_u32 m0, s{sM0}, {slot*SLOT + 16384 + 1024}
            s_cmp_eq_u32 s{sKB}, 9
            buffer_load_dwordx4 v{DW[1]}, s[{sWq}:{sWq+3}], s{sWO} offen lds
            s_cselect_b32 s{sKB}, 0, s{sKB}
            """)
    def dma_stage(st):
        for i in range(4): dma_piece(st, i)
    stamp(e, ST, 1)
    if SSM_LD < 0: ssm_loads()
    for st in range(PRE): dma_stage(st)
    stamp(e, ST, 2)
    e(f"""
    v_and_b32 v{T0}, 31, v{LANE}
    v_lshrrev_b32 v{T1}, 5, v{LANE}
    v_bfe_u32 v{T2}, v{LANE}, 1, 3
    v_xor_b32 v{T2}, v{T2}, v{T1}
    v_lshlrev_b32 v{T2}, 4, v{T2}
    v_lshl_add_u32 v{T2}, v{T0}, 7, v{T2}
    s_lshl_b32 s{sT}, s{sTW}, 12
    v_add_u32 v{XA[0]}, s{sT}, v{T2}
    v_xor_b32 v{XA[1]}, 32, v{XA[0]}
    v_xor_b32 v{XA[2]}, 64, v{XA[0]}
    v_xor_b32 v{XA[3]}, 0x60, v{XA[0]}
    """)
    e(f"""
    v_bfe_u32 v{T2}, v{LANE}, 2, 2
    v_lshl_add_u32 v{T3}, v{T1}, 3, v{T2}
    v_lshlrev_b32 v{T3}, 8, v{T3}
    s_lshl_b32 s{sT}, s{sMP}, 1
    v_xor_b32 v{T2}, s{sT}, v{T2}
    v_lshl_add_u32 v{T3}, v{T2}, 6, v{T3}
    v_add_u32 v{T3}, 16384, v{T3}
    v_and_b32 v{T0}, 3, v{LANE}
    v_bfe_u32 v{T1}, v{LANE}, 4, 1
    v_lshlrev_b32 v{T1}, 5, v{T1}
    v_lshl_add_u32 v{T1}, v{T0}, 3, v{T1}
    v_add_u32 v{WA[0]}, v{T3}, v{T1}
    v_lshlrev_b32 v{T0}, 4, v{T0}
    s_cmp_eq_u32 s{sMP}, 0
    s_cselect_b64 vcc, -1, 0
    v_xor_b32 v{T3}, 64, v{T3}
    v_cndmask_b32 v{T1}, v{T0}, v{T1}, vcc
    v_add_u32 v{WA[1]}, v{T3}, v{T1}
    """)
    def ssm_compute():
        e(f"""
        s_cmp_ge_u32 s{sW}, 5
        s_cbranch_scc1 L_{name}_nossm2
        s_mul_i32 s58, s2, 9216
        s_add_u32 s58, s58, {UT_OFF}
        v_cmp_gt_u32 vcc, 288, v{TID}
        v_lshlrev_b32 v{UA}, 5, v{TID}
        v_mov_b32 v{T3}, 0x40000000
        v_cndmask_b32 v{UA}, v{T3}, v{UA}, vcc
        """)
        e(f"v_lshlrev_b32 v{SA0}, 2, v{TID}\nv_add_u32 v{SA0}, {SSM_LDS}, v{SA0}")
        for j in range(11): e(f"ds_read_b32 v{KR+j}, v{SA0} offset:{j*1152}")
        for j in range(8): e(f"ds_read_b32 v{VRg+j}, v{SA0} offset:{16384+j*1152}")
        e("s_waitcnt lgkmcnt(0)")
        for j in range(4):
            for ch in range(2):
                src = WR + 2*ch + j//2
                if j % 2 == 0: e(f"v_lshlrev_b32 v{WFp+2*j+ch}, 16, v{src}")
                else: e(f"v_and_b32 v{WFp+2*j+ch}, 0xffff0000, v{src}")
        for j in range(11):
            e(f"v_lshlrev_b32 v{KF+2*j}, 16, v{KR+j}")
            e(f"v_and_b32 v{KF+2*j+1}, 0xffff0000, v{KR+j}")
        for t in range(8):
            u = vr(U+2*t, 2)
            e(f"v_pk_mul_f32 {u}, {vr(KF+2*t,2)}, {vr(WFp+6,2)}")
            e(f"v_lshlrev_b32 v{VT+2*(t%2)}, 16, v{VRg+t}")
            e(f"v_pk_fma_f32 {u}, {vr(KF+2*(t+1),2)}, {vr(WFp+4,2)}, {u}")
            e(f"v_and_b32 v{VT+2*(t%2)+1}, 0xffff0000, v{VRg+t}")
            e(f"v_pk_fma_f32 {u}, {vr(KF+2*(t+2),2)}, {vr(WFp+2,2)}, {u}")
            e(f"v_pk_fma_f32 {u}, {vr(KF+2*(t+3),2)}, {vr(WFp+0,2)}, {u}")
            e(f"v_pk_mul_f32 {u}, {u}, {vr(VT+2*(t%2),2)}")
        for ch in range(2):
            for j in range(4):
                e(f"v_cvt_pk_bf16_f32 v{OUT+4*ch+j}, v{U+2*(7-2*j)+ch}, v{U+2*(6-2*j)+ch}")
        e(f"""
        buffer_store_dwordx4 {vr(OUT,4)}, v{UA}, s[{sWS}:{sWS+3}], s58 offen
        buffer_store_dwordx4 {vr(OUT+4,4)}, v{UA}, s[{sWS}:{sWS+3}], s58 offen offset:16
        s_nop 1
        L_{name}_nossm2:
        """)
        vm.extend([('ssmst', True)] * 2)
    win = [0]
    def rebase(slot):
        want = (slot // 2) * 2 * SLOT
        if want != win[0]:
            d = want - win[0]
            for r in XA + WA:
                if d > 0: e(f"v_add_u32 v{r}, {d}, v{r}")
                else: e(f"v_subrev_u32 v{r}, {-d}, v{r}")
            win[0] = want
        return slot * SLOT - want
    def ldfrag(st, ks, buf):
        off = rebase(st % NSLOT)
        e(f"ds_read_b128 {vr(XF[buf],4)}, v{XA[ks]} offset:{off}")
        for t in range(2):
            for h2 in range(2):
                e(f"ds_read_b64_tr_b16 {vr(WF[buf][t]+2*h2,2)}, v{WA[t]} offset:{off + ks*4096 + h2*1024}")
    def sync(st):
        vmwait(st, " lgkmcnt(0)")
        e("s_barrier")
    if SSM_CP < 0: ssm_compute()
    stamp(e, ST, 3)
    sync(0)
    stamp(e, ST, 4, True)
    ldfrag(0, 0, 0)
    step = 0
    for st in range(9):
        if st == SSM_LD: ssm_loads()
        if st == SSM_CP: ssm_compute()
        for ks in range(4):
            buf = step % 2
            last = (st == 8 and ks == 3)
            if st + PRE <= 8 and ks == 3: dma_piece(st + PRE, ks)
            if ks < 3:
                ldfrag(st, ks + 1, buf ^ 1)
                e("s_waitcnt lgkmcnt(5)")
            elif not last:
                sync(st + 1)
                if st + 1 in (1, 2, 4, 6, 8): stamp(e, ST, {1: 5, 2: 6, 4: 7, 6: 8, 8: 9}[st + 1], True)
                ldfrag(st + 1, 0, buf ^ 1)
            else:
                e("s_waitcnt lgkmcnt(0)")
            for t in range(2):
                c = "0" if step == 0 else vr(ACC[t], 16)
                e(f"v_mfma_f32_32x32x16_bf16 {vr(ACC[t],16)}, {vr(WF[buf][t],4)}, {vr(XF[buf],4)}, {c}")
            if st + PRE <= 8 and ks < 3: dma_piece(st + PRE, ks)
            step += 1
    if SSM_CP == 9: ssm_compute()
    sP, sTy, sB, sH, sGT = 52, 53, 54, 55, 56
    VO16, VO40, SC = T0, T1, T2
    e(f"""
    s_lshl_b32 s{sGT}, s{sTT}, 2
    s_add_u32 s{sGT}, s{sGT}, s{sTW}
    v_lshlrev_b32 v{VO16}, 4, v{LANE}
    v_and_b32 v{T3}, 31, v{LANE}
    v_mul_u32_u24 v{VO40}, 40, v{T3}
    v_lshrrev_b32 v{TID}, 5, v{LANE}
    v_lshl_add_u32 v{XA[0]}, v{TID}, 4, v{VO40}
    v_lshlrev_b32 v{XA[1]}, 2, v{T3}
    s_mul_i32 s57, s{sTT}, {KV_CHUNK}
    s_add_u32 s57, s57, {KV_OFF}
    s_mul_i32 s{sCT}, s{sCT}, 3
    """)
    VM40 = XA[0]
    VO4 = XA[1]
    def main_tile(t, lbl):
        e(f"""
        s_lshl_b32 s{sP}, s{sMP}, 1
        s_add_u32 s{sP}, s{sP}, s{sCT}
        s_add_u32 s{sP}, s{sP}, {t}
        s_lshr_b32 s{sTy}, s{sP}, 4
        s_and_b32 s{sP}, s{sP}, 15
        s_mul_i32 s{sB}, s{sP}, {2*KV_HEAD}
        s_add_u32 s{sB}, s{sB}, s57
        s_mov_b32 s{sH}, {KV_HEAD}
        s_lshl_b32 s{sT}, s{sTW}, 10
        s_mul_i32 s{sT2}, s{sTW}, 1280
        s_add_u32 s{sT2}, s{sT2}, 4096
        s_cmp_eq_u32 s{sTy}, 2
        s_cselect_b32 s{sT}, s{sT2}, s{sT}
        s_cselect_b64 vcc, -1, 0
        s_add_u32 s{sB}, s{sB}, s{sT}
        v_cndmask_b32 v{WA[0]}, v{VO16}, v{VM40}, vcc
        s_cmp_lg_u32 s{sTy}, 0
        s_cbranch_scc1 L_{name}_nq{lbl}
        s_lshl_b32 s{sB}, s{sP}, 17
        s_lshl_b32 s{sT}, s{sGT}, 10
        s_add_u32 s{sB}, s{sB}, s{sT}
        s_mov_b32 s{sH}, 0x10000
        s_mov_b32 s{sT}, {f2u(QSCALE):#x}
        """)
        for i in range(16):
            e(f"v_mul_f32 v{ACC[t]+i}, s{sT}, v{ACC[t]+i}")
        e(f"L_{name}_nq{lbl}:")
        for i in range(8):
            e(f"v_cvt_pk_bf16_f32 v{XF[0]+i}, v{ACC[t]+2*i}, v{ACC[t]+2*i+1}")
        e(f"""
        s_add_u32 s{sH}, s{sH}, s{sB}
        buffer_store_dwordx4 {vr(XF[0],4)}, v{WA[0]}, s[{sWS}:{sWS+3}], s{sB} offen
        buffer_store_dwordx4 {vr(XF[0]+4,4)}, v{WA[0]}, s[{sWS}:{sWS+3}], s{sH} offen
        """)
    e("s_nop 3")
    stamp(e, ST, 10)
    main_tile(0, "a")
    e(f"""
    s_cmp_eq_u32 s{sMP}, 0
    s_cbranch_scc0 L_{name}_extras
    """)
    main_tile(1, "b")
    stamp_flush(e, ST, 12, sWS, sW)
    e(f"s_endpgm\nL_{name}_extras:")
    A = ACC[1]
    e(f"v_mov_b32 v{WF[1][0]+1}, 0x3f80\nv_mov_b32 v{WF[1][0]+3}, 0x3f80")
    for j in range(3):
        r0 = A + 4 * (j // 2)
        d0, d1 = WF[1][0], WF[1][0] + 2
        e(f"""
        s_add_u32 s{sP}, s{sCT}, {j}
        s_lshr_b32 s{sTy}, s{sP}, 4
        s_and_b32 s{sP}, s{sP}, 15
        s_mov_b64 exec, -1
        s_mov_b32 exec_{'hi' if j % 2 == 0 else 'lo'}, 0
        s_cmp_eq_u32 s{sTy}, 0
        s_cselect_b32 s{sT}, {f2u(QSCALE):#x}, 1.0
        v_mul_f32 v{r0}, s{sT}, v{r0}
        v_mul_f32 v{r0+1}, s{sT}, v{r0+1}
        v_mul_f32 v{r0+2}, s{sT}, v{r0+2}
        v_mul_f32 v{r0+3}, s{sT}, v{r0+3}
        v_cvt_pk_bf16_f32 v{d0}, v{r0}, v{r0+1}
        v_cvt_pk_bf16_f32 v{d1}, v{r0+2}, v{r0+3}
        s_mul_i32 s{sB}, s{sP}, {2*KV_HEAD}
        s_add_u32 s{sB}, s{sB}, s57
        s_cmp_eq_u32 s{sTy}, 2
        s_cbranch_scc1 L_{name}_xv{j}
        s_lshl_b32 s{sT}, s{sTW}, 7
        s_add_u32 s{sB}, s{sB}, s{sT}
        s_add_u32 s{sB}, s{sB}, 9216
        s_add_u32 s{sH}, s{sB}, {KV_HEAD}
        s_cmp_eq_u32 s{sTy}, 1
        s_cbranch_scc1 L_{name}_xs{j}
        s_lshl_b32 s{sB}, s{sP}, 14
        s_lshl_b32 s{sT}, s{sGT}, 7
        s_add_u32 s{sB}, s{sB}, s{sT}
        s_add_u32 s{sB}, s{sB}, {QX_OFF}
        s_add_u32 s{sH}, s{sB}, 8192
        L_{name}_xs{j}:
        buffer_store_dword v{d0}, v{VO4}, s[{sWS}:{sWS+3}], s{sB} offen
        buffer_store_dword v{d1}, v{VO4}, s[{sWS}:{sWS+3}], s{sH} offen
        s_branch L_{name}_xn{j}
        L_{name}_xv{j}:
        s_mul_i32 s{sT}, s{sTW}, 1280
        s_add_u32 s{sB}, s{sB}, s{sT}
        s_add_u32 s{sB}, s{sB}, {4096+32}
        s_add_u32 s{sH}, s{sB}, {KV_HEAD}
        buffer_store_dwordx2 {vr(d0,2)}, v{VO40}, s[{sWS}:{sWS+3}], s{sB} offen
        buffer_store_dwordx2 {vr(d1,2)}, v{VO40}, s[{sWS}:{sWS+3}], s{sH} offen
        L_{name}_xn{j}:
        """)
    stamp_flush(e, ST, 12, sWS, sW)
    e(f"""
    L_{name}_end:
    s_endpgm
    """)
    return NV
```

```python
from common import *

def gen_attn(e, name="attn_kernel", stamps=False, X=()):
    def stamp(i):
        if stamps:
            e(f"s_memtime s[{40+2*i}:{41+2*i}]")
    def rstamp(i):
        if stamps:
            e(f"s_memrealtime s[{40+2*i}:{41+2*i}]")
    SA, SB = 0, 32
    O = 64
    Q = 80
    K0, K1 = 84, 88
    V = [92, 96, 100, 104]
    QX = 108
    KX = 110
    IDX = 112
    AK, AV, AKX = 113, 114, 115
    LANE, T0, T1, T2 = 116, 117, 118, 119
    NV = 120
    sWS = 8
    sHEAD, sJ, sW, sIT, sSOFF, sM0, sT = 12, 13, 14, 15, 16, 17, 18

    kernel_header(e, name)
    e(f"""
    s_cmp_ge_u32 s2, 256
    s_cbranch_scc1 L_{name}_end
    """)
    stamp(0); rstamp(5)
    e(f"""
    s_load_dwordx2 s[8:9], s[0:1], 88
    v_lshrrev_b32 v{T0}, 6, v0
    v_and_b32 v{LANE}, 63, v0
    s_and_b32 s{sHEAD}, s2, 7
    v_readfirstlane_b32 s{sW}, v{T0}
    s_lshl_b32 s{sHEAD}, s{sHEAD}, 2
    s_bfe_u32 s{sT}, s2, 0x20003
    s_add_u32 s{sHEAD}, s{sHEAD}, s{sT}
    s_lshr_b32 s{sJ}, s2, 5
    s_mov_b32 s10, {WS_USED}
    s_mov_b32 s11, 0x20000
    v_lshlrev_b32 v{AK}, 4, v{LANE}
    s_lshl_b32 s{sJ}, s{sJ}, 3
    s_add_u32 s{sJ}, s{sJ}, s{sW}
    """)
    e(f"""
    s_lshl_b32 s{sT}, s{sHEAD}, 6
    s_add_u32 s{sT}, s{sT}, s{sJ}
    s_lshl_b32 s19, s{sT}, 10
    s_lshl_b32 s20, s{sT}, 7
    s_add_u32 s20, s20, {QX_OFF}
    v_and_b32 v{T1}, 31, v{LANE}
    v_lshlrev_b32 v{T2}, 2, v{T1}
    s_mul_i32 s{sSOFF}, s{sHEAD}, {KV_HEAD}
    s_lshl_b32 s{sM0}, s{sW}, 12
    s_add_u32 s{sSOFF}, s{sSOFF}, {KV_OFF}
    s_add_u32 s{sSOFF}, s{sSOFF}, s{sM0}
    s_mov_b32 m0, s{sM0}
    s_waitcnt lgkmcnt(0)
    buffer_load_dwordx4 {vr(Q,4)}, v{AK}, s[8:11], s19 offen
    buffer_load_dword v{QX}, v{T2}, s[8:11], s20 offen
    """)
    def dma_round():
        for i in range(4):
            e(f"buffer_load_dwordx4 v{AK}, s[8:11], s{sSOFF} offen offset:{1024*i} lds")
        e(f"""
        s_add_u32 s{sM0}, s{sM0}, 0x8000
        s_add_u32 s{sSOFF}, s{sSOFF}, 0x8000
        s_mov_b32 m0, s{sM0}
        """)
    dma_round()
    e("s_nop 0")
    dma_round()
    e(f"""
    v_lshrrev_b32 v{T0}, 5, v{LANE}
    v_bfe_u32 v{T1}, v{LANE}, 2, 2
    v_lshl_add_u32 v{T0}, v{T0}, 3, v{T1}
    v_mul_u32_u24 v{AV}, 40, v{T0}
    v_and_b32 v{T0}, 1, v{LANE}
    v_lshlrev_b32 v{T0}, 4, v{T0}
    v_bfe_u32 v{T1}, v{LANE}, 1, 1
    v_lshl_add_u32 v{T0}, v{T1}, 3, v{T0}
    v_and_b32 v{T1}, 16, v{LANE}
    v_cmp_eq_u32 vcc, 0, v{T1}
    v_add_u32 v{AV}, 4096, v{AV}
    v_lshlrev_b32 v{AKX}, 2, v{LANE}
    v_cndmask_b32 v{T0}, 32, v{T0}, vcc
    v_add_u32 v{AV}, v{AV}, v{T0}
    v_add_u32 v{AKX}, 9216, v{AKX}
    """)
    if "zr" in X:
        e(f"""
        v_and_b32 v{T0}, 19, v{LANE}
        v_cmp_lt_u32 vcc, 16, v{T0}
        v_mov_b32 v{T1}, 0x100000
        s_nop 0
        v_cndmask_b32 v{AV}, v{AV}, v{T1}, vcc
        """)
    e(f"""
    v_mov_b32 v{KX+1}, 0x3f803f80
    v_mov_b32 v{QX+1}, 0
    v_mov_b32 v{IDX}, 0xdddddddd
    v_mov_b32 v{LANE}, v{AK}
    """)
    LANE16 = LANE
    for i in range(16):
        e(f"v_mov_b32 v{O+i}, 0")
    for i in range(8):
        e(f"v_mov_b32 v{SB+24+i}, 0")
    for i in range(4):
        e(f"v_mov_b32 v{V[3]+i}, 0")
    def koff(b, t):
        return (b // 2) * KV_CHUNK + (b % 2) * 2048 + t * 1024
    def kxoff(b):
        return (b // 2) * KV_CHUNK + (b % 2) * 256
    def voff(b, g, half):
        return (b // 2) * KV_CHUNK + ((b % 2) * 64 + g * 16 + half * 4) * 40
    def ldK(reg, b, t): e(f"ds_read_b128 {vr(reg,4)}, v{AK} offset:{koff(b,t)}")
    def ldKX(b): e(f"ds_read_b32 v{KX}, v{AKX} offset:{kxoff(b)}")
    def ldV(g, b):
        e(f"ds_read_b64_tr_b16 {vr(V[g],2)}, v{AV} offset:{voff(b,g,0)}")
        e(f"ds_read_b64_tr_b16 {vr(V[g]+2,2)}, v{AV} offset:{voff(b,g,1)}")
    def m2b(T): e(f"v_mfma_f32_32x32x4_2b_bf16 {vr(T,32)}, {vr(KX,2)}, {vr(QX,2)}, 0")
    def mx16(T, Kr): e(f"v_mfma_f32_32x32x16_bf16 {vr(T,16)}, {vr(Kr,4)}, {vr(Q,4)}, {vr(T,16)}")
    def msm(g, P): e(f"v_smfmac_f32_32x32x32_bf16 {vr(O,16)}, {vr(V[g],4)}, {vr(P+8*g,8)}, v{IDX}")

    def qk_simple(T):
        m2b(T)
        e("s_nop 15\ns_nop 1")
        mx16(T, K0)
        mx16(T + 16, K1)
        e("s_nop 11")

    e(f"""
    s_waitcnt vmcnt(4)
    s_barrier
    """)
    stamp(1)
    if stamps: e("s_waitcnt lgkmcnt(0)")
    ldKX(0); ldK(K0, 0, 0); ldK(K1, 0, 1)
    ldV(0, 0); ldV(1, 0); ldV(2, 0)
    e("s_waitcnt lgkmcnt(6)")
    qk_simple(SA)
    e(f"v_max3_f32 v{T0}, v{SA}, v{SA+1}, v{SA+2}")
    e(f"v_max3_f32 v{T1}, v{SA+3}, v{SA+4}, v{SA+5}")
    for i in range(6, 30, 4):
        e(f"v_max3_f32 v{T0}, v{T0}, v{SA+i}, v{SA+i+1}")
        e(f"v_max3_f32 v{T1}, v{T1}, v{SA+i+2}, v{SA+i+3}")
    e(f"v_max3_f32 v{T0}, v{T0}, v{SA+30}, v{SA+31}")
    e(f"""
    v_max_f32 v{T0}, v{T0}, v{T1}
    v_mov_b32 v{T1}, v{T0}
    s_nop 1
    v_permlane32_swap_b32 v{T0}, v{T1}
    v_max_f32 v{T0}, v{T0}, v{T1}
    v_cvt_pk_bf16_f32 v{T1}, -v{T0}, -v{T0}
    v_and_b32 v{T2}, 0xffff0000, v{T1}
    v_sub_f32 v{T2}, -v{T0}, v{T2}
    v_cvt_pk_bf16_f32 v{QX+1}, -v{T0}, v{T2}
    s_nop 1
    """)
    qk_simple(SA)
    ldKX(1); ldK(K0, 1, 0); ldK(K1, 1, 1)
    e(f"s_mov_b32 s{sIT}, 0")
    stamp(2)
    e("s_waitcnt lgkmcnt(0)")

    def ds1(res, b):
        if res[0] == 'V':
            g, half = res[1], res[2]
            bb = b if g == 3 else b + 1
            return f"ds_read_b64_tr_b16 {vr(V[g]+2*half,2)}, v{AV} offset:{voff(bb,g,half)}"
        if res[0] == 'K':
            return f"ds_read_b128 {vr((K0,K1)[res[1]],4)}, v{AK} offset:{koff(b+2,res[1])}"
        return f"ds_read_b32 v{KX}, v{AKX} offset:{kxoff(b+2)}"

    MF = {2: ('V', 3), 6: ('KX',), 14: ('V', 0), 18: ('V', 1), 22: ('K', 0), 26: ('V', 2), 30: ('K', 1)}
    if "nox8" in X:
        MF = {2: ('V', 3), 6: ('Z',), 10: ('KX',), 14: ('V', 0), 18: ('V', 1), 22: ('K', 0), 26: ('V', 2), 30: ('K', 1)}
    def make_sched():
        items = []
        pend = []
        spread = any(x.startswith("sp") for x in X)
        for i in range(32):
            if i in MF:
                r = MF[i]
                items.append(('mf', r))
                lds = [r + (0,), r + (1,)] if r[0] == 'V' else [r]
                if r[0] == 'Z': lds = []
                if spread: pend += lds
                else: items += [('ds', x) for x in lds]
            items.append(('exp', i))
            did = False
            if spread and pend and (("sp1" in X) or (i % 2 == 0)):
                items.append(('ds', pend.pop(0))); did = True
            if not did:
                if "y1" in X: items.append(('y', "s_nop 0"))
                if "y2" in X and i % 2 == 0: items.append(('y', "s_nop 1"))
                if "y4" in X and i % 4 == 1: items.append(('y', "s_nop 7"))
                if "y4b" in X and i % 4 == 1: items.append(('y', "s_nop 5"))
        assert not pend
        return items
    sched = make_sched()
    dsl = [k for k, it in enumerate(sched) if it[0] == 'ds']
    need = {}
    for k, it in enumerate(sched):
        if it[0] != 'mf' or it[1][0] == 'Z': continue
        prod = max(p for p in dsl if sched[p][1][:len(it[1])] == it[1])
        assert prod > k
        need[k] = len([p for p in dsl if p > prod]) + len([p for p in dsl if p < k])
    mfs = [k for k, it in enumerate(sched) if it[0] == 'mf' and it[1][0] != 'Z']
    groups = [mfs[0:3], mfs[3:7]]
    waits = {}
    for g in groups:
        k0 = g[0]
        waits[k0] = min(need[k] - len([p for p in dsl if k0 <= p < k]) for k in g)
        assert waits[k0] >= 0

    def iteration(b, Sx, Tx):
        for k, it in enumerate(sched):
            if k in waits and "nolds" not in X: e(f"s_waitcnt lgkmcnt({waits[k]})")
            if it[0] == 'exp':
                if "noexpsrc" in X: e(f"v_exp_f32 v{Sx+it[1]}, v{Q+it[1]%4}")
                elif "noexpdst" in X: e(f"v_exp_f32 v{T0+it[1]%2}, v{Sx+it[1]}")
                elif "noexp" not in X: e(f"v_exp_f32 v{Sx+it[1]}, v{Sx+it[1]}")
            elif it[0] == 'y': e(it[1])
            elif it[0] == 'ds':
                if "nolds" not in X: e(ds1(it[1], b))
            else:
                r = it[1]
                if "nomfma" in X: continue
                if r[0] == 'V': msm(r[1], Tx if r[1] == 3 else Sx)
                elif r[0] == 'Z': e(f"v_mfma_f32_32x32x8_bf16 {vr(Tx,16)}, {vr(KX,2)}, {vr(QX,2)}, 0")
                elif r[0] == 'KX' and "nox8" in X: e(f"v_mfma_f32_32x32x8_bf16 {vr(Tx+16,16)}, {vr(KX,2)}, {vr(QX,2)}, 0")
                elif r[0] == 'KX':
                    if "no2b" not in X: m2b(Tx)
                elif "noc" in X or "no2b" in X: e(f"v_mfma_f32_32x32x16_bf16 {vr(Tx+16*r[1],16)}, {vr((K0,K1)[r[1]],4)}, {vr(Q,4)}, 0")
                else: mx16(Tx + 16 * r[1], (K0, K1)[r[1]])

    if "prio" in X:
        e(f"""
        s_cmp_lt_u32 s{sW}, 4
        s_cbranch_scc1 L_{name}_np
        s_setprio 1
        L_{name}_np:
        """)
    if "un" in X:
        def dma4():
            for i in range(4):
                e(f"buffer_load_dwordx4 v{LANE16}, s[8:11], s{sSOFF} offen offset:{1024*i} lds")
            e(f"""
            s_add_u32 s{sM0}, s{sM0}, 0x8000
            s_add_u32 s{sSOFF}, s{sSOFF}, 0x8000
            s_mov_b32 m0, s{sM0}
            """)
        base = 0
        for c in range(16):
            if c == 2: e("s_waitcnt vmcnt(8)\ns_barrier")
            if c == 5:
                e("s_waitcnt vmcnt(0)\ns_barrier")
                if stamps: e("s_memtime s[42:43]\ns_waitcnt lgkmcnt(0)")
            if c < 3: dma4()
            if c - base == 4:
                for r in (AK, AV, AKX): e(f"v_add_u32 v{r}, {4*KV_CHUNK}, v{r}")
                base = c
            iteration(2 * (c - base), SA, SB)
            iteration(2 * (c - base) + 1, SB, SA)
        for r in (AK, AV, AKX): e(f"v_add_u32 v{r}, {4*KV_CHUNK}, v{r}")
        e("s_waitcnt lgkmcnt(0)")
    else:
        e(f"""
        L_{name}_special:
        s_cmp_eq_u32 s{sIT}, 5
        s_cbranch_scc1 L_{name}_syncC
        s_cmp_ge_u32 s{sIT}, 3
        s_cbranch_scc1 L_{name}_body
        s_cmp_lg_u32 s{sIT}, 2
        s_cbranch_scc1 L_{name}_dma
        s_waitcnt vmcnt(8)
        s_barrier
        L_{name}_dma:
        """)
        for i in range(4):
            e(f"buffer_load_dwordx4 v{LANE16}, s[8:11], s{sSOFF} offen offset:{1024*i} lds")
        e(f"""
        s_add_u32 s{sM0}, s{sM0}, 0x8000
        s_add_u32 s{sSOFF}, s{sSOFF}, 0x8000
        s_mov_b32 m0, s{sM0}
        s_branch L_{name}_body
        L_{name}_syncC:
        s_waitcnt vmcnt(0)
        s_barrier
        {"s_memtime s[42:43]" if stamps else ""}
        {"s_waitcnt lgkmcnt(0)" if stamps else ""}
        .p2align 6
        L_{name}_body:
        """)
        iteration(0, SA, SB)
        iteration(1, SB, SA)
        e(f"""
        v_add_u32 v{AK}, {KV_CHUNK}, v{AK}
        v_add_u32 v{AV}, {KV_CHUNK}, v{AV}
        v_add_u32 v{AKX}, {KV_CHUNK}, v{AKX}
        s_add_u32 s{sIT}, s{sIT}, 1
        s_cmp_lt_u32 s{sIT}, 6
        s_cbranch_scc1 L_{name}_special
        s_cmp_lt_u32 s{sIT}, 16
        s_cbranch_scc1 L_{name}_body
        s_waitcnt lgkmcnt(0)
        """)
    stamp(3)
    msm(3, SB)
    e("s_nop 11")
    e(f"""
    v_mov_b32 v{T0}, v{O+10}
    v_mov_b32 v{T1}, v{O+10}
    v_add_f32 v{T2}, |v{O}|, |v{O+1}|
    v_add_f32 v{SA}, |v{O+2}|, |v{O+3}|
    v_permlane32_swap_b32 v{T0}, v{T1}
    v_add_f32 v{SA+1}, |v{O+4}|, |v{O+5}|
    v_add_f32 v{SA+2}, |v{O+6}|, |v{O+7}|
    v_add_f32 v{SA+3}, |v{O+8}|, |v{O+9}|
    v_add_f32 v{T2}, v{T2}, v{SA}
    v_add_f32 v{SA+1}, v{SA+1}, v{SA+2}
    v_add_f32 v{T2}, v{T2}, v{SA+1}
    v_mov_b32 v{SA+4}, 0x7f7fffff
    v_cmp_nge_f32 vcc, 0x4e800000, v{T0}
    v_cmp_nle_f32 s[20:21], v{T2}, v{SA+4}
    v_cmp_nle_f32 s[22:23], v{SA+3}, v{SA+4}
    s_or_b64 s[20:21], vcc, s[20:21]
    v_cmp_nle_f32 vcc, 0x30800000, v{T0}
    s_or_b32 s20, s20, s22
    s_or_b64 s[20:21], vcc, s[20:21]
    {'s_nop 0' if any(x.startswith('no') for x in X) else 's_cbranch_scc1 L_'+name+'_slow'}
    L_{name}_fin:
    v_rcp_f32 v{T0}, v{T0}
    s_mul_i32 s19, s{sJ}, {36*1024}
    s_lshl_b32 s20, s{sHEAD}, 10
    s_add_u32 s19, s19, {O_OFF}
    s_add_u32 s20, s20, s19
    """)
    for i in range(10):
        e(f"v_mul_f32 v{O+i}, v{O+i}, v{T0}")
    for i in range(5):
        e(f"v_cvt_pk_bf16_f32 v{SA+i}, v{O+2*i}, v{O+2*i+1}")
    e(f"""
    buffer_store_dwordx4 {vr(SA,4)}, v{LANE16}, s[8:11], s20 offen
    s_lshr_b32 s21, s{sHEAD}, 2
    s_lshl_b32 s21, s21, 9
    s_and_b32 s22, s{sHEAD}, 3
    s_lshl_b32 s22, s22, 2
    s_add_u32 s21, s21, s22
    s_add_u32 s21, s21, s19
    s_add_u32 s21, s21, {32*1024}
    s_mov_b32 exec_hi, 0
    buffer_store_dword v{SA+4}, v{LANE16}, s[8:11], s21 offen
    """)
    if stamps:
        e("s_waitcnt vmcnt(0)")
        stamp(4); rstamp(6)
        e(f"""
        s_waitcnt lgkmcnt(0)
        s_sub_u32 s42, s42, s40
        s_sub_u32 s44, s44, s40
        s_sub_u32 s46, s46, s40
        s_sub_u32 s48, s48, s40
        s_sub_u32 s52, s52, s50
        v_mov_b32 v0, s42
        v_mov_b32 v1, s44
        v_mov_b32 v2, s46
        v_mov_b32 v3, s48
        v_mov_b32 v4, s52
        v_mov_b32 v5, s50
        v_mov_b32 v6, 0
        v_mov_b32 v7, 0
        s_lshl_b32 s19, s2, 3
        s_add_u32 s19, s19, s{sW}
        s_lshl_b32 s19, s19, 5
        s_add_u32 s19, s19, {UT_OFF}
        v_mov_b32 v8, 0
        s_mov_b64 exec, 1
        buffer_store_dwordx4 v[0:3], v8, s[8:11], s19 offen
        buffer_store_dwordx4 v[4:7], v8, s[8:11], s19 offen offset:16
        """)
    e(f"""
    L_{name}_end:
    s_endpgm
    """)
    M = T2
    e(f"""
    L_{name}_slow:
    v_mov_b32 v{QX+1}, 0
    v_mov_b32 v{M}, 0xff800000
    s_mov_b32 s24, 0
    L_{name}_slow_pass:
    v_subrev_u32 v{AK}, {16*KV_CHUNK}, v{AK}
    v_subrev_u32 v{AV}, {16*KV_CHUNK}, v{AV}
    v_subrev_u32 v{AKX}, {16*KV_CHUNK}, v{AKX}
    s_mov_b32 s{sIT}, 0
    L_{name}_slow_loop:
    """)
    for b in range(2):
        ldKX(b); ldK(K0, b, 0); ldK(K1, b, 1)
        for g in range(4): ldV(g, b)
        e("s_waitcnt lgkmcnt(0)")
        qk_simple(SA)
        e(f"""
        s_cmp_eq_u32 s24, 0
        s_cbranch_scc0 L_{name}_slow_pv{b}
        """)
        for i in range(0, 32, 2):
            e(f"v_max3_f32 v{M}, v{M}, v{SA+i}, v{SA+i+1}")
        e(f"s_branch L_{name}_slow_nx{b}")
        e(f"L_{name}_slow_pv{b}:")
        for i in range(32):
            e(f"v_sub_f32 v{SA+i}, v{SA+i}, v{M}")
        for i in range(32):
            e(f"v_exp_f32 v{SA+i}, v{SA+i}")
        e("s_nop 1")
        for g in range(4): msm(g, SA)
        e("s_nop 7")
        e(f"L_{name}_slow_nx{b}:")
    e(f"""
    v_add_u32 v{AK}, {KV_CHUNK}, v{AK}
    v_add_u32 v{AV}, {KV_CHUNK}, v{AV}
    v_add_u32 v{AKX}, {KV_CHUNK}, v{AKX}
    s_add_u32 s{sIT}, s{sIT}, 1
    s_cmp_lt_u32 s{sIT}, 16
    s_cbranch_scc1 L_{name}_slow_loop
    s_cmp_eq_u32 s24, 0
    s_cbranch_scc0 L_{name}_slow_done
    v_mov_b32 v{T1}, v{M}
    s_nop 1
    v_permlane32_swap_b32 v{M}, v{T1}
    v_max_f32 v{M}, v{M}, v{T1}
    """)
    for i in range(16):
        e(f"v_mov_b32 v{O+i}, 0")
    e(f"""
    s_mov_b32 s24, 1
    s_branch L_{name}_slow_pass
    L_{name}_slow_done:
    s_nop 11
    v_mov_b32 v{T0}, v{O+10}
    v_mov_b32 v{T1}, v{O+10}
    s_nop 1
    v_permlane32_swap_b32 v{T0}, v{T1}
    s_nop 0
    s_branch L_{name}_fin
    """)
    return NV
```

```python
from common import *

def gen_out(e, name="out_kernel", X=()):
    ST = "st" in X
    OF = 0
    ACC = 72
    WF = 120
    WA, WX = 144, 145
    DV = [146, 147, 148]
    LANE, T0, T1, T2, T3, TID = 149, 150, 151, 152, 153, 154
    NV = 160
    sWO, sWS, sOUT, sQ = 8, 12, 16, 20
    sW, sTB, sFB, sT, sT2, sG, sTW, sKH, sIDX = 24, 25, 26, 27, 28, 29, 30, 31, 32
    kernel_header(e, name)
    e(f"""
    s_cmp_ge_u32 s2, 256
    s_cbranch_scc1 L_{name}_end
    """)
    stamp_begin(e, ST)
    e(f"""
    s_load_dwordx4 s[36:39], s[0:1], 16
    s_load_dwordx2 s[{sOUT}:{sOUT+1}], s[0:1], 72
    s_load_dwordx2 s[{sWS}:{sWS+1}], s[0:1], 88
    v_mov_b32 v{TID}, v0
    v_lshrrev_b32 v{T0}, 6, v0
    v_and_b32 v{LANE}, 63, v0
    s_lshr_b32 s{sIDX}, s2, 3
    v_readfirstlane_b32 s{sW}, v{T0}
    s_and_b32 s{sT}, s2, 7
    s_mov_b32 s{sWS+2}, {WS_USED}
    s_mov_b32 s{sWS+3}, 0x20000
    s_mov_b32 s{sOUT+2}, {S*1152*2}
    s_mov_b32 s{sOUT+3}, 0x20000
    s_cmp_ge_u32 s{sIDX}, 24
    s_cbranch_scc1 L_{name}_ssm
    s_mul_i32 s{sT2}, s{sIDX}, 43
    s_lshr_b32 s{sT2}, s{sT2}, 8
    s_mul_i32 s{sFB}, s{sT2}, 6
    s_sub_u32 s{sFB}, s{sIDX}, s{sFB}
    s_lshl_b32 s{sTB}, s{sT}, 2
    s_add_u32 s{sTB}, s{sTB}, s{sT2}
    s_mul_i32 s{sG}, s{sT2}, 9
    s_add_u32 s{sG}, s{sG}, s{sW}
    s_and_b32 s{sTW}, s{sW}, 1
    s_bfe_u32 s{sKH}, s{sW}, 0x10001
    s_mov_b32 s{sWO+2}, {D*D*2}
    s_mov_b32 s{sWO+3}, 0x20000
    """)
    for i in range(3):
        e(f"""
        v_add_u32 v{T0}, {64*i}, v{LANE}
        v_mul_u32_u24 v{T1}, 171, v{T0}
        v_lshrrev_b32 v{T1}, 11, v{T1}
        v_mul_u32_u24 v{T2}, {1152-192}, v{T1}
        v_lshl_add_u32 v{DV[i]}, v{T0}, 4, v{T2}
        """)
    e(f"""
    v_lshlrev_b32 v{T3}, 4, v{LANE}
    s_lshl_b32 s{sT}, s{sTB}, 1
    s_add_u32 s{sT}, s{sT}, s{sTW}
    s_mul_i32 s{sT}, s{sT}, {36*1024}
    s_add_u32 s{sT}, s{sT}, {O_OFF}
    s_lshl_b32 s{sT2}, s{sKH}, 14
    s_add_u32 s33, s{sT}, s{sT2}
    s_lshl_b32 s{sT2}, s{sKH}, 11
    s_add_u32 s34, s{sT}, s{sT2}
    s_add_u32 s34, s34, 0x8000
    s_mul_i32 s35, s{sFB}, 192
    s_waitcnt lgkmcnt(0)
    s_mov_b64 s[{sWO}:{sWO+1}], s[36:37]
    """)
    stamp(e, ST, 1)
    for n in range(5):
        if n == 4:
            e(f"s_cmp_ge_u32 s{sW}, 4\ns_cbranch_scc1 L_{name}_dmadone")
        e(f"""
        s_cmp_ge_u32 s{sG}, 36
        s_cselect_b32 s{sT}, 36, 0
        s_sub_u32 s{sG}, s{sG}, s{sT}
        s_mul_i32 s{sT}, s{sG}, 3072
        s_mul_i32 s{sT2}, s{sG}, {16*1152}
        s_mov_b32 m0, s{sT}
        s_add_u32 s{sT2}, s{sT2}, s35
        buffer_load_dwordx4 v{DV[0]}, s[{sWO}:{sWO+3}], s{sT2} offen lds
        s_add_u32 m0, s{sT}, 1024
        s_add_u32 s{sG}, s{sG}, 8
        buffer_load_dwordx4 v{DV[1]}, s[{sWO}:{sWO+3}], s{sT2} offen lds
        s_add_u32 m0, s{sT}, 2048
        s_nop 0
        buffer_load_dwordx4 v{DV[2]}, s[{sWO}:{sWO+3}], s{sT2} offen lds
        """)
    for i in range(16):
        if i % 4 == 0 and i: e(f"s_add_u32 s33, s33, 4096")
        e(f"buffer_load_dwordx4 {vr(OF+4*i,4)}, v{T3}, s[{sWS}:{sWS+3}], s33 offen offset:{(i%4)*1024}")
    for i in range(2):
        e(f"buffer_load_dwordx4 {vr(OF+64+4*i,4)}, v{T3}, s[{sWS}:{sWS+3}], s34 offen offset:{i*1024}")
    e(f"""
    v_lshrrev_b32 v{T0}, 5, v{LANE}
    v_bfe_u32 v{T1}, v{LANE}, 2, 2
    v_and_b32 v{T2}, 3, v{LANE}
    v_lshlrev_b32 v{T2}, 3, v{T2}
    v_and_b32 v{T3}, 16, v{LANE}
    v_lshl_add_u32 v{T2}, v{T3}, 1, v{T2}
    v_mul_u32_u24 v{T1}, 192, v{T1}
    s_mul_i32 s{sT}, s{sKH}, {288*192}
    v_add3_u32 v{T2}, v{T2}, v{T1}, s{sT}
    v_mul_u32_u24 v{T1}, {4*192}, v{T0}
    v_add_u32 v{WA}, v{T2}, v{T1}
    v_mul_u32_u24 v{T1}, {72*192}, v{T0}
    v_add_u32 v{WX}, v{T2}, v{T1}
    s_waitcnt vmcnt(18)
    s_barrier
    s_branch L_{name}_mm
    L_{name}_dmadone:
    s_waitcnt vmcnt(0)
    s_barrier
    s_endpgm
    L_{name}_mm:
    """)
    stamp(e, ST, 2, True)
    def ldw(ks, buf):
        for ft in range(3):
            for rd in range(2):
                if ks < 16:
                    off = (18*ks + 2*(ks % 2) + 8*rd) * 192 + ft*64; a = WA
                else:
                    off = (144*(ks-16) + 36*rd + 16) * 192 + ft*64; a = WX
                e(f"ds_read_b64_tr_b16 {vr(WF+12*buf+4*ft+2*rd,2)}, v{a} offset:{off}")
    ldw(0, 0)
    for ks in range(18):
        buf = ks % 2
        if ks < 17:
            ldw(ks+1, buf ^ 1)
            e(f"s_waitcnt vmcnt({17-ks}) lgkmcnt(6)")
        else:
            e("s_waitcnt vmcnt(0) lgkmcnt(0)")
        for ft in range(3):
            c = "0" if ks == 0 else vr(ACC+16*ft,16)
            e(f"v_mfma_f32_32x32x16_bf16 {vr(ACC+16*ft,16)}, {vr(WF+12*buf+4*ft,4)}, {vr(OF+4*ks,4)}, {c}")
    stamp(e, ST, 3)
    RB = 110592
    e(f"""
    s_mul_i32 s{sT}, s{sW}, 6144
    s_xor_b32 s{sT2}, s{sW}, 2
    s_mul_i32 s{sT2}, s{sT2}, 6144
    v_lshlrev_b32 v{T3}, 4, v{LANE}
    v_add_u32 v{T3}, {RB}, v{T3}
    v_add_u32 v{T0}, s{sT}, v{T3}
    v_add_u32 v{T1}, s{sT2}, v{T3}
    s_nop 4
    s_cmp_eq_u32 s{sKH}, 0
    s_cbranch_scc0 L_{name}_kh1
    """)
    def red(kh):
        own, oth = 8*kh, 8*(1-kh)
        for ft in range(3):
            for g in range(2):
                e(f"ds_write_b128 v{T0}, {vr(ACC+16*ft+oth+4*g,4)} offset:{(2*ft+g)*1024}")
        e("s_waitcnt lgkmcnt(0)\ns_barrier")
        for ft in range(3):
            for g in range(2):
                e(f"ds_read_b128 {vr(OF+8*ft+4*g,4)}, v{T1} offset:{(2*ft+g)*1024}")
        for ft in range(3):
            e(f"s_waitcnt lgkmcnt({4-2*ft})")
            for i in range(8):
                e(f"v_add_f32 v{OF+8*ft+i}, v{OF+8*ft+i}, v{ACC+16*ft+own+i}")
    red(0)
    e(f"s_branch L_{name}_st\nL_{name}_kh1:")
    red(1)
    e(f"L_{name}_st:")
    for ft in range(3):
        for i in range(4):
            e(f"v_cvt_pk_bf16_f32 v{OF+24+4*ft+i}, v{OF+8*ft+2*i}, v{OF+8*ft+2*i+1}")
    e(f"""
    v_and_b32 v{T0}, 31, v{LANE}
    v_mul_u32_u24 v{T0}, 2304, v{T0}
    v_lshrrev_b32 v{T1}, 5, v{LANE}
    v_lshl_add_u32 v{T0}, v{T1}, 4, v{T0}
    s_lshl_b32 s{sT}, s{sTB}, 1
    s_add_u32 s{sT}, s{sT}, s{sTW}
    s_mul_i32 s{sT}, s{sT}, {32*2304}
    s_lshl_b32 s{sT2}, s{sKH}, 5
    s_add_u32 s{sT}, s{sT}, s{sT2}
    s_add_u32 s{sT}, s{sT}, s35
    """)
    for ft in range(3):
        b = OF + 24 + 4*ft
        e(f"""
        v_permlane32_swap_b32 v{b}, v{b+2}
        v_permlane32_swap_b32 v{b+1}, v{b+3}
        """)
    for ft in range(3):
        b = OF + 24 + 4*ft
        e(f"buffer_store_dwordx4 {vr(b,4)}, v{T0}, s[{sOUT}:{sOUT+3}], s{sT} offen offset:{ft*64}")
    stamp_flush(e, ST, 5, sWS, sW)
    e("s_endpgm")
    Y, Q, OUTR = 0, 32, 64
    e(f"""
    L_{name}_ssm:
    s_cmp_ge_u32 s{sW}, 5
    s_cbranch_scc1 L_{name}_end
    s_lshl_b32 s{sT}, s{sT}, 3
    s_add_u32 s{sT}, s{sT}, s{sIDX}
    s_sub_u32 s{sT}, s{sT}, 24
    s_mov_b32 s{sQ+2}, {S*D*2}
    s_mov_b32 s{sQ+3}, 0x20000
    v_mul_u32_u24 v{T0}, 911, v{TID}
    v_lshrrev_b32 v{T0}, 16, v{T0}
    v_mul_u32_u24 v{T1}, 72, v{T0}
    v_sub_u32 v{T1}, v{TID}, v{T1}
    v_cmp_gt_u32 vcc, 288, v{TID}
    v_lshlrev_b32 v{T2}, 7, v{TID}
    v_mul_u32_u24 v{T3}, {8*1152}, v{T0}
    v_lshl_add_u32 v{T3}, v{T1}, 4, v{T3}
    v_mul_u32_u24 v{T0}, {8*2304}, v{T0}
    v_lshl_add_u32 v{T0}, v{T1}, 4, v{T0}
    s_mul_i32 s33, s{sT}, {4*9216}
    s_add_u32 s34, s33, {YT_OFF}
    s_add_u32 s35, s33, {4*1152}
    s_mul_i32 s{sT2}, s{sT}, {32*2304}
    s_add_u32 s{sT2}, s{sT2}, 1152
    s_and_b64 exec, exec, vcc
    s_waitcnt lgkmcnt(0)
    s_mov_b64 s[{sQ}:{sQ+1}], s[38:39]
    """)
    for t in range(8):
        e(f"buffer_load_dwordx4 {vr(Q+4*t,4)}, v{T3}, s[{sQ}:{sQ+3}], s{33 if t < 4 else 35} offen offset:{(t%4)*1152}")
    for c in range(8):
        e(f"buffer_load_dwordx4 {vr(Y+4*c,4)}, v{T2}, s[{sWS}:{sWS+3}], s34 offen offset:{16*c}")
    e("s_waitcnt vmcnt(0)")
    A, B2 = 96, 100
    for t in range(8):
        for cp in range(4):
            a = A + 2 * (cp % 2); b = B2 + 2 * (cp % 2)
            e(f"v_lshlrev_b32 v{a}, 16, v{Q+4*t+cp}")
            e(f"v_and_b32 v{a+1}, 0xffff0000, v{Q+4*t+cp}")
            for k in range(2):
                src = Y + 4*(2*cp+k) + t//2
                if t % 2 == 0: e(f"v_lshlrev_b32 v{b+k}, 16, v{src}")
                else: e(f"v_and_b32 v{b+k}, 0xffff0000, v{src}")
            e(f"v_pk_mul_f32 {vr(a,2)}, {vr(a,2)}, {vr(b,2)}")
            e(f"v_cvt_pk_bf16_f32 v{OUTR+4*t+cp}, v{a}, v{a+1}")
        e(f"buffer_store_dwordx4 {vr(OUTR+4*t,4)}, v{T0}, s[{sOUT}:{sOUT+3}], s{sT2} offen")
        e(f"s_add_u32 s{sT2}, s{sT2}, 2304")
    stamp_flush(e, ST, 5, sWS, sW)
    e(f"L_{name}_end:\ns_endpgm")
    return NV
```

```python
from common import *

HE_OFF, HO_OFF, UR_OFF, CH_LDS = 0, 4288, 8576, 13184

def gen_conv(e, name="conv_kernel", X=()):
    ACC = 0
    AF = 16
    BF = 48
    AA, BA, LANE, T0, T1, T2, DV = 80, 81, 82, 83, 84, 85, 86
    Z = 88
    NV = 92
    sH, sWS = 8, 12
    sW, sC, sSET, sT, sL = 16, 17, 18, 19, 20
    kernel_header(e, name)
    e(f"""
    s_cmp_ge_u32 s2, 288
    s_cbranch_scc1 L_{name}_end
    s_load_dwordx2 s[{sH}:{sH+1}], s[0:1], 56
    s_load_dwordx2 s[{sWS}:{sWS+1}], s[0:1], 88
    s_load_dwordx2 s[24:25], s[0:1], 64
    v_lshrrev_b32 v{T0}, 6, v0
    v_and_b32 v{LANE}, 63, v0
    s_mov_b32 s{sH+2}, {D*S*2}
    v_readfirstlane_b32 s{sW}, v{T0}
    s_mov_b32 s{sH+3}, 0x20000
    s_mov_b32 s{sWS+2}, {WS_USED}
    s_mov_b32 s{sWS+3}, 0x20000
    s_lshr_b32 s{sT}, s{sW}, 1
    s_and_b32 s{sSET}, s{sW}, 1
    s_lshl_b32 s{sC}, s2, 1
    s_add_u32 s{sC}, s{sC}, s{sT}
    s_mul_i32 s{sL}, s{sT}, {CH_LDS}
    v_mov_b32 v{Z}, 0
    v_mov_b32 v{Z+1}, 0
    v_mov_b32 v{Z+2}, 0
    v_mov_b32 v{Z+3}, 0
    v_lshlrev_b32 v{DV}, 4, v{LANE}
    """)
    e(f"""
    s_lshl_b32 s21, s{sC}, 12
    s_lshl_b32 s26, s2, 2
    s_waitcnt lgkmcnt(0)
    s_load_dword s26, s[24:25], s26
    s_cmp_eq_u32 s{sSET}, 0
    s_cbranch_scc0 L_{name}_ldu
    s_add_u32 m0, s{sL}, {HE_OFF+32}
    s_add_u32 s22, s21, 2
    """)
    for i in range(4): e(f"buffer_load_dwordx4 v{DV}, s[{sH}:{sH+3}], s22 offen offset:{1024*i} lds")
    e(f"""
    s_add_u32 m0, s{sL}, {HO_OFF+32}
    s_add_u32 s22, s21, 4
    """)
    for i in range(4): e(f"buffer_load_dwordx4 v{DV}, s[{sH}:{sH+3}], s22 offen offset:{1024*i} lds")
    e(f"""
    v_mov_b32 v{T0}, 0
    buffer_load_dword v{AF+3}, v{T0}, s[{sH}:{sH+3}], s21 offen
    v_mov_b32 v{T1}, s{sL}
    v_mov_b32 v{AF}, 0
    v_mov_b32 v{AF+1}, 0
    v_mov_b32 v{AF+2}, 0
    ds_write_b128 v{T1}, {vr(Z,4)} offset:{HE_OFF}
    ds_write_b128 v{T1}, {vr(Z,4)} offset:{HO_OFF}
    s_waitcnt vmcnt(0)
    ds_write_b128 v{T1}, {vr(AF,4)} offset:{HO_OFF+16}
    v_lshlrev_b32 v{AF+7}, 16, v{AF+3}
    v_mov_b32 v{AF+4}, 0
    v_mov_b32 v{AF+5}, 0
    v_mov_b32 v{AF+6}, 0
    ds_write_b128 v{T1}, {vr(AF+4,4)} offset:{HE_OFF+16}
    s_branch L_{name}_go
    L_{name}_ldu:
    v_sub_u32 v{T0}, 255, v{LANE}
    v_mul_u32_u24 v{T0}, 9216, v{T0}
    s_lshl_b32 s22, s{sC}, 4
    s_add_u32 s22, s22, {UT_OFF}
    """)
    for i in range(4):
        e(f"""
        s_add_u32 m0, s{sL}, {UR_OFF + 1024*i}
        s_nop 0
        buffer_load_dwordx4 v{T0}, s[{sWS}:{sWS+3}], s22 offen lds
        v_subrev_u32 v{T0}, {64*9216}, v{T0}
        """)
    e(f"""
    v_add_u32 v{T1}, s{sL}, v{DV}
    s_mov_b32 exec_hi, 0
    ds_write_b128 v{T1}, {vr(Z,4)} offset:{UR_OFF+4096}
    s_mov_b32 exec_hi, -1
    s_waitcnt vmcnt(0)
    L_{name}_go:
    """)
    e(f"""
    v_and_b32 v{T0}, 15, v{LANE}
    v_lshrrev_b32 v{T1}, 4, v{LANE}
    v_and_b32 v{T2}, 14, v{T0}
    v_lshlrev_b32 v{T2}, 1, v{T2}
    v_lshl_add_u32 v{AA}, v{T1}, 4, v{T2}
    v_and_b32 v{T2}, 1, v{T0}
    v_mul_u32_u24 v{T2}, {HO_OFF}, v{T2}
    v_add3_u32 v{AA}, v{AA}, v{T2}, s{sL}
    v_sub_u32 v{T2}, 15, v{T0}
    v_lshlrev_b32 v{T2}, 5, v{T2}
    v_lshl_add_u32 v{BA}, v{T1}, 4, v{T2}
    v_add_u32 v{BA}, s{sL}, v{BA}
    v_add_u32 v{BA}, {UR_OFF}, v{BA}
    """)
    for i in range(16): e(f"v_mov_b32 v{ACC+i}, 0")
    e(f"""
    s_waitcnt lgkmcnt(0)
    s_barrier
    s_mov_b32 s23, 0
    s_cmp_eq_u32 s{sSET}, 0
    s_cbranch_scc0 L_{name}_set1
    """)
    for si, tiles in enumerate(([7, 6, 1, 0], [5, 4, 3, 2])):
        nf = max(tiles) + 1
        e(f"L_{name}_set{si}:")
        top = tiles[0]
        for m in range(nf):
            e(f"v_add_u32 v{T0}, {m*512}, v{AA}") if m else e(f"v_mov_b32 v{T0}, v{AA}")
            e(f"ds_read2_b32 {vr(AF+4*m,2)}, v{T0} offset0:0 offset1:1")
            e(f"ds_read2_b32 {vr(AF+4*m+2,2)}, v{T0} offset0:2 offset1:3")
            ep = top - m
            e(f"ds_read_b128 {vr(BF+4*ep,4)}, v{BA} offset:{(7-ep)*512}")
        done = set()
        for m in range(nf):
            e(f"s_waitcnt lgkmcnt({min(15, 3*(nf-1-m))})")
            for ti, n in enumerate(tiles):
                for mm in range(n + 1):
                    ep = n - mm
                    if (n, mm) not in done and mm <= m and ep >= top - m:
                        done.add((n, mm))
                        e(f"v_mfma_f32_16x16x32_bf16 {vr(ACC+4*ti,4)}, {vr(AF+4*mm,4)}, {vr(BF+4*ep,4)}, {vr(ACC+4*ti,4)}")
        assert len(done) == 18
        e(f"""
        v_add_u32 v{AA}, 64, v{AA}
        v_add_u32 v{BA}, 64, v{BA}
        s_add_u32 s23, s23, 1
        s_cmp_lt_u32 s23, 8
        s_cbranch_scc1 L_{name}_set{si}
        v_and_b32 v{T0}, 15, v{LANE}
        v_lshrrev_b32 v{T1}, 4, v{LANE}
        v_lshlrev_b32 v{T2}, 5, v{T0}
        v_lshl_add_u32 v{T2}, v{T1}, 3, v{T2}
        v_sub_u32 v{T2}, {UR_OFF + 4088 - 3584}, v{T2}
        v_add_u32 v{T2}, s{sL}, v{T2}
        """)
        for ti, n in enumerate(tiles):
            e(f"ds_read_b64 {vr(BF+2*ti,2)}, v{T2} offset:{3584-512*n}")
        e(f"""
        v_lshrrev_b32 v{AA}, 1, v{T1}
        v_lshl_add_u32 v{T0}, v{T0}, 1, v{AA}
        v_mul_u32_u24 v{T0}, 9216, v{T0}
        v_and_b32 v{T1}, 1, v{T1}
        v_lshl_add_u32 v{T0}, v{T1}, 3, v{T0}
        s_lshl_b32 s27, s26, 16
        s_and_b32 s26, s26, 0xffff0000
        s_bitcmp1_b32 s{sC}, 0
        s_cselect_b32 s26, s26, s27
        s_lshl_b32 s21, s{sC}, 4
        s_add_u32 s21, s21, {YT_OFF}
        s_waitcnt lgkmcnt(0)
        """)
        for ti, n in enumerate(tiles):
            A4 = ACC + 4 * ti
            e(f"""
            v_and_b32 v{AF}, 0xffff0000, v{BF+2*ti+1}
            v_lshlrev_b32 v{AF+1}, 16, v{BF+2*ti+1}
            v_and_b32 v{AF+2}, 0xffff0000, v{BF+2*ti}
            v_lshlrev_b32 v{AF+3}, 16, v{BF+2*ti}
            v_fmac_f32 v{A4}, s26, v{AF}
            v_fmac_f32 v{A4+1}, s26, v{AF+1}
            v_fmac_f32 v{A4+2}, s26, v{AF+2}
            v_fmac_f32 v{A4+3}, s26, v{AF+3}
            v_cvt_pk_bf16_f32 v{AF+4+2*ti}, v{A4}, v{A4+1}
            v_cvt_pk_bf16_f32 v{AF+5+2*ti}, v{A4+2}, v{A4+3}
            s_add_u32 s22, s21, {n*32*9216}
            buffer_store_dwordx2 {vr(AF+4+2*ti,2)}, v{T0}, s[{sWS}:{sWS+3}], s22 offen
            """)
        e("s_endpgm")
    e(f"L_{name}_end:\ns_endpgm")
    return NV
```

```python
import sys
from common import *
import k2_attn, k1_qkv, k_conv, k3_out

HDR = open("concat_heads__softmax_full_mha__ssm_conv_h3__prompt.s.ref").read().split("; Override")[0]

def build(kernels, launches):
    e = Asm()
    descs = []
    for name, fn in kernels:
        nv = fn(e, name)
        descs.append(kernel_desc(name, nv))
    s = HDR
    for name, g, b, lds in launches:
        s += f"; @launch kernel={name} grid=({g},1,1) block=({b},1,1) lds={lds}\n"
    s += '.amdgcn_target "amdgcn-amd-amdhsa--gfx950"\n.text\n'
    s += e.text()
    s += '.section .rodata,"a"\n'
    for d in descs:
        s += ".p2align 6\n" + d
    return s

if __name__ == "__main__":
    which = sys.argv[1]
    if which == "attn":
        s = build([("attn_kernel", k2_attn.gen_attn)], [("attn_kernel", 256, 512, 163840)])
    if which == "attn_st":
        s = build([("attn_kernel", lambda e, n: k2_attn.gen_attn(e, n, stamps=True, X=tuple(sys.argv[3:])))], [("attn_kernel", 256, 512, 163840)])
    if which == "qkv":
        X = tuple(sys.argv[3:])
        ns = 5 if "s5" in X else 4
        s = build([("qkv_kernel", lambda e, n: k1_qkv.gen_qkv(e, n, NSLOT=ns, X=X))], [("qkv_kernel", 256, 512, 32768 * ns + 32768)])
    if which == "full4":
        X = tuple(sys.argv[3:])
        s = build([("qkv_kernel", lambda e, n: k1_qkv.gen_qkv(e, n, X=("ld0", "cp4"))),
                   ("conv_kernel", k_conv.gen_conv),
                   ("attn_kernel", lambda e, n: k2_attn.gen_attn(e, n, X=("un", "zr"))),
                   ("out_kernel", lambda e, n: k3_out.gen_out(e, n, X=X))],
                  [("qkv_kernel", 256, 512, 163840), ("conv_kernel", 288, 256, 2 * k_conv.CH_LDS),
                   ("attn_kernel", 256, 512, 163840), ("out_kernel", 256, 512, 110592 + 4 * 6144)])
    open(sys.argv[2], "w").write(s)
```

```python
S, D, H, DH = 2048, 576, 32, 18
QI_OFF = 0x000000
QI_BLK = 4608
QI_HEAD = QI_BLK * 16
KV_OFF = 0x240000
KV_CHUNK = 9728
KV_HEAD = KV_CHUNK * 16
KX_IN, V_IN = 4096, 4608
O_OFF = 0x700000
UT_OFF = 0x940000
YT_OFF = 0xB80000
FL_OFF = 0xDC0000
WS_USED = 0xDE0000
ST_OFF = 0xE00000
QSCALE = 1.4426950408889634 / (18 ** 0.5)

import struct
def f2u(x):
    return struct.unpack("<I", struct.pack("<f", x))[0]

class Asm:
    def __init__(self):
        self.lines = []
    def __call__(self, s):
        for l in s.strip("\n").split("\n"):
            l = l.strip()
            if not l: continue
            if l.endswith(":") or l.startswith("."):
                self.lines.append(l)
            else:
                self.lines.append("    " + l)
    def text(self):
        return "\n".join(self.lines) + "\n"

def vr(base, n=1):
    return f"v{base}" if n == 1 else f"v[{base}:{base+n-1}]"

def kernel_desc(name, vgpr, sgpr=102):
    acc = (vgpr + 3) // 4 * 4
    return f""".amdhsa_kernel {name}
  .amdhsa_next_free_vgpr {vgpr}
  .amdhsa_next_free_sgpr {sgpr}
  .amdhsa_accum_offset {acc}
  .amdhsa_group_segment_fixed_size 0
  .amdhsa_kernarg_size 96
  .amdhsa_user_sgpr_count 2
  .amdhsa_user_sgpr_kernarg_segment_ptr 1
  .amdhsa_system_sgpr_workgroup_id_x 1
  .amdhsa_float_denorm_mode_32 3
.end_amdhsa_kernel
"""
```

```python
import sys
from common import *

NAME = "concat_heads__softmax_full_mha__ssm_conv_h3__prompt_kernel"
SRA, SWS, SRB, SRC, SRD_ = 4, 8, 12, 16, 20
sW, sNONCE = 24, 25
pX, pWQ, pWO, pQ, pK, pV, pSH, pH, pD, pOUT, pDBG, pWS = range(64, 88, 2)
VST = 255
LANE, L16 = 250, 251
TID = 252
VN = 253
UR_BASE, UR_SZ = 116736, 4608
H_BASE, H_SZ, HO_IN = 130560, 8320, 4160
CP_BASE = 155648

class G:
    def __init__(self, X):
        self.e = Asm(); self.X = X; self.ST = "st" in X
    def stamp(self, i):
        if self.ST:
            self.e(f"s_memtime s[88:89]\ns_waitcnt lgkmcnt(0)\nv_writelane_b32 v{VST}, s88, {i}")
    def rstamp(self, i):
        if self.ST:
            self.e(f"s_memrealtime s[88:89]\ns_waitcnt lgkmcnt(0)\nv_writelane_b32 v{VST}, s88, {i}")
    def flush(self):
        if self.ST:
            self.e("s_waitcnt vmcnt(0)")
            self.stamp(30); self.rstamp(31)
            self.e(f"""
            s_mov_b64 exec, -1
            s_lshl_b32 s88, s2, 3
            s_add_u32 s88, s88, s{sW}
            s_lshl_b32 s88, s88, 8
            s_add_u32 s88, s88, {ST_OFF}
            s_mov_b32 s{SWS+2}, 0x1000000
            v_lshlrev_b32 v0, 2, v{LANE}
            buffer_store_dword v{VST}, v0, s[{SWS}:{SWS+3}], s88 offen
            """)
    def srd(self, slot, ptr, nbytes):
        self.e(f"s_mov_b64 s[{slot}:{slot+1}], s[{ptr}:{ptr+1}]\ns_mov_b32 s{slot+2}, {nbytes}\ns_mov_b32 s{slot+3}, 0x20000")
    def signal(self, which):
        self.e(f"""
        s_lshl_b32 s26, s2, 7
        s_add_u32 s26, s26, {FL_OFF + which*32768}
        v_mov_b32 v{VN}, s{sNONCE}
        s_mov_b64 exec, 1
        buffer_store_dword v{VN}, v{L16}, s[{SWS}:{SWS+3}], s26 offen sc1
        s_mov_b64 exec, -1
        """)
    def poll(self, lbl, which, n, sfirst, tmp):
        e = self.e
        ninst = max(1, n // 64)
        e(f"v_lshlrev_b32 v{tmp+4}, 7, v{LANE}")
        if n == 32: e(f"v_and_b32 v{tmp+4}, {31*128}, v{tmp+4}")
        if sfirst is None: e(f"s_mov_b32 s26, {FL_OFF + which*32768}")
        else: e(f"s_add_u32 s26, s{sfirst}, {FL_OFF + which*32768}")
        for i in range(1, ninst): e(f"s_add_u32 s{26+i}, s26, {8192*i}")
        e(f"s_mov_b32 s30, 0\n{lbl}_poll:")
        for i in range(ninst):
            e(f"buffer_load_dword v{tmp+i}, v{tmp+4}, s[{SWS}:{SWS+3}], s{26+i} offen sc1")
        e("s_waitcnt vmcnt(0)")
        for i in range(ninst):
            e(f"v_xor_b32 v{tmp+i}, s{sNONCE}, v{tmp+i}")
        if ninst == 4:
            e(f"v_or3_b32 v{tmp}, v{tmp}, v{tmp+1}, v{tmp+2}\nv_or_b32 v{tmp}, v{tmp}, v{tmp+3}")
        e(f"""
        v_cmp_ne_u32 vcc, 0, v{tmp}
        s_add_u32 s30, s30, 1
        s_cmp_gt_u32 s30, 0x8000
        s_cbranch_scc1 {lbl}_pdone
        s_cmp_lg_u64 vcc, 0
        s_cbranch_scc1 {lbl}_poll
        {lbl}_pdone:
        """)

def phase1(g):
    e, X = g.e, g.X
    NSLOT, SLOT, PRE = 4, 32768, 2
    ACC = [0, 16]; XF = [32, 36]; WF = [[40, 44], [48, 52]]
    XA = [56, 57, 58, 59]; WA = [60, 61]; DX = [62, 63]; DW = [64, 65]
    T0, T1, T2, T3 = 68, 69, 70, 71
    KR, VRg, WR, KF, WFp = 72, 83, 92, 96, 118
    SA = [128, 129, 130]; SHA = 131
    U, VT, OUT = 132, 148, 152
    EP = 160
    sX, sWq = SRB, SRC
    sTW, sMP, sTT, sCT, sT, sT2, sT3 = 33, 34, 35, 36, 37, 38, 39
    sXO, sWO, sM0, sKB = 40, 41, 42, 43
    e(f"""
    s_cmp_ge_u32 s2, 256
    s_cbranch_scc1 L_end
    s_load_dwordx16 s[64:79], s[0:1], 0
    s_load_dwordx8 s[80:87], s[0:1], 64
    v_mov_b32 v{TID}, v0
    v_lshrrev_b32 v{T0}, 6, v0
    v_and_b32 v{LANE}, 63, v0
    s_and_b32 s{sT}, s2, 7
    v_readfirstlane_b32 s{sW}, v{T0}
    s_lshr_b32 s{sT2}, s2, 3
    s_lshr_b32 s{sTT}, s{sT}, 1
    s_lshl_b32 s{sTT}, s{sTT}, 2
    s_lshr_b32 s{sT3}, s{sT2}, 3
    s_add_u32 s{sTT}, s{sTT}, s{sT3}
    s_lshl_b32 s{sKB}, s{sT3}, 1
    s_and_b32 s{sCT}, s{sT}, 1
    s_lshl_b32 s{sCT}, s{sCT}, 3
    s_and_b32 s{sT3}, s{sT2}, 7
    s_add_u32 s{sCT}, s{sCT}, s{sT3}
    s_add_u32 s{sKB}, s{sKB}, s{sT3}
    s_cmp_ge_u32 s{sKB}, 9
    s_cselect_b32 s{sT}, 9, 0
    s_sub_u32 s{sKB}, s{sKB}, s{sT}
    v_lshlrev_b32 v{L16}, 4, v{LANE}
    """)
    e(f"""
    v_lshrrev_b32 v{T0}, 3, v{LANE}
    s_lshl_b32 s{sT}, s{sTT}, 7
    s_lshl_b32 s{sT2}, s{sW}, 4
    s_add_u32 s{sT}, s{sT}, s{sT2}
    v_add_u32 v{T0}, s{sT}, v{T0}
    v_mul_u32_u24 v{T0}, 1152, v{T0}
    v_lshrrev_b32 v{T1}, 4, v{LANE}
    v_and_b32 v{T2}, 7, v{LANE}
    v_xor_b32 v{T2}, v{T2}, v{T1}
    v_lshl_add_u32 v{DX[0]}, v{T2}, 4, v{T0}
    v_xor_b32 v{T2}, 4, v{T2}
    v_lshl_add_u32 v{DX[1]}, v{T2}, 4, v{T0}
    v_add_u32 v{DX[1]}, {8*1152}, v{DX[1]}
    v_and_b32 v{T2}, 15, v{LANE}
    v_lshlrev_b32 v{T3}, 2, v{T1}
    v_xor_b32 v{T2}, v{T2}, v{T3}
    v_lshrrev_b32 v{T3}, 2, v{T2}
    v_mul_u32_u24 v{T0}, 72, v{T3}
    v_bfe_u32 v{T3}, v{T2}, 1, 1
    v_mad_u32_u24 v{T0}, v{T3}, 40, v{T0}
    v_and_b32 v{T3}, 1, v{T2}
    v_lshl_add_u32 v{T0}, v{T3}, 4, v{T0}
    v_and_b32 v{T3}, 3, v{T2}
    v_mul_u32_u24 v{T3}, 72, v{T3}
    v_cmp_gt_u32 vcc, 12, v{T2}
    v_add_u32 v{T3}, 32, v{T3}
    s_lshl_b32 s{sT}, s{sW}, 3
    v_cndmask_b32 v{T0}, v{T3}, v{T0}, vcc
    v_add_u32 v{T1}, s{sT}, v{T1}
    v_mul_u32_u24 v{T1}, 3456, v{T1}
    s_mul_i32 s{sT}, s{sCT}, 216
    v_cmp_eq_u32 vcc, 15, v{T2}
    v_add3_u32 v{DW[0]}, v{T0}, v{T1}, s{sT}
    v_mov_b32 v{T3}, 0x40000000
    v_cndmask_b32 v{DW[0]}, v{DW[0]}, v{T3}, vcc
    v_add_u32 v{DW[1]}, {4*3456}, v{DW[0]}
    s_lshl_b32 s{sM0}, s{sW}, 11
    s_mov_b32 s{sX+2}, {S*D*2}
    s_mov_b32 s{sX+3}, 0x20000
    s_mov_b32 s{sWq+2}, {D*1728*2}
    s_mov_b32 s{sWq+3}, 0x20000
    s_waitcnt lgkmcnt(0)
    s_mov_b64 s[{sX}:{sX+1}], s[{pX}:{pX+1}]
    s_mov_b64 s[{sWq}:{sWq+1}], s[{pWQ}:{pWQ+1}]
    """)
    g.stamp(0); g.rstamp(29)
    vm = []
    def vmwait(tag, extra=""):
        last = max(i for i, t in enumerate(vm) if t == tag)
        e(f"s_waitcnt vmcnt({len(vm) - 1 - last}){extra}")
    def dma_piece(st, i):
        slot = st % NSLOT
        vm.append(st)
        if i == 0:
            e(f"""
            s_add_u32 m0, s{sM0}, {slot*SLOT}
            s_lshl_b32 s{sXO}, s{sKB}, 7
            buffer_load_dwordx4 v{DX[0]}, s[{sX}:{sX+3}], s{sXO} offen lds
            """)
        elif i == 1:
            e(f"""
            s_add_u32 m0, s{sM0}, {slot*SLOT + 16384}
            s_mul_i32 s{sWO}, s{sKB}, {64*3456}
            buffer_load_dwordx4 v{DW[0]}, s[{sWq}:{sWq+3}], s{sWO} offen lds
            """)
        elif i == 2:
            e(f"""
            s_add_u32 m0, s{sM0}, {slot*SLOT + 1024}
            s_add_u32 s{sKB}, s{sKB}, 1
            buffer_load_dwordx4 v{DX[1]}, s[{sX}:{sX+3}], s{sXO} offen lds
            """)
        else:
            e(f"""
            s_add_u32 m0, s{sM0}, {slot*SLOT + 16384 + 1024}
            s_cmp_eq_u32 s{sKB}, 9
            buffer_load_dwordx4 v{DW[1]}, s[{sWq}:{sWq+3}], s{sWO} offen lds
            s_cselect_b32 s{sKB}, 0, s{sKB}
            """)
    for st in range(PRE):
        for i in range(4): dma_piece(st, i)
    g.srd(SWS, pWS, WS_USED)
    g.srd(SRA, pDBG, 256)
    e(f"""
    s_or_b32 s{sT}, s2, s{sW}
    s_cmp_lg_u32 s{sT}, 0
    s_cbranch_scc1 L_nononce
    s_memrealtime s[46:47]
    s_waitcnt lgkmcnt(0)
    s_or_b32 s46, s46, 1
    v_mov_b32 v{T0}, s46
    s_mov_b64 exec, 1
    buffer_store_dword v{T0}, v{L16}, s[{SRA}:{SRA+3}], 0 offen sc1
    s_mov_b64 exec, -1
    L_nononce:
    s_and_b32 s{sTW}, s{sW}, 3
    s_lshr_b32 s{sMP}, s{sW}, 2
    v_and_b32 v{T0}, 31, v{LANE}
    v_lshrrev_b32 v{T1}, 5, v{LANE}
    v_bfe_u32 v{T2}, v{LANE}, 1, 3
    v_xor_b32 v{T2}, v{T2}, v{T1}
    v_lshlrev_b32 v{T2}, 4, v{T2}
    v_lshl_add_u32 v{T2}, v{T0}, 7, v{T2}
    s_lshl_b32 s{sT}, s{sTW}, 12
    v_add_u32 v{XA[0]}, s{sT}, v{T2}
    v_xor_b32 v{XA[1]}, 32, v{XA[0]}
    v_xor_b32 v{XA[2]}, 64, v{XA[0]}
    v_xor_b32 v{XA[3]}, 0x60, v{XA[0]}
    v_bfe_u32 v{T2}, v{LANE}, 2, 2
    v_lshl_add_u32 v{T3}, v{T1}, 3, v{T2}
    v_lshlrev_b32 v{T3}, 8, v{T3}
    s_lshl_b32 s{sT}, s{sMP}, 1
    v_xor_b32 v{T2}, s{sT}, v{T2}
    v_lshl_add_u32 v{T3}, v{T2}, 6, v{T3}
    v_add_u32 v{T3}, 16384, v{T3}
    v_and_b32 v{T0}, 3, v{LANE}
    v_bfe_u32 v{T1}, v{LANE}, 4, 1
    v_lshlrev_b32 v{T1}, 5, v{T1}
    v_lshl_add_u32 v{T1}, v{T0}, 3, v{T1}
    v_add_u32 v{WA[0]}, v{T3}, v{T1}
    v_lshlrev_b32 v{T0}, 4, v{T0}
    s_cmp_eq_u32 s{sMP}, 0
    s_cselect_b64 vcc, -1, 0
    v_xor_b32 v{T3}, 64, v{T3}
    v_cndmask_b32 v{T1}, v{T0}, v{T1}, vcc
    v_add_u32 v{WA[1]}, v{T3}, v{T1}
    """)
    e(f"""
    s_lshr_b32 s{sT}, s2, 2
    s_mul_i32 s{sT}, s{sT}, {32*1152}
    s_and_b32 s{sT2}, s2, 3
    s_mul_i32 s{sT3}, s{sT2}, 288
    s_add_u32 s{sT}, s{sT}, s{sT3}
    s_sub_u32 s{sT3}, s{sT}, {3*1152}
    s_movk_i32 s44, -128
    s_movk_i32 s46, 576
    s_cmp_lt_u32 s{sW}, 2
    s_cselect_b32 s44, 512, s44
    s_cselect_b32 s45, s{sT3}, s{sT}
    s_cselect_b32 s46, 630, s46
    v_mov_b32 v{T3}, 0x40000000
    """)
    for n, (add, base, lim) in enumerate((("0", f"s{sT3}", None), ("s44", "s45", "s46"), ("384", f"s{sT}", "576"))):
        e(f"""
        v_add_u32 v{T0}, {add}, v{TID}
        v_mul_u32_u24 v{T1}, 3641, v{T0}
        v_lshrrev_b32 v{T1}, 16, v{T1}
        v_mul_u32_u24 v{T1}, {1152-288}, v{T1}
        v_lshl_add_u32 v{T1}, v{T0}, 4, v{T1}
        """)
        if lim is None:
            e(f"v_add_u32 v{SA[n]}, {base}, v{T1}")
        else:
            e(f"""
            v_cmp_gt_u32 vcc, {lim}, v{T0}
            v_add_u32 v{T1}, {base}, v{T1}
            s_nop 0
            v_cndmask_b32 v{SA[n]}, v{T3}, v{T1}, vcc
            """)
    e(f"""
    s_mul_i32 s{sT2}, s{sT2}, 1152
    v_lshrrev_b32 v{T0}, 2, v{TID}
    v_lshl_add_u32 v{SHA}, v{T0}, 4, s{sT2}
    """)
    SSM_LDS = SLOT
    def ssm_loads():
        g.srd(SRD_, pK, S*D*2)
        e(f"""
        s_lshl_b32 s47, s{sW}, 10
        s_add_u32 m0, s47, {SSM_LDS}
        v_mov_b32 v{VN}, 0
        buffer_load_dwordx4 v{SA[0]}, s[{SRD_}:{SRD_+3}], 0 offen lds
        s_cmp_lt_u32 s{sW}, 2
        s_cselect_b64 s[{SRD_}:{SRD_+1}], s[{pK}:{pK+1}], s[{pV}:{pV+1}]
        s_add_u32 m0, s47, {SSM_LDS + 8192}
        buffer_load_dword v{VN}, v{VN}, s[{SRA}:{SRA+3}], 0 offen sc1
        buffer_load_dwordx4 v{SA[1]}, s[{SRD_}:{SRD_+3}], 0 offen lds
        s_add_u32 m0, s47, {SSM_LDS + 16384}
        s_mov_b64 s[{SRD_}:{SRD_+1}], s[{pV}:{pV+1}]
        buffer_load_dwordx4 v{SA[2]}, s[{SRD_}:{SRD_+3}], 0 offen lds
        """)
        g.srd(SRD_, pSH, D*8)
        e(f"buffer_load_dwordx4 {vr(WR,4)}, v{SHA}, s[{SRD_}:{SRD_+3}], 0 offen")
        vm.extend(["ssm"] * 5)
    def h_loads():
        g.srd(SRD_, pH, D*S*2)
        e(f"""
        s_lshl_b32 s44, s{sTW}, 10
        s_lshl_b32 s45, s{sMP}, 1
        s_add_u32 s45, s45, s44
        s_add_u32 s45, s45, 2
        s_mul_i32 s46, s{sMP}, {HO_IN}
        s_add_u32 s44, s44, s46
        s_add_u32 m0, s44, {H_BASE + 32}
        s_lshl_b32 s46, s2, 13
        s_add_u32 s47, s46, s45
        buffer_load_dwordx4 v{L16}, s[{SRD_}:{SRD_+3}], s47 offen lds
        s_add_u32 m0, s44, {H_BASE + H_SZ + 32}
        s_add_u32 s47, s47, 4096
        buffer_load_dwordx4 v{L16}, s[{SRD_}:{SRD_+3}], s47 offen lds
        s_add_u32 m0, s44, {H_BASE + 2*H_SZ + 32}
        s_lshr_b32 s47, s2, 2
        s_add_u32 s47, s47, 512
        s_lshl_b32 s47, s47, 12
        v_mov_b32 v{SA[1]}, s47
        s_add_u32 s47, s47, s45
        buffer_load_dwordx4 v{L16}, s[{SRD_}:{SRD_+3}], s47 offen lds
        v_lshlrev_b32 v{SA[0]}, 11, v{LANE}
        v_and_b32 v{SA[0]}, 4096, v{SA[0]}
        v_cmp_gt_u32 vcc, 4, v{LANE}
        v_add_u32 v{SA[0]}, s46, v{SA[0]}
        s_nop 0
        v_cndmask_b32 v{SA[0]}, v{SA[1]}, v{SA[0]}, vcc
        buffer_load_dword v{SA[2]}, v{SA[0]}, s[{SRD_}:{SRD_+3}], 0 offen
        """)
        vm.extend(["h"] * 4)
    win = [0]
    def rebase(slot):
        want = (slot // 2) * 2 * SLOT
        if want != win[0]:
            d = want - win[0]
            for r in XA + WA:
                e(f"v_add_u32 v{r}, {d}, v{r}" if d > 0 else f"v_subrev_u32 v{r}, {-d}, v{r}")
            win[0] = want
        return slot * SLOT - want
    def ldfrag(st, ks, buf):
        off = rebase(st % NSLOT)
        e(f"ds_read_b128 {vr(XF[buf],4)}, v{XA[ks]} offset:{off}")
        for t in range(2):
            for h2 in range(2):
                e(f"ds_read_b64_tr_b16 {vr(WF[buf][t]+2*h2,2)}, v{WA[t]} offset:{off + ks*4096 + h2*1024}")
    def sync(st):
        vmwait(st, " lgkmcnt(0)")
        e("s_barrier")
    sync(0)
    g.stamp(1)
    ldfrag(0, 0, 0)
    step = 0
    for st in range(9):
        for ks in range(4):
            buf = step % 2
            last = (st == 8 and ks == 3)
            if st + PRE <= 8 and ks == 3: dma_piece(st + PRE, ks)
            if ks < 3:
                ldfrag(st, ks + 1, buf ^ 1)
                e("s_waitcnt lgkmcnt(5)")
            elif not last:
                sync(st + 1)
                ldfrag(st + 1, 0, buf ^ 1)
            else:
                e("s_waitcnt lgkmcnt(0)")
            for t in range(2):
                c = "0" if step == 0 else vr(ACC[t], 16)
                e(f"v_mfma_f32_32x32x16_bf16 {vr(ACC[t],16)}, {vr(WF[buf][t],4)}, {vr(XF[buf],4)}, {c}")
            if st + PRE <= 8 and ks < 3: dma_piece(st + PRE, ks)
            if st == 7 and ks == 0: ssm_loads()
            if st == 8 and ks == 0: h_loads()
            step += 1
    g.stamp(2)
    EB = 2 * SLOT
    sP, sTy = 48, 49
    VQK, VV, VX4, VX40 = XA[0], XA[1], XA[2], XA[3]
    e(f"""
    s_mul_i32 s{sCT}, s{sCT}, 3
    s_lshl_b32 s{sT}, s{sTW}, 10
    s_add_u32 s{sT}, s{sT}, {EB}
    v_add_u32 v{VQK}, s{sT}, v{L16}
    v_and_b32 v{T3}, 31, v{LANE}
    v_lshrrev_b32 v{T2}, 5, v{LANE}
    s_mul_i32 s{sT}, s{sTW}, 1280
    s_add_u32 s{sT}, s{sT}, {EB}
    v_mad_u32_u24 v{VX40}, v{T3}, 40, s{sT}
    v_lshl_add_u32 v{VV}, v{T2}, 4, v{VX40}
    s_lshl_b32 s{sT}, s{sTW}, 7
    s_add_u32 s{sT}, s{sT}, {EB + 4096}
    v_lshl_add_u32 v{VX4}, v{T3}, 2, s{sT}
    s_mul_i32 s50, s{sMP}, {4*5120}
    """)
    def main_tile(t, lbl):
        e(f"""
        s_lshl_b32 s{sP}, s{sMP}, 1
        s_add_u32 s{sP}, s{sP}, s{sCT}
        s_add_u32 s{sP}, s{sP}, {t}
        s_cmp_ge_u32 s{sP}, 32
        s_cselect_b64 vcc, -1, 0
        s_cmp_ge_u32 s{sP}, 16
        v_cndmask_b32 v{T0}, v{VQK}, v{VV}, vcc
        v_add_u32 v{T0}, s50, v{T0}
        s_cbranch_scc1 L_nq{lbl}
        s_mov_b32 s{sT}, {f2u(QSCALE):#x}
        """)
        for i in range(16): e(f"v_mul_f32 v{ACC[t]+i}, s{sT}, v{ACC[t]+i}")
        e(f"L_nq{lbl}:")
        R = XF[0] + 8 * t
        for i in range(8): e(f"v_cvt_pk_bf16_f32 v{R+i}, v{ACC[t]+2*i}, v{ACC[t]+2*i+1}")
        for hd in range(2):
            for k in range(2):
                e(f"ds_write_b64 v{T0}, {vr(R+4*hd+2*k,2)} offset:{(2*t+hd)*5120 + 8*k}")
    main_tile(0, "a")
    e(f"s_cmp_eq_u32 s{sMP}, 0\ns_cbranch_scc0 L_extras")
    main_tile(1, "b")
    e("s_branch L_epi2\nL_extras:")
    A = ACC[1]; d0, d1 = 48, 50
    e(f"v_mov_b32 v{d0+1}, 0x3f80\nv_mov_b32 v{d1+1}, 0x3f80")
    for j in range(3):
        r0 = A + 4 * (j // 2)
        e(f"""
        s_add_u32 s{sP}, s{sCT}, {j}
        s_mov_b64 exec, -1
        s_mov_b32 exec_{'hi' if j % 2 == 0 else 'lo'}, 0
        s_cmp_lt_u32 s{sP}, 16
        s_cselect_b32 s{sT}, {f2u(QSCALE):#x}, 1.0
        v_mul_f32 v{r0}, s{sT}, v{r0}
        v_mul_f32 v{r0+1}, s{sT}, v{r0+1}
        v_mul_f32 v{r0+2}, s{sT}, v{r0+2}
        v_mul_f32 v{r0+3}, s{sT}, v{r0+3}
        v_cvt_pk_bf16_f32 v{d0}, v{r0}, v{r0+1}
        v_cvt_pk_bf16_f32 v{d1}, v{r0+2}, v{r0+3}
        s_cmp_ge_u32 s{sP}, 32
        s_cbranch_scc1 L_xv{j}
        ds_write_b32 v{VX4}, v{d0} offset:{2*j*5120}
        ds_write_b32 v{VX4}, v{d1} offset:{(2*j+1)*5120}
        s_branch L_xn{j}
        L_xv{j}:
        ds_write_b64 v{VX40}, {vr(d0,2)} offset:{2*j*5120 + 32}
        ds_write_b64 v{VX40}, {vr(d1,2)} offset:{(2*j+1)*5120 + 32}
        L_xn{j}:
        """)
    e("s_mov_b64 exec, -1\nL_epi2:")
    vmwait("ssm", " lgkmcnt(0)")
    e("s_barrier")
    g.stamp(3)
    e(f"""
    s_cmp_ge_u32 s{sW}, 6
    s_cbranch_scc1 L_nocopy
    s_mul_i32 s{sT}, s{sW}, 5120
    s_add_u32 s{sT}, s{sT}, {EB}
    v_add_u32 v{T0}, s{sT}, v{L16}
    """)
    for i in range(5): e(f"ds_read_b128 {vr(EP+4*i,4)}, v{T0} offset:{1024*i}")
    e(f"""
    s_lshl_b32 s{sP}, s{sCT}, 1
    s_add_u32 s{sP}, s{sP}, s{sW}
    s_lshr_b32 s{sTy}, s{sP}, 5
    s_and_b32 s{sP}, s{sP}, 31
    s_lshl_b32 s{sP}, s{sP}, 4
    s_add_u32 s{sP}, s{sP}, s{sTT}
    s_mul_i32 s{sT}, s{sP}, {QI_BLK}
    s_mul_i32 s{sT2}, s{sP}, {KV_CHUNK}
    s_add_u32 s{sT2}, s{sT2}, {KV_OFF}
    s_cmp_eq_u32 s{sTy}, 0
    s_cselect_b32 s{sT}, s{sT}, s{sT2}
    s_cmp_eq_u32 s{sTy}, 2
    s_cselect_b32 s{sT2}, {V_IN}, 0
    s_cselect_b32 s{sT3}, -1, 0
    s_add_u32 s{sT}, s{sT}, s{sT2}
    s_add_u32 s{sT2}, s{sT}, 4096
    """)
    for i in range(4):
        e(f"s_waitcnt lgkmcnt({4-i})")
        e(f"buffer_store_dwordx4 {vr(EP+4*i,4)}, v{L16}, s[{SWS}:{SWS+3}], s{sT} offen offset:{1024*i} sc1")
    e(f"""
    s_mov_b32 exec_hi, s{sT3}
    s_waitcnt lgkmcnt(0)
    buffer_store_dwordx4 {vr(EP+16,4)}, v{L16}, s[{SWS}:{SWS+3}], s{sT2} offen sc1
    s_mov_b32 exec_hi, -1
    L_nocopy:
    """)
    e(f"""
    s_cmp_ge_u32 s{sW}, 5
    s_cbranch_scc1 L_nossm
    v_lshrrev_b32 v{T0}, 2, v{TID}
    v_and_b32 v{T1}, 3, v{TID}
    v_sub_u32 v{T2}, 3, v{T1}
    v_mul_u32_u24 v{T2}, {8*288}, v{T2}
    v_lshl_add_u32 v{T2}, v{T0}, 2, v{T2}
    v_add_u32 v{T2}, {SSM_LDS}, v{T2}
    """)
    for j in range(11): e(f"ds_read_b32 v{KR+j}, v{T2} offset:{j*288}")
    for j in range(8): e(f"ds_read_b32 v{VRg+j}, v{T2} offset:{10240+j*288}")
    e(f"""
    v_lshlrev_b32 v{T0}, 7, v{T0}
    v_lshl_add_u32 v{T0}, v{T1}, 4, v{T0}
    v_cmp_gt_u32 vcc, 288, v{TID}
    v_mov_b32 v{T3}, 0x40000000
    s_mul_i32 s{sT}, s2, 9216
    s_add_u32 s{sT}, s{sT}, {UT_OFF}
    v_cndmask_b32 v{T0}, v{T3}, v{T0}, vcc
    """)
    for j in range(4):
        for ch in range(2):
            src = WR + 2*ch + j//2
            e(f"v_lshlrev_b32 v{WFp+2*j+ch}, 16, v{src}" if j % 2 == 0 else f"v_and_b32 v{WFp+2*j+ch}, 0xffff0000, v{src}")
    e("s_waitcnt lgkmcnt(8)")
    for j in range(11):
        e(f"v_lshlrev_b32 v{KF+2*j}, 16, v{KR+j}\nv_and_b32 v{KF+2*j+1}, 0xffff0000, v{KR+j}")
    e("s_waitcnt lgkmcnt(0)")
    for t in range(8):
        u = vr(U+2*t, 2)
        e(f"""
        v_pk_mul_f32 {u}, {vr(KF+2*t,2)}, {vr(WFp+6,2)}
        v_lshlrev_b32 v{VT+2*(t%2)}, 16, v{VRg+t}
        v_pk_fma_f32 {u}, {vr(KF+2*(t+1),2)}, {vr(WFp+4,2)}, {u}
        v_and_b32 v{VT+2*(t%2)+1}, 0xffff0000, v{VRg+t}
        v_pk_fma_f32 {u}, {vr(KF+2*(t+2),2)}, {vr(WFp+2,2)}, {u}
        v_pk_fma_f32 {u}, {vr(KF+2*(t+3),2)}, {vr(WFp+0,2)}, {u}
        v_pk_mul_f32 {u}, {u}, {vr(VT+2*(t%2),2)}
        """)
    for ch in range(2):
        for j in range(4):
            e(f"v_cvt_pk_bf16_f32 v{OUT+4*ch+j}, v{U+2*(7-2*j)+ch}, v{U+2*(6-2*j)+ch}")
    e(f"""
    buffer_store_dwordx4 {vr(OUT,4)}, v{T0}, s[{SWS}:{SWS+3}], s{sT} offen sc1
    buffer_store_dwordx4 {vr(OUT+4,4)}, v{T0}, s[{SWS}:{SWS+3}], s{sT} offen offset:64 sc1
    s_branch L_p1done
    L_nossm:
    """)
    e(f"""
    v_mov_b32 v{OUT}, 0
    v_mov_b32 v{OUT+1}, 0
    v_mov_b32 v{OUT+2}, 0
    v_mov_b32 v{OUT+3}, 0
    s_cmp_eq_u32 s{sW}, 7
    s_cbranch_scc1 L_hfix
    v_and_b32 v{T0}, {31*16}, v{L16}
    v_add_u32 v{T0}, {UR_BASE + 4096}, v{T0}
    ds_write_b128 v{T0}, {vr(OUT,4)}
    ds_write_b128 v{T0}, {vr(OUT,4)} offset:{UR_SZ}
    ds_write_b128 v{T0}, {vr(OUT,4)} offset:{2*UR_SZ}
    s_branch L_p1done
    L_hfix:
    v_mul_u32_u24 v{T0}, {HO_IN}, v{LANE}
    v_add_u32 v{T0}, {H_BASE}, v{T0}
    v_and_b32 v{T1}, 1, v{LANE}
    v_cmp_eq_u32 vcc, 0, v{T1}
    s_mov_b64 exec, 63
    ds_write_b128 v{T0}, {vr(OUT,4)}
    s_waitcnt vmcnt(0)
    v_lshlrev_b32 v{T1}, 16, v{SA[2]}
    v_cndmask_b32 v{OUT+3}, v{SA[2]}, v{T1}, vcc
    ds_write_b128 v{T0}, {vr(OUT,4)} offset:16
    s_mov_b64 exec, -1
    L_p1done:
    s_waitcnt vmcnt(0) lgkmcnt(0)
    s_barrier
    """)
    g.stamp(4)
    e(f"""
    s_cmp_lg_u32 s{sW}, 0
    s_cbranch_scc1 L_s1wait
    s_mov_b32 s30, 0
    L_nz:
    v_readfirstlane_b32 s{sNONCE}, v{VN}
    s_add_u32 s30, s30, 1
    s_cmp_gt_u32 s30, 0x8000
    s_cbranch_scc1 L_nzd
    s_cmp_lg_u32 s{sNONCE}, 0
    s_cbranch_scc1 L_nzd
    v_mov_b32 v{VN}, 0
    s_nop 0
    buffer_load_dword v{VN}, v{VN}, s[{SRA}:{SRA+3}], 0 offen sc1
    s_waitcnt vmcnt(0)
    s_branch L_nz
    L_nzd:
    """)
    g.signal(0)
    g.poll("L_s1", 0, 256, None, 0)
    e("L_s1wait:\ns_barrier")
    g.stamp(5)

aQ, aQX = 80, 108
sHEAD, sQT, sKVO = 31, 32, 51

def phase2_conv(g):
    e, X = g.e, g.X
    ACC = 128; AF = [144, 144 + 64]; BFo = 32
    AF = [0, 144]
    AA, BA, T0, T1, T2 = 120, 121, 122, 123, 124
    sT, sT2, sL, sHL, sC = 37, 38, 39, 40, 41
    e(f"""
    s_and_b32 s{sHEAD}, s2, 7
    s_lshl_b32 s{sHEAD}, s{sHEAD}, 2
    s_bfe_u32 s{sT}, s2, 0x20003
    s_add_u32 s{sHEAD}, s{sHEAD}, s{sT}
    s_lshr_b32 s{sQT}, s2, 5
    s_lshl_b32 s{sQT}, s{sQT}, 3
    s_add_u32 s{sQT}, s{sQT}, s{sW}
    """)
    e(f"""
    v_lshrrev_b32 v{T0}, 2, v{LANE}
    s_and_b32 s{sT}, s{sW}, 3
    s_lshl_b32 s{sT2}, s{sT}, 4
    s_sub_u32 s{sT2}, 63, s{sT2}
    v_sub_u32 v{T0}, s{sT2}, v{T0}
    v_mul_u32_u24 v{T0}, 36864, v{T0}
    v_and_b32 v{T1}, 48, v{L16}
    v_add_u32 v{T0}, v{T0}, v{T1}
    s_lshr_b32 s{sT2}, s{sW}, 2
    s_mul_i32 s{sL}, s{sT2}, {UR_SZ}
    s_lshl_b32 s{sT}, s{sT}, 10
    s_add_u32 s{sL}, s{sL}, s{sT}
    s_add_u32 m0, s{sL}, {UR_BASE}
    s_lshl_b32 s{sC}, s2, 1
    s_add_u32 s{sC}, s{sC}, s{sT2}
    s_lshl_b32 s{sC}, s{sC}, 6
    s_add_u32 s{sC}, s{sC}, {UT_OFF}
    buffer_load_dwordx4 v{T0}, s[{SWS}:{SWS+3}], s{sC} offen sc1 lds
    s_cmp_ge_u32 s{sW}, 4
    s_cbranch_scc1 L_nourc
    s_add_u32 m0, s{sT}, {UR_BASE + 2*UR_SZ}
    s_lshr_b32 s{sC}, s2, 2
    s_lshl_b32 s{sC}, s{sC}, 6
    s_add_u32 s{sC}, s{sC}, {UT_OFF + 512*64}
    buffer_load_dwordx4 v{T0}, s[{SWS}:{SWS+3}], s{sC} offen sc1 lds
    L_nourc:
    """)
    e(f"""
    s_lshl_b32 s{sT}, s2, 2
    s_load_dword s52, s[{pD}:{pD+1}], s{sT}
    s_lshr_b32 s{sT}, s2, 3
    s_lshl_b32 s{sT}, s{sT}, 2
    s_add_u32 s{sT}, s{sT}, 1024
    s_load_dword s53, s[{pD}:{pD+1}], s{sT}
    """)
    e(f"""
    s_lshl_b32 s{sT}, s{sHEAD}, 4
    s_lshr_b32 s{sT2}, s{sQT}, 2
    s_add_u32 s{sT}, s{sT}, s{sT2}
    s_mul_i32 s{sT}, s{sT}, {QI_BLK}
    s_and_b32 s{sT2}, s{sQT}, 3
    s_lshl_b32 s42, s{sT2}, 10
    s_add_u32 s42, s42, s{sT}
    s_lshl_b32 s43, s{sT2}, 7
    s_add_u32 s43, s43, s{sT}
    s_add_u32 s43, s43, 4096
    v_and_b32 v{T1}, 31, v{LANE}
    v_lshlrev_b32 v{T1}, 2, v{T1}
    buffer_load_dwordx4 {vr(aQ,4)}, v{L16}, s[{SWS}:{SWS+3}], s42 offen sc1
    buffer_load_dword v{aQX}, v{T1}, s[{SWS}:{SWS+3}], s43 offen sc1
    s_mul_i32 s{sKVO}, s{sHEAD}, {KV_HEAD}
    s_add_u32 s{sKVO}, s{sKVO}, {KV_OFF}
    """)
    e(f"""
    v_and_b32 v{T0}, 15, v{LANE}
    v_lshrrev_b32 v{T1}, 4, v{LANE}
    v_and_b32 v{T2}, 14, v{T0}
    v_lshlrev_b32 v{T2}, 1, v{T2}
    v_lshl_add_u32 v{AA}, v{T1}, 4, v{T2}
    v_and_b32 v{T2}, 1, v{T0}
    v_mad_u32_u24 v{AA}, v{T2}, s54, v{AA}
    v_sub_u32 v{T2}, 15, v{T0}
    v_lshlrev_b32 v{T2}, 5, v{T2}
    v_lshl_add_u32 v{BA}, v{T1}, 4, v{T2}
    """.replace("v_mad_u32_u24", f"s_movk_i32 s54, {HO_IN}\n    v_mad_u32_u24"))
    for i in range(16): e(f"v_mov_b32 v{ACC+i}, 0")
    e(f"""
    s_cmp_ge_u32 s{sW}, 4
    s_cbranch_scc1 L_convC
    s_lshr_b32 s{sT}, s{sW}, 1
    s_mul_i32 s{sHL}, s{sT}, {H_SZ}
    s_add_u32 s{sHL}, s{sHL}, {H_BASE}
    s_mul_i32 s{sL}, s{sT}, {UR_SZ}
    s_add_u32 s{sL}, s{sL}, {UR_BASE}
    v_add_u32 v{AA}, s{sHL}, v{AA}
    v_add_u32 v{BA}, s{sL}, v{BA}
    s_waitcnt vmcnt(2) lgkmcnt(0)
    s_barrier
    """)
    g.stamp(6)
    e(f"""
    s_bitcmp1_b32 s{sW}, 0
    s_cbranch_scc1 L_set1
    """)
    AH = [125, 126, 127]
    def loads(buf, nf, top, roff):
        out = []
        for m in range(nf):
            base = AA if m < 2 else AH[m // 2 - 1]
            o = ((m % 2) * 512 + roff) // 4
            out.append(f"ds_read2_b32 {vr(AF[buf]+4*m,2)}, v{base} offset0:{o} offset1:{o+1}")
            out.append(f"ds_read2_b32 {vr(AF[buf]+4*m+2,2)}, v{base} offset0:{o+2} offset1:{o+3}")
            ep = top - m
            out.append(f"ds_read_b128 {vr(AF[buf]+BFo+4*ep,4)}, v{BA} offset:{(7-ep)*512 + roff}")
        return out
    def epi_tile(acc, ur, sD, dst):
        e(f"""
        v_and_b32 v{dst+2}, 0xffff0000, v{ur+1}
        v_lshlrev_b32 v{dst+3}, 16, v{ur+1}
        v_fmac_f32 v{acc}, s{sD}, v{dst+2}
        v_fmac_f32 v{acc+1}, s{sD}, v{dst+3}
        v_and_b32 v{dst+2}, 0xffff0000, v{ur}
        v_lshlrev_b32 v{dst+3}, 16, v{ur}
        v_fmac_f32 v{acc+2}, s{sD}, v{dst+2}
        v_fmac_f32 v{acc+3}, s{sD}, v{dst+3}
        v_cvt_pk_bf16_f32 v{dst}, v{acc}, v{acc+1}
        v_cvt_pk_bf16_f32 v{dst+1}, v{acc+2}, v{acc+3}
        """)
    g.epi_tile = epi_tile
    for si, tiles in enumerate(([7, 6, 1, 0], [5, 4, 3, 2])):
        nf = max(tiles) + 1; top = tiles[0]
        if si: e("L_set1:")
        for k in range(3): e(f"v_add_u32 v{AH[k]}, {1024*(k+1)}, v{AA}")
        mf = []
        per = [[(ti, mm, n - mm) for mm in range(n + 1)] for ti, n in enumerate(tiles)]
        while any(per):
            for p in per:
                if p: mf.append(p.pop(0))
        for l in loads(0, nf, top, 0): e(l)
        for r in range(8):
            buf = r % 2
            nxt = loads(buf ^ 1, nf, top, 64 * (r + 1)) if r < 7 else []
            e("s_waitcnt lgkmcnt(0)")
            for k, (ti, mm, ep) in enumerate(mf):
                e(f"v_mfma_f32_16x16x32_bf16 {vr(ACC+4*ti,4)}, {vr(AF[buf]+4*mm,4)}, {vr(AF[buf]+BFo+4*ep,4)}, {vr(ACC+4*ti,4)}")
                for _ in range(2):
                    if nxt: e(nxt.pop(0))
            assert not nxt
        e(f"""
        v_and_b32 v{T0}, 15, v{LANE}
        v_lshrrev_b32 v{T1}, 4, v{LANE}
        v_lshlrev_b32 v{T2}, 5, v{T0}
        v_lshl_add_u32 v{T2}, v{T1}, 3, v{T2}
        v_sub_u32 v{AA}, 504, v{T2}
        v_add_u32 v{AA}, s{sL}, v{AA}
        """)
        for ti, n in enumerate(tiles):
            e(f"ds_read_b64 {vr(2*ti,2)}, v{AA} offset:{3584-512*n}")
        e(f"""
        v_lshrrev_b32 v{T0}, 1, v{T0}
        v_mul_u32_u24 v{T0}, 36864, v{T0}
        v_and_b32 v{T2}, 63, v{T2}
        v_add_u32 v{T0}, v{T0}, v{T2}
        s_lshl_b32 s{sT}, s52, 16
        s_and_b32 s{sT2}, s52, 0xffff0000
        s_bitcmp1_b32 s{sW}, 1
        s_cselect_b32 s{sT}, s{sT2}, s{sT}
        s_cselect_b32 s{sT2}, 64, 0
        s_lshl_b32 s{sC}, s2, 7
        s_add_u32 s{sC}, s{sC}, s{sT2}
        s_waitcnt lgkmcnt(0)
        """)
        for ti, n in enumerate(tiles):
            epi_tile(ACC + 4*ti, 2*ti, sT, 8 + 4*ti)
            e(f"""
            s_add_u32 s{sT2}, s{sC}, {YT_OFF + n*8*36864}
            buffer_store_dwordx2 {vr(8+4*ti,2)}, v{T0}, s[{SWS}:{SWS+3}], s{sT2} offen sc1
            """)
        e("s_branch L_convdone")
    e(f"""
    L_convC:
    s_and_b32 s{sT}, s{sW}, 3
    s_lshl_b32 s44, s{sT}, 12
    s_add_u32 s45, s44, s{sKVO}
    s_lshl_b32 s{sT}, s{sT}, 7
    s_add_u32 s{sT2}, s{sT}, {H_BASE + 2*H_SZ}
    v_add_u32 v{AA}, s{sT2}, v{AA}
    s_add_u32 s{sT2}, s{sT}, {UR_BASE + 2*UR_SZ}
    s_mov_b32 m0, s44
    v_add_u32 v{BA}, s{sT2}, v{BA}
    """)
    def kv4(last=False):
        for i in range(4):
            e(f"buffer_load_dwordx4 v{L16}, s[{SWS}:{SWS+3}], s45 offen offset:{1024*i} sc1 lds")
        if not last:
            e(f"s_add_u32 s44, s44, 16384\ns_mov_b32 m0, s44\ns_add_u32 s45, s45, 16384")
    kv4()
    e("s_waitcnt vmcnt(6) lgkmcnt(0)\ns_barrier")
    for k in range(3): e(f"v_add_u32 v{AH[k]}, {1024*(k+1)}, v{AA}")
    e(f"""
    s_and_b32 s{sT}, s2, 3
    s_cmp_eq_u32 s{sT}, 1
    s_cbranch_scc1 L_cq1
    s_cmp_eq_u32 s{sT}, 2
    s_cbranch_scc1 L_cq2
    s_cmp_eq_u32 s{sT}, 3
    s_cbranch_scc1 L_cq3
    """)
    for qn in range(4):
        if qn: e(f"L_cq{qn}:")
        tiles = [7 - qn, qn]; nf = 8 - qn
        e(f"s_mov_b32 s46, 0\nL_cql{qn}:")
        for l in loads(0, nf, tiles[0], 0): e(l)
        kv4();
        e("s_waitcnt lgkmcnt(0)")
        per = [[(ti, mm, n - mm) for mm in range(n + 1)] for ti, n in enumerate(tiles)]
        while any(per):
            for p in per:
                if p:
                    ti, mm, ep = p.pop(0)
                    e(f"v_mfma_f32_16x16x32_bf16 {vr(ACC+4*ti,4)}, {vr(AF[0]+4*mm,4)}, {vr(AF[0]+BFo+4*ep,4)}, {vr(ACC+4*ti,4)}")
        for r in (AA, BA, *AH): e(f"v_add_u32 v{r}, 64, v{r}")
        e(f"""
        s_add_u32 s46, s46, 1
        s_cmp_lt_u32 s46, 2
        s_cbranch_scc1 L_cql{qn}
        """)
        if qn < 3: e("s_branch L_cqd")
    e("L_cqd:")
    e(f"""
    s_and_b32 s{sT}, s{sW}, 3
    s_lshl_b32 s{sT}, s{sT}, 11
    s_add_u32 s{sT}, s{sT}, {CP_BASE}
    v_add_u32 v{T0}, s{sT}, v{L16}
    s_and_b32 s{sT}, s2, 3
    s_sub_u32 s{sT2}, 7, s{sT}
    s_bitcmp1_b32 s{sW}, 0
    s_cselect_b32 s55, s{sT}, s{sT2}
    s_lshl_b32 s{sT}, s55, 9
    s_sub_u32 s{sT}, {UR_BASE + 2*UR_SZ + 4088}, s{sT}
    ds_write_b128 v{T0}, {vr(ACC,4)}
    ds_write_b128 v{T0}, {vr(ACC+4,4)} offset:1024
    v_and_b32 v{T0}, 15, v{LANE}
    v_lshrrev_b32 v{T1}, 4, v{LANE}
    v_lshlrev_b32 v{T2}, 5, v{T0}
    v_lshl_add_u32 v{T2}, v{T1}, 3, v{T2}
    v_sub_u32 v{T1}, s{sT}, v{T2}
    ds_read_b64 {vr(ACC+8,2)}, v{T1}
    """)
    for k in range(4): kv4()
    e(f"""
    s_cmp_lg_u32 s{sW}, 4
    s_cbranch_scc1 L_convdone
    buffer_load_dwordx4 v{L16}, s[{SWS}:{SWS+3}], s45 offen sc1 lds
    buffer_load_dwordx4 v{L16}, s[{SWS}:{SWS+3}], s45 offen offset:1024 sc1 lds
    L_convdone:
    """)
    g.stamp(7)
    e(f"""
    s_cmp_lt_u32 s{sW}, 4
    s_cbranch_scc1 L_cw1
    s_waitcnt vmcnt(0)
    L_cw1:
    s_waitcnt vmcnt(4) lgkmcnt(0)
    s_barrier
    """)
    g.stamp(8)
    e(f"""
    s_mul_i32 s44, s{sW}, 5120
    s_add_u32 s44, s44, {UR_BASE}
    s_mov_b32 m0, s44
    s_add_u32 s45, s44, s{sKVO}
    """)
    for i in range(3):
        e(f"buffer_load_dwordx4 v{L16}, s[{SWS}:{SWS+3}], s45 offen offset:{1024*i} sc1 lds")
    e(f"""
    s_cmp_eq_u32 s{sW}, 7
    s_cbranch_scc1 L_kvd
    buffer_load_dwordx4 v{L16}, s[{SWS}:{SWS+3}], s45 offen offset:3072 sc1 lds
    s_add_u32 m0, s44, 4096
    s_add_u32 s45, s45, 4096
    buffer_load_dwordx4 v{L16}, s[{SWS}:{SWS+3}], s45 offen sc1 lds
    L_kvd:
    s_and_b32 s{sT}, s{sW}, 6
    s_cmp_lg_u32 s{sT}, 4
    s_cbranch_scc1 L_cfin
    s_and_b32 s{sT}, s{sW}, 1
    s_lshl_b32 s{sT}, s{sT}, 10
    s_add_u32 s{sT}, s{sT}, {CP_BASE}
    v_add_u32 v{T1}, s{sT}, v{L16}
    ds_read_b128 {vr(0,4)}, v{T1}
    ds_read_b128 {vr(4,4)}, v{T1} offset:2048
    ds_read_b128 {vr(8,4)}, v{T1} offset:4096
    ds_read_b128 {vr(12,4)}, v{T1} offset:6144
    v_lshrrev_b32 v{T0}, 1, v{T0}
    v_mul_u32_u24 v{T0}, 36864, v{T0}
    v_and_b32 v{T2}, 63, v{T2}
    v_add_u32 v{T0}, v{T0}, v{T2}
    s_lshl_b32 s{sT}, s53, 16
    s_and_b32 s{sT2}, s53, 0xffff0000
    s_bitcmp1_b32 s2, 2
    s_cselect_b32 s{sT}, s{sT2}, s{sT}
    s_lshr_b32 s{sC}, s2, 2
    s_lshl_b32 s{sC}, s{sC}, 6
    s_mul_i32 s{sT2}, s55, {8*36864}
    s_add_u32 s{sC}, s{sC}, s{sT2}
    s_add_u32 s{sC}, s{sC}, {YT_OFF + 512*64}
    s_waitcnt lgkmcnt(0)
    """)
    for i in range(4):
        e(f"v_add_f32 v{i}, v{i}, v{4+i}\nv_add_f32 v{8+i}, v{8+i}, v{12+i}")
    for i in range(4): e(f"v_add_f32 v{i}, v{i}, v{8+i}")
    epi_tile(0, ACC + 8, sT, 16)
    e(f"""
    buffer_store_dwordx2 {vr(16,2)}, v{T0}, s[{SWS}:{SWS+3}], s{sC} offen sc1
    L_cfin:
    """)

def phase2_attn(g):
    e, X = g.e, g.X
    SA, SB, O, Q = 0, 32, 64, aQ
    K0, K1 = 84, 88
    V = [92, 96, 100, 104]
    QX, KX, IDX = aQX, 110, 112
    AK, AV, AKX = 113, 114, 115
    T0, T1, T2 = 117, 118, 119
    PF = 120
    sIT = 37
    e(f"""
    v_lshrrev_b32 v{T0}, 5, v{LANE}
    v_bfe_u32 v{T1}, v{LANE}, 2, 2
    v_lshl_add_u32 v{T0}, v{T0}, 3, v{T1}
    v_mul_u32_u24 v{AV}, 40, v{T0}
    v_and_b32 v{T0}, 1, v{LANE}
    v_lshlrev_b32 v{T0}, 4, v{T0}
    v_bfe_u32 v{T1}, v{LANE}, 1, 1
    v_lshl_add_u32 v{T0}, v{T1}, 3, v{T0}
    v_and_b32 v{T1}, 16, v{LANE}
    v_cmp_eq_u32 vcc, 0, v{T1}
    v_lshlrev_b32 v{AKX}, 2, v{LANE}
    v_mov_b32 v{AK}, v{L16}
    v_cndmask_b32 v{T0}, 32, v{T0}, vcc
    v_add_u32 v{AV}, v{AV}, v{T0}
    v_and_b32 v{T0}, 19, v{LANE}
    v_cmp_lt_u32 vcc, 16, v{T0}
    v_mov_b32 v{T1}, 0x100000
    v_mov_b32 v{KX+1}, 0x3f803f80
    v_cndmask_b32 v{AV}, v{AV}, v{T1}, vcc
    v_mov_b32 v{QX+1}, 0
    v_mov_b32 v{IDX}, 0xdddddddd
    """)
    def koff(b, t): return (b // 2) * KV_CHUNK + (b % 2) * 2048 + t * 1024
    def kxoff(b): return (b // 2) * KV_CHUNK + KX_IN + (b % 2) * 256
    def voff(b, gq, half): return (b // 2) * KV_CHUNK + V_IN + ((b % 2) * 64 + gq * 16 + half * 4) * 40
    def ldK(reg, b, t): e(f"ds_read_b128 {vr(reg,4)}, v{AK} offset:{koff(b,t)}")
    def ldKX(b): e(f"ds_read_b32 v{KX}, v{AKX} offset:{kxoff(b)}")
    def ldV(gq, b):
        e(f"ds_read_b64_tr_b16 {vr(V[gq],2)}, v{AV} offset:{voff(b,gq,0)}")
        e(f"ds_read_b64_tr_b16 {vr(V[gq]+2,2)}, v{AV} offset:{voff(b,gq,1)}")
    def m2b(T): e(f"v_mfma_f32_32x32x4_2b_bf16 {vr(T,32)}, {vr(KX,2)}, {vr(QX,2)}, 0")
    def mx16(T, Kr): e(f"v_mfma_f32_32x32x16_bf16 {vr(T,16)}, {vr(Kr,4)}, {vr(Q,4)}, {vr(T,16)}")
    def msm(gq, P): e(f"v_smfmac_f32_32x32x32_bf16 {vr(O,16)}, {vr(V[gq],4)}, {vr(P+8*gq,8)}, v{IDX}")
    def qk_simple(T):
        m2b(T)
        e("s_nop 15\ns_nop 1")
        mx16(T, K0); mx16(T + 16, K1)
        e("s_nop 11")
    ldKX(0); ldK(K0, 0, 0); ldK(K1, 0, 1)
    ldV(0, 0); ldV(1, 0); ldV(2, 0)
    e("s_waitcnt lgkmcnt(8)")
    m2b(SA)
    for i in range(16): e(f"v_mov_b32 v{O+i}, 0")
    e(f"v_mov_b32 v{V[3]}, 0\nv_mov_b32 v{V[3]+1}, 0\ns_waitcnt lgkmcnt(6)")
    mx16(SA, K0); mx16(SA + 16, K1)
    for i in range(8): e(f"v_mov_b32 v{SB+24+i}, 0")
    e(f"v_mov_b32 v{V[3]+2}, 0\nv_mov_b32 v{V[3]+3}, 0\ns_nop 1")
    e(f"v_max3_f32 v{T0}, v{SA}, v{SA+1}, v{SA+2}")
    e(f"v_max3_f32 v{T1}, v{SA+3}, v{SA+4}, v{SA+5}")
    for i in range(6, 30, 4):
        e(f"v_max3_f32 v{T0}, v{T0}, v{SA+i}, v{SA+i+1}")
        e(f"v_max3_f32 v{T1}, v{T1}, v{SA+i+2}, v{SA+i+3}")
    e(f"v_max3_f32 v{T0}, v{T0}, v{SA+30}, v{SA+31}")
    e(f"""
    v_max_f32 v{T0}, v{T0}, v{T1}
    v_mov_b32 v{T1}, v{T0}
    s_nop 1
    v_permlane32_swap_b32 v{T0}, v{T1}
    v_max_f32 v{T0}, v{T0}, v{T1}
    v_cvt_pk_bf16_f32 v{T1}, -v{T0}, -v{T0}
    v_and_b32 v{T2}, 0xffff0000, v{T1}
    v_sub_f32 v{T2}, -v{T0}, v{T2}
    v_cvt_pk_bf16_f32 v{QX+1}, -v{T0}, v{T2}
    s_nop 1
    """)
    qk_simple(SA)
    ldKX(1); ldK(K0, 1, 0); ldK(K1, 1, 1)
    e("s_waitcnt lgkmcnt(0)")
    g.stamp(9)
    def iteration(b, Sx, Tx):
        ev = {
            2: lambda: (e("s_waitcnt lgkmcnt(6)"), msm(3, Tx), ldV(3, b)),
            6: lambda: (m2b(Tx), ldKX(b + 2)),
            14: lambda: (msm(0, Sx), ldV(0, b + 1)),
            18: lambda: (e("s_waitcnt lgkmcnt(5)"), msm(1, Sx), ldV(1, b + 1)),
            22: lambda: (mx16(Tx, K0), ldK(K0, b + 2, 0)),
            26: lambda: (msm(2, Sx), ldV(2, b + 1)),
            30: lambda: (mx16(Tx + 16, K1), ldK(K1, b + 2, 1)),
        }
        for i in range(32):
            if i in ev: ev[i]()
            e(f"v_exp_f32 v{Sx+i}, v{Sx+i}")
    UNR = 4
    e(f"s_mov_b32 s{sIT}, 0\n.p2align 3\nL_aloop:")
    for c in range(UNR):
        iteration(2 * c, SA, SB)
        iteration(2 * c + 1, SB, SA)
    for r in (AK, AV, AKX): e(f"v_add_u32 v{r}, {UNR*KV_CHUNK}, v{r}")
    e(f"""
    s_add_u32 s{sIT}, s{sIT}, 1
    s_cmp_eq_u32 s{sIT}, 1
    s_cbranch_scc1 L_amid
    s_cmp_lt_u32 s{sIT}, {16 // UNR}
    s_cbranch_scc1 L_aloop
    s_waitcnt lgkmcnt(0)
    """)
    msm(3, SB)
    g.stamp(10)
    e("s_nop 11")
    e(f"""
    v_mov_b32 v{T0}, v{O+10}
    v_mov_b32 v{T1}, v{O+10}
    v_add_f32 v{T2}, |v{O}|, |v{O+1}|
    v_add_f32 v{SA}, |v{O+2}|, |v{O+3}|
    v_permlane32_swap_b32 v{T0}, v{T1}
    v_add_f32 v{SA+1}, |v{O+4}|, |v{O+5}|
    v_add_f32 v{SA+2}, |v{O+6}|, |v{O+7}|
    v_add_f32 v{SA+3}, |v{O+8}|, |v{O+9}|
    v_add_f32 v{T2}, v{T2}, v{SA}
    v_add_f32 v{SA+1}, v{SA+1}, v{SA+2}
    v_add_f32 v{T2}, v{T2}, v{SA+1}
    v_mov_b32 v{SA+4}, 0x7f7fffff
    v_cmp_nge_f32 vcc, 0x4e800000, v{T0}
    v_cmp_nle_f32 s[40:41], v{T2}, v{SA+4}
    v_cmp_nle_f32 s[42:43], v{SA+3}, v{SA+4}
    s_or_b64 s[40:41], vcc, s[40:41]
    v_cmp_nle_f32 vcc, 0x30800000, v{T0}
    s_or_b32 s40, s40, s42
    s_or_b64 s[40:41], vcc, s[40:41]
    s_cbranch_scc1 L_slow
    L_afin:
    v_rcp_f32 v{T0}, v{T0}
    s_mul_i32 s39, s{sQT}, {36*1024}
    s_lshl_b32 s40, s{sHEAD}, 10
    s_add_u32 s39, s39, {O_OFF}
    s_add_u32 s40, s40, s39
    """)
    for i in range(10): e(f"v_mul_f32 v{O+i}, v{O+i}, v{T0}")
    for i in range(5): e(f"v_cvt_pk_bf16_f32 v{SA+i}, v{O+2*i}, v{O+2*i+1}")
    e(f"""
    buffer_store_dwordx4 {vr(SA,4)}, v{L16}, s[{SWS}:{SWS+3}], s40 offen sc1
    s_lshl_b32 s41, s{sHEAD}, 7
    s_add_u32 s41, s41, s39
    s_add_u32 s41, s41, {32*1024}
    v_lshlrev_b32 v{T1}, 2, v{LANE}
    s_mov_b32 exec_hi, 0
    buffer_store_dword v{SA+4}, v{T1}, s[{SWS}:{SWS+3}], s41 offen sc1
    s_mov_b32 exec_hi, -1
    s_waitcnt vmcnt(0)
    s_barrier
    """)
    g.stamp(11)

    def tail():
        e(f"""
        L_amid:
        s_waitcnt vmcnt(0)
        s_barrier
        s_cmp_lg_u32 s{sW}, 0
        s_cbranch_scc1 L_amid2
        """)
        g.signal(1)
        e(f"""
        L_amid2:
        s_lshr_b32 s40, s2, 3
        s_cmp_ge_u32 s40, 24
        s_cbranch_scc1 L_amq
        """)
        g.srd(SRB, pWO, D*D*2)
        e(f"""
        s_mul_i32 s41, s40, 43
        s_lshr_b32 s41, s41, 8
        s_mul_i32 s41, s41, 6
        s_sub_u32 s41, s40, s41
        s_mul_i32 s41, s41, 192
        s_and_b32 s41, s41, 0xffffff80
        s_add_u32 s42, s41, {512*1152}
        v_mul_u32_u24 v{PF+4}, 1152, v{TID}
        buffer_load_dword v{PF}, v{PF+4}, s[{SRB}:{SRB+3}], s41 offen
        buffer_load_dword v{PF+1}, v{PF+4}, s[{SRB}:{SRB+3}], s41 offen offset:128
        s_cmp_lg_u32 s{sW}, 0
        s_cbranch_scc1 L_aloop
        buffer_load_dword v{PF+2}, v{PF+4}, s[{SRB}:{SRB+3}], s42 offen
        buffer_load_dword v{PF+3}, v{PF+4}, s[{SRB}:{SRB+3}], s42 offen offset:128
        s_branch L_aloop
        L_amq:
        s_cmp_ge_u32 s{sW}, 5
        s_cbranch_scc1 L_aloop
        """)
        g.srd(SRB, pQ, S*D*2)
        e(f"""
        s_and_b32 s41, s2, 7
        s_lshl_b32 s41, s41, 3
        s_add_u32 s41, s41, s40
        s_sub_u32 s41, s41, 24
        s_mul_i32 s41, s41, 36864
        v_lshlrev_b32 v{PF+4}, 7, v{TID}
        buffer_load_dword v{PF}, v{PF+4}, s[{SRB}:{SRB+3}], s41 offen
        s_branch L_aloop
        """)
        M = T2
        e(f"""
        L_slow:
        v_mov_b32 v{QX+1}, 0
        v_mov_b32 v{M}, 0xff800000
        s_mov_b32 s44, 0
        L_slow_pass:
        v_subrev_u32 v{AK}, {16*KV_CHUNK}, v{AK}
        v_subrev_u32 v{AV}, {16*KV_CHUNK}, v{AV}
        v_subrev_u32 v{AKX}, {16*KV_CHUNK}, v{AKX}
        s_mov_b32 s{sIT}, 0
        L_slow_loop:
        """)
        for b in range(2):
            ldKX(b); ldK(K0, b, 0); ldK(K1, b, 1)
            for gq in range(4): ldV(gq, b)
            e("s_waitcnt lgkmcnt(0)")
            qk_simple(SA)
            e(f"s_cmp_eq_u32 s44, 0\ns_cbranch_scc0 L_slow_pv{b}")
            for i in range(0, 32, 2): e(f"v_max3_f32 v{M}, v{M}, v{SA+i}, v{SA+i+1}")
            e(f"s_branch L_slow_nx{b}\nL_slow_pv{b}:")
            for i in range(32): e(f"v_sub_f32 v{SA+i}, v{SA+i}, v{M}")
            for i in range(32): e(f"v_exp_f32 v{SA+i}, v{SA+i}")
            e("s_nop 1")
            for gq in range(4): msm(gq, SA)
            e(f"s_nop 7\nL_slow_nx{b}:")
        e(f"""
        v_add_u32 v{AK}, {KV_CHUNK}, v{AK}
        v_add_u32 v{AV}, {KV_CHUNK}, v{AV}
        v_add_u32 v{AKX}, {KV_CHUNK}, v{AKX}
        s_add_u32 s{sIT}, s{sIT}, 1
        s_cmp_lt_u32 s{sIT}, 16
        s_cbranch_scc1 L_slow_loop
        s_cmp_eq_u32 s44, 0
        s_cbranch_scc0 L_slow_done
        v_mov_b32 v{T1}, v{M}
        s_nop 1
        v_permlane32_swap_b32 v{M}, v{T1}
        v_max_f32 v{M}, v{M}, v{T1}
        """)
        for i in range(16): e(f"v_mov_b32 v{O+i}, 0")
        e(f"""
        s_mov_b32 s44, 1
        s_branch L_slow_pass
        L_slow_done:
        s_nop 11
        v_mov_b32 v{T0}, v{O+10}
        v_mov_b32 v{T1}, v{O+10}
        s_nop 1
        v_permlane32_swap_b32 v{T0}, v{T1}
        s_nop 0
        s_branch L_afin
        """)
    return tail

def phase3(g):
    e, X = g.e, g.X
    OF, ACC, WF = 0, 72, 120
    WA, WX = 144, 145
    DV = [146, 147, 148]
    T0, T1, T2, T3 = 150, 151, 152, 153
    sWO, sOUT = SRB, SRC
    sTB, sFB, sT, sT2, sG, sTW, sKH, sIDX = 33, 34, 35, 36, 37, 38, 39, 40
    g.srd(sOUT, pOUT, S*1152*2)
    e(f"""
    s_lshr_b32 s{sIDX}, s2, 3
    s_and_b32 s{sT}, s2, 7
    s_cmp_lg_u32 s{sW}, 0
    s_cbranch_scc1 L_p3a
    """)
    g.signal(2)
    e(f"""
    L_p3a:
    s_cmp_ge_u32 s{sIDX}, 24
    s_cbranch_scc1 L_ssmf
    s_mul_i32 s{sT2}, s{sIDX}, 43
    s_lshr_b32 s{sT2}, s{sT2}, 8
    s_mul_i32 s{sFB}, s{sT2}, 6
    s_sub_u32 s{sFB}, s{sIDX}, s{sFB}
    s_lshl_b32 s{sTB}, s{sT}, 2
    s_add_u32 s{sTB}, s{sTB}, s{sT2}
    s_mul_i32 s45, s{sFB}, 192
    s_cmp_lt_u32 s{sW}, 4
    s_cbranch_scc1 L_p3c
    """)
    g.srd(sWO, pWO, D*D*2)
    for i in range(3):
        e(f"""
        v_add_u32 v{T0}, {64*i}, v{LANE}
        v_mul_u32_u24 v{T1}, 171, v{T0}
        v_lshrrev_b32 v{T1}, 11, v{T1}
        v_mul_u32_u24 v{T2}, {1152-192}, v{T1}
        v_lshl_add_u32 v{DV[i]}, v{T0}, 4, v{T2}
        """)
    e(f"""
    s_and_b32 s{sG}, s{sW}, 3
    s_mul_i32 s{sT}, s{sG}, 3072
    s_mul_i32 s{sT2}, s{sG}, {16*1152}
    s_add_u32 s{sT2}, s{sT2}, s45
    s_mov_b32 s{sG}, 0
    L_wod:
    s_mov_b32 m0, s{sT}
    s_add_u32 s{sG}, s{sG}, 1
    buffer_load_dwordx4 v{DV[0]}, s[{sWO}:{sWO+3}], s{sT2} offen lds
    s_add_u32 m0, s{sT}, 1024
    s_nop 0
    buffer_load_dwordx4 v{DV[1]}, s[{sWO}:{sWO+3}], s{sT2} offen lds
    s_add_u32 m0, s{sT}, 2048
    s_add_u32 s{sT}, s{sT}, {4*3072}
    buffer_load_dwordx4 v{DV[2]}, s[{sWO}:{sWO+3}], s{sT2} offen lds
    s_add_u32 s{sT2}, s{sT2}, {64*1152}
    s_cmp_lt_u32 s{sG}, 9
    s_cbranch_scc1 L_wod
    s_waitcnt vmcnt(0)
    s_barrier
    """)
    g.flush()
    e(f"""
    s_endpgm
    L_p3c:
    s_and_b32 s{sTW}, s{sW}, 1
    s_lshr_b32 s{sKH}, s{sW}, 1
    s_lshl_b32 s46, s{sT}, 12
    s_lshl_b32 s{sT}, s{sTB}, 1
    s_add_u32 s{sT}, s{sT}, s{sTW}
    s_mul_i32 s{sT}, s{sT}, {36*1024}
    s_add_u32 s{sT}, s{sT}, {O_OFF}
    s_lshl_b32 s{sT2}, s{sKH}, 14
    s_add_u32 s43, s{sT}, s{sT2}
    s_lshl_b32 s{sT2}, s{sKH}, 11
    s_add_u32 s44, s{sT}, s{sT2}
    s_add_u32 s44, s44, 0x8000
    v_lshrrev_b32 v{T0}, 5, v{LANE}
    v_bfe_u32 v{T1}, v{LANE}, 2, 2
    v_and_b32 v{T2}, 3, v{LANE}
    v_lshlrev_b32 v{T2}, 3, v{T2}
    v_and_b32 v{T3}, 16, v{LANE}
    v_lshl_add_u32 v{T2}, v{T3}, 1, v{T2}
    v_mul_u32_u24 v{T1}, 192, v{T1}
    s_mul_i32 s{sT}, s{sKH}, {288*192}
    v_add3_u32 v{T2}, v{T2}, v{T1}, s{sT}
    v_mul_u32_u24 v{T1}, {4*192}, v{T0}
    v_add_u32 v{WA}, v{T2}, v{T1}
    v_mul_u32_u24 v{T1}, {72*192}, v{T0}
    v_add_u32 v{WX}, v{T2}, v{T1}
    v_and_b32 v{T3}, 31, v{LANE}
    v_lshlrev_b32 v{T3}, 2, v{T3}
    v_lshl_add_u32 v{T3}, v{T0}, 9, v{T3}
    s_cmp_lg_u32 s{sW}, 0
    s_cbranch_scc1 L_p3w
    """)
    g.poll("L_s2", 2, 32, 46, 0)
    e("L_p3w:\ns_barrier")
    g.stamp(12)
    for i in range(16):
        if i % 4 == 0 and i: e(f"s_add_u32 s43, s43, 4096")
        e(f"buffer_load_dwordx4 {vr(OF+4*i,4)}, v{L16}, s[{SWS}:{SWS+3}], s43 offen offset:{(i%4)*1024} sc1")
    for i in range(8):
        e(f"buffer_load_dword v{OF+64+i}, v{T3}, s[{SWS}:{SWS+3}], s44 offen offset:{(i//4)*1024 + (i%4)*128} sc1")
    def ldw(ks, buf):
        for ft in range(3):
            for rd in range(2):
                if ks < 16: off = (18*ks + 2*(ks % 2) + 8*rd) * 192 + ft*64; a = WA
                else: off = (144*(ks-16) + 36*rd + 16) * 192 + ft*64; a = WX
                e(f"ds_read_b64_tr_b16 {vr(WF+12*buf+4*ft+2*rd,2)}, v{a} offset:{off}")
    ldw(0, 0)
    for ks in range(18):
        buf = ks % 2
        n = 23 - ks if ks < 16 else (4 if ks == 16 else 0)
        if ks < 17:
            ldw(ks+1, buf ^ 1)
            e(f"s_waitcnt vmcnt({n}) lgkmcnt(6)")
        else:
            e("s_waitcnt vmcnt(0) lgkmcnt(0)")
        for ft in range(3):
            c = "0" if ks == 0 else vr(ACC+16*ft,16)
            e(f"v_mfma_f32_32x32x16_bf16 {vr(ACC+16*ft,16)}, {vr(WF+12*buf+4*ft,4)}, {vr(OF+4*ks,4)}, {c}")
    g.stamp(13)
    RB = 110592
    e(f"""
    s_mul_i32 s{sT}, s{sW}, 6144
    s_xor_b32 s{sT2}, s{sW}, 2
    s_mul_i32 s{sT2}, s{sT2}, 6144
    v_add_u32 v{T3}, {RB}, v{L16}
    v_add_u32 v{T0}, s{sT}, v{T3}
    v_add_u32 v{T1}, s{sT2}, v{T3}
    s_nop 5
    s_cmp_eq_u32 s{sKH}, 0
    s_cbranch_scc0 L_kh1
    """)
    def red(kh):
        own, oth = 8*kh, 8*(1-kh)
        for ft in range(3):
            for gq in range(2):
                e(f"ds_write_b128 v{T0}, {vr(ACC+16*ft+oth+4*gq,4)} offset:{(2*ft+gq)*1024}")
        e("s_waitcnt lgkmcnt(0)\ns_barrier")
        for ft in range(3):
            for gq in range(2):
                e(f"ds_read_b128 {vr(OF+8*ft+4*gq,4)}, v{T1} offset:{(2*ft+gq)*1024}")
        for ft in range(3):
            e(f"s_waitcnt lgkmcnt({4-2*ft})")
            for i in range(8): e(f"v_add_f32 v{OF+8*ft+i}, v{OF+8*ft+i}, v{ACC+16*ft+own+i}")
    red(0)
    e("s_branch L_ost\nL_kh1:")
    red(1)
    e("L_ost:")
    for ft in range(3):
        for i in range(4): e(f"v_cvt_pk_bf16_f32 v{OF+24+4*ft+i}, v{OF+8*ft+2*i}, v{OF+8*ft+2*i+1}")
    e(f"""
    v_and_b32 v{T0}, 31, v{LANE}
    v_mul_u32_u24 v{T0}, 2304, v{T0}
    v_lshrrev_b32 v{T1}, 5, v{LANE}
    v_lshl_add_u32 v{T0}, v{T1}, 4, v{T0}
    s_lshl_b32 s{sT}, s{sTB}, 1
    s_add_u32 s{sT}, s{sT}, s{sTW}
    s_mul_i32 s{sT}, s{sT}, {32*2304}
    s_lshl_b32 s{sT2}, s{sKH}, 5
    s_add_u32 s{sT}, s{sT}, s{sT2}
    s_add_u32 s{sT}, s{sT}, s45
    """)
    for ft in range(3):
        b = OF + 24 + 4*ft
        e(f"v_permlane32_swap_b32 v{b}, v{b+2}\nv_permlane32_swap_b32 v{b+1}, v{b+3}")
    for ft in range(3):
        b = OF + 24 + 4*ft
        e(f"buffer_store_dwordx4 {vr(b,4)}, v{T0}, s[{sOUT}:{sOUT+3}], s{sT} offen offset:{ft*64}")
    g.flush()
    e("s_endpgm")
    Y, Q, OUTR = 8, 40, 72
    e(f"""
    L_ssmf:
    s_cmp_ge_u32 s{sW}, 5
    s_cbranch_scc1 L_end
    s_lshl_b32 s{sT}, s{sT}, 3
    s_add_u32 s{sT}, s{sT}, s{sIDX}
    s_sub_u32 s{sT}, s{sT}, 24
    """)
    g.srd(SRB, pQ, S*D*2)
    e(f"""
    v_lshrrev_b32 v{T1}, 2, v{TID}
    v_and_b32 v{T0}, 3, v{TID}
    v_lshlrev_b32 v{T2}, 9, v{T1}
    v_lshl_add_u32 v{T2}, v{T0}, 4, v{T2}
    v_mul_u32_u24 v{T3}, {8*1152}, v{T0}
    v_lshl_add_u32 v{T3}, v{T1}, 4, v{T3}
    v_mul_u32_u24 v{T0}, {8*2304}, v{T0}
    v_lshl_add_u32 v{T0}, v{T1}, 4, v{T0}
    s_mul_i32 s43, s{sT}, 36864
    s_add_u32 s44, s43, {YT_OFF}
    s_add_u32 s45, s43, {4*1152}
    s_mul_i32 s{sT2}, s{sT}, {32*2304}
    s_add_u32 s{sT2}, s{sT2}, 1152
    """)
    for t in range(8):
        e(f"buffer_load_dwordx4 {vr(Q+4*t,4)}, v{T3}, s[{SRB}:{SRB+3}], s{43 if t < 4 else 45} offen offset:{(t%4)*1152}")
    e(f"s_cmp_lg_u32 s{sW}, 0\ns_cbranch_scc1 L_p3v")
    g.poll("L_s3", 1, 256, None, 0)
    e(f"""
    L_p3v:
    s_barrier
    v_cmp_gt_u32 vcc, 288, v{TID}
    s_and_b64 exec, exec, vcc
    """)
    for c in range(8):
        e(f"buffer_load_dwordx4 {vr(Y+4*c,4)}, v{T2}, s[{SWS}:{SWS+3}], s44 offen offset:{64*c} sc1")
    e("s_waitcnt vmcnt(0)")
    A, B2 = 104, 108
    for t in range(8):
        for cp in range(4):
            a = A + 2 * (cp % 2); b = B2 + 2 * (cp % 2)
            e(f"v_lshlrev_b32 v{a}, 16, v{Q+4*t+cp}\nv_and_b32 v{a+1}, 0xffff0000, v{Q+4*t+cp}")
            for k in range(2):
                src = Y + 4*(2*cp+k) + t//2
                e(f"v_lshlrev_b32 v{b+k}, 16, v{src}" if t % 2 == 0 else f"v_and_b32 v{b+k}, 0xffff0000, v{src}")
            e(f"v_pk_mul_f32 {vr(a,2)}, {vr(a,2)}, {vr(b,2)}")
            e(f"v_cvt_pk_bf16_f32 v{OUTR+4*t+cp}, v{a}, v{a+1}")
        e(f"buffer_store_dwordx4 {vr(OUTR+4*t,4)}, v{T0}, s[{sOUT}:{sOUT+3}], s{sT2} offen")
        e(f"s_add_u32 s{sT2}, s{sT2}, 2304")
    g.flush()
    e("L_end:\ns_endpgm")

def build(X=()):
    g = G(X)
    g.e(f".globl {NAME}\n.p2align 8\n.type {NAME},@function\n{NAME}:")
    phase1(g)
    phase2_conv(g)
    tail = phase2_attn(g)
    phase3(g)
    tail()
    hdr = open("concat_heads__softmax_full_mha__ssm_conv_h3__prompt.s.ref").read().split("; Override")[0]
    s = hdr + "; @launch grid=(256,1,1) block=(512,1,1) lds=163840\n"
    s += '.amdgcn_target "amdgcn-amd-amdhsa--gfx950"\n.text\n' + g.e.text()
    s += '.section .rodata,"a"\n.p2align 6\n' + kernel_desc(NAME, 256)
    return s

if __name__ == "__main__":
    open(sys.argv[1], "w").write(build(tuple(sys.argv[2:])))
```

```python
import sys
from common import *

NAME = "concat_heads__softmax_full_mha__ssm_conv_h3__prompt_kernel"
SRA, SWS, SRB, SRC, SRD_ = 4, 8, 12, 16, 20
sW, sNONCE = 24, 25
sHEAD, sQT, sKVO = 31, 32, 51
pX, pWQ, pWO, pQ, pK, pV, pSH, pH, pD, pOUT, pDBG, pWS = range(64, 88, 2)
VST = 255
LANE, L16, TID, VN = 250, 251, 252, 253
H_BASE, H_SZ, HO_IN = 0, 8320, 4160
UR_BASE, UR_SZ = 24960, 4608
CP_BASE = 155648
BAD_ADDR = 126464 - 64

class G:
    def __init__(self, X):
        self.e = Asm(); self.X = X; self.ST = "st" in X
    def stamp(self, i):
        if self.ST: self.e(f"s_memtime s[88:89]\ns_waitcnt lgkmcnt(0)\nv_writelane_b32 v{VST}, s88, {i}")
    def rstamp(self, i):
        if self.ST: self.e(f"s_memrealtime s[88:89]\ns_waitcnt lgkmcnt(0)\nv_writelane_b32 v{VST}, s88, {i}")
    def flush(self):
        if self.ST:
            self.e("s_waitcnt vmcnt(0)")
            self.stamp(30); self.rstamp(31)
            self.e(f"""
            s_mov_b64 exec, -1
            s_lshl_b32 s88, s2, 3
            s_add_u32 s88, s88, s{sW}
            s_lshl_b32 s88, s88, 8
            s_add_u32 s88, s88, {ST_OFF}
            s_mov_b32 s{SWS+2}, 0x1000000
            v_lshlrev_b32 v0, 2, v{LANE}
            buffer_store_dword v{VST}, v0, s[{SWS}:{SWS+3}], s88 offen
            """)
    def srd(self, slot, ptr, nbytes):
        self.e(f"s_mov_b64 s[{slot}:{slot+1}], s[{ptr}:{ptr+1}]\ns_mov_b32 s{slot+2}, {nbytes}\ns_mov_b32 s{slot+3}, 0x20000")
    def signal(self, which, sidx=2):
        self.e(f"""
        s_lshl_b32 s26, s{sidx}, 7
        s_add_u32 s26, s26, {FL_OFF + which*32768}
        v_mov_b32 v{VN}, s{sNONCE}
        s_mov_b64 exec, 1
        buffer_store_dword v{VN}, v{L16}, s[{SWS}:{SWS+3}], s26 offen sc1
        s_mov_b64 exec, -1
        """)
    def poll(self, lbl, vaddr, soffs, tmp):
        e = self.e
        e(f"s_mov_b32 s30, 0\n{lbl}_poll:")
        for i, so in enumerate(soffs):
            e(f"buffer_load_dword v{tmp+i}, v{vaddr}, s[{SWS}:{SWS+3}], s{so} offen sc1")
        e("s_waitcnt vmcnt(0)")
        for i in range(len(soffs)): e(f"v_xor_b32 v{tmp+i}, s{sNONCE}, v{tmp+i}")
        for i in range(1, len(soffs)): e(f"v_or_b32 v{tmp}, v{tmp}, v{tmp+i}")
        e(f"""
        v_cmp_ne_u32 vcc, 0, v{tmp}
        s_add_u32 s30, s30, 1
        s_cmp_gt_u32 s30, 0x8000
        s_cbranch_scc1 {lbl}_pdone
        s_cmp_lg_u64 vcc, 0
        s_cbranch_scc1 {lbl}_poll
        {lbl}_pdone:
        """)

def phase1(g):
    e, X = g.e, g.X
    SLOT = 32768
    ACC = [[0, 16], [32, 48]]
    XF = [[64, 68], [72, 76]]
    WF = [[80, 84], [88, 92]]
    XA = [96, 97, 98, 99]; WA = [100, 101]
    DX = [102, 103]; DW = 104
    T0, T1, T2, T3 = 140, 141, 142, 143
    EP = 144
    sX, sWq = SRB, SRC
    sTP, sMP, sTT, sCT, sT, sT2, sT3 = 33, 34, 35, 36, 37, 38, 39
    sXO, sWO, sM0, sKB, sST = 40, 41, 42, 43, 44
    e(f"""
    s_cmp_ge_u32 s2, 256
    s_cbranch_scc1 L_end
    s_load_dwordx16 s[64:79], s[0:1], 0
    s_load_dwordx8 s[80:87], s[0:1], 64
    v_mov_b32 v{TID}, v0
    v_lshrrev_b32 v{T0}, 6, v0
    v_and_b32 v{LANE}, 63, v0
    s_and_b32 s{sT}, s2, 7
    v_readfirstlane_b32 s{sW}, v{T0}
    s_lshr_b32 s{sT2}, s2, 3
    s_lshr_b32 s{sTT}, s{sT}, 1
    s_lshl_b32 s{sTT}, s{sTT}, 2
    s_lshr_b32 s{sT3}, s{sT2}, 3
    s_add_u32 s{sTT}, s{sTT}, s{sT3}
    s_lshl_b32 s{sKB}, s{sT3}, 1
    s_and_b32 s{sCT}, s{sT}, 1
    s_lshl_b32 s{sCT}, s{sCT}, 3
    s_and_b32 s{sT3}, s{sT2}, 7
    s_add_u32 s{sCT}, s{sCT}, s{sT3}
    v_lshlrev_b32 v{L16}, 4, v{LANE}
    s_cmp_lt_u32 s{sW}, 4
    s_cbranch_scc1 L_cons
    """)
    e(f"""
    s_add_u32 s{sKB}, s{sKB}, s{sT3}
    s_cmp_ge_u32 s{sKB}, 9
    s_cselect_b32 s{sT}, 9, 0
    s_sub_u32 s{sKB}, s{sKB}, s{sT}
    s_and_b32 s{sT3}, s{sW}, 3
    v_lshrrev_b32 v{T0}, 3, v{LANE}
    s_lshl_b32 s{sT}, s{sTT}, 7
    s_lshl_b32 s{sT2}, s{sT3}, 5
    s_add_u32 s{sT}, s{sT}, s{sT2}
    v_add_u32 v{T0}, s{sT}, v{T0}
    v_mul_u32_u24 v{T0}, 1152, v{T0}
    v_lshrrev_b32 v{T1}, 4, v{LANE}
    v_and_b32 v{T2}, 7, v{LANE}
    v_xor_b32 v{T2}, v{T2}, v{T1}
    v_lshl_add_u32 v{DX[0]}, v{T2}, 4, v{T0}
    v_xor_b32 v{T2}, 4, v{T2}
    v_lshl_add_u32 v{DX[1]}, v{T2}, 4, v{T0}
    v_add_u32 v{DX[1]}, {8*1152}, v{DX[1]}
    v_and_b32 v{T2}, 15, v{LANE}
    v_lshlrev_b32 v{T3}, 2, v{T1}
    v_xor_b32 v{T2}, v{T2}, v{T3}
    v_lshrrev_b32 v{T3}, 2, v{T2}
    v_mul_u32_u24 v{T0}, 72, v{T3}
    v_bfe_u32 v{T3}, v{T2}, 1, 1
    v_mad_u32_u24 v{T0}, v{T3}, 40, v{T0}
    v_and_b32 v{T3}, 1, v{T2}
    v_lshl_add_u32 v{T0}, v{T3}, 4, v{T0}
    v_and_b32 v{T3}, 3, v{T2}
    v_mul_u32_u24 v{T3}, 72, v{T3}
    v_cmp_gt_u32 vcc, 12, v{T2}
    v_add_u32 v{T3}, 32, v{T3}
    s_lshl_b32 s{sT}, s{sT3}, 4
    v_cndmask_b32 v{T0}, v{T3}, v{T0}, vcc
    v_add_u32 v{T1}, s{sT}, v{T1}
    v_mul_u32_u24 v{T1}, 3456, v{T1}
    s_mul_i32 s{sT}, s{sCT}, 216
    v_cmp_eq_u32 vcc, 15, v{T2}
    v_add3_u32 v{DW}, v{T0}, v{T1}, s{sT}
    v_mov_b32 v{T3}, 0x40000000
    v_cndmask_b32 v{DW}, v{DW}, v{T3}, vcc
    s_lshl_b32 s{sM0}, s{sT3}, 12
    s_mov_b32 s{sX+2}, {S*D*2}
    s_mov_b32 s{sX+3}, 0x20000
    s_mov_b32 s{sWq+2}, {D*1728*2}
    s_mov_b32 s{sWq+3}, 0x20000
    s_mov_b32 s{sST}, 0
    s_waitcnt lgkmcnt(0)
    s_mov_b64 s[{sX}:{sX+1}], s[{pX}:{pX+1}]
    s_mov_b64 s[{sWq}:{sWq+1}], s[{pWQ}:{pWQ+1}]
    """)
    g.stamp(0); g.rstamp(29)
    PRE = 3 if "pre3" in X else 2
    e(f"""
    L_prod:
    s_lshl_b32 s{sXO}, s{sKB}, 7
    s_mul_i32 s{sWO}, s{sKB}, {64*3456}
    """)
    for i in range(4):
        e(f"""
        s_add_u32 m0, s{sM0}, {1024*i}
        {f"s_add_u32 s{sXO}, s{sXO}, {16*1152}" if i == 2 else "s_nop 0"}
        buffer_load_dwordx4 v{DX[i%2]}, s[{sX}:{sX+3}], s{sXO} offen lds
        s_add_u32 m0, s{sM0}, {16384 + 1024*i}
        {f"s_add_u32 s{sWO}, s{sWO}, {4*3456}" if i else "s_nop 0"}
        buffer_load_dwordx4 v{DW}, s[{sWq}:{sWq+3}], s{sWO} offen lds
        """)
    e(f"""
    s_add_u32 s{sM0}, s{sM0}, {SLOT}
    s_and_b32 s{sM0}, s{sM0}, {4*SLOT-1}
    s_add_u32 s{sKB}, s{sKB}, 1
    s_cmp_eq_u32 s{sKB}, 9
    s_cselect_b32 s{sKB}, 0, s{sKB}
    s_add_u32 s{sST}, s{sST}, 1
    s_cmp_lt_u32 s{sST}, {PRE}
    s_cbranch_scc1 L_prod
    s_waitcnt vmcnt({8*(PRE-1)})
    s_barrier
    s_cmp_lt_u32 s{sST}, 9
    s_cbranch_scc1 L_prod
    """)
    for k in range(PRE - 2, -1, -1):
        e(f"s_waitcnt vmcnt({8*k})\ns_barrier")
    g.srd(SWS, pWS, WS_USED)
    e("s_branch L_epi2")
    e(f"""
    L_cons:
    s_and_b32 s{sTP}, s{sW}, 1
    s_lshr_b32 s{sMP}, s{sW}, 1
    v_and_b32 v{T0}, 31, v{LANE}
    v_lshrrev_b32 v{T1}, 5, v{LANE}
    v_bfe_u32 v{T2}, v{LANE}, 1, 3
    v_xor_b32 v{T2}, v{T2}, v{T1}
    v_lshlrev_b32 v{T2}, 4, v{T2}
    v_lshl_add_u32 v{T2}, v{T0}, 7, v{T2}
    s_lshl_b32 s{sT}, s{sTP}, 13
    v_add_u32 v{XA[0]}, s{sT}, v{T2}
    v_xor_b32 v{XA[1]}, 32, v{XA[0]}
    v_xor_b32 v{XA[2]}, 64, v{XA[0]}
    v_xor_b32 v{XA[3]}, 0x60, v{XA[0]}
    v_bfe_u32 v{T2}, v{LANE}, 2, 2
    v_lshl_add_u32 v{T3}, v{T1}, 3, v{T2}
    v_lshlrev_b32 v{T3}, 8, v{T3}
    s_lshl_b32 s{sT}, s{sMP}, 1
    v_xor_b32 v{T2}, s{sT}, v{T2}
    v_lshl_add_u32 v{T3}, v{T2}, 6, v{T3}
    v_add_u32 v{T3}, 16384, v{T3}
    v_and_b32 v{T0}, 3, v{LANE}
    v_bfe_u32 v{T1}, v{LANE}, 4, 1
    v_lshlrev_b32 v{T1}, 5, v{T1}
    v_lshl_add_u32 v{T1}, v{T0}, 3, v{T1}
    v_add_u32 v{WA[0]}, v{T3}, v{T1}
    v_lshlrev_b32 v{T0}, 4, v{T0}
    s_cmp_eq_u32 s{sMP}, 0
    s_cselect_b64 vcc, -1, 0
    v_xor_b32 v{T3}, 64, v{T3}
    v_cndmask_b32 v{T1}, v{T0}, v{T1}, vcc
    v_add_u32 v{WA[1]}, v{T3}, v{T1}
    """)
    for i in range(0, 64, 2): e(f"v_mov_b64 {vr(i,2)}, 0")
    e("s_waitcnt lgkmcnt(0)")
    g.stamp(0); g.rstamp(29)
    g.srd(SWS, pWS, WS_USED)
    g.srd(SRA, pDBG, 256)
    e(f"""
    s_or_b32 s{sT}, s2, s{sW}
    s_cmp_lg_u32 s{sT}, 0
    s_cbranch_scc1 L_nononce
    s_memrealtime s[46:47]
    s_waitcnt lgkmcnt(0)
    s_or_b32 s46, s46, 1
    v_mov_b32 v{T0}, s46
    s_mov_b64 exec, 1
    buffer_store_dword v{T0}, v{L16}, s[{SRA}:{SRA+3}], 0 offen sc1
    s_mov_b64 exec, -1
    L_nononce:
    s_mov_b32 s{sST}, 0
    s_mov_b32 s45, {4*SLOT-1}
    s_barrier
    """)
    g.stamp(1)
    def ldfrag(ks, buf):
        out = []
        for t in range(2):
            out.append(f"ds_read_b128 {vr(XF[buf][t],4)}, v{XA[ks]} offset:{t*4096}")
            for h2 in range(2):
                out.append(f"ds_read_b64_tr_b16 {vr(WF[buf][t]+2*h2,2)}, v{WA[t]} offset:{ks*4096 + h2*1024}")
        return out
    def mf(buf, k):
        tt, mt = [(0, 0), (1, 0), (0, 1), (1, 1)][k]
        return f"v_mfma_f32_32x32x16_bf16 {vr(ACC[tt][mt],16)}, {vr(WF[buf][mt],4)}, {vr(XF[buf][tt],4)}, {vr(ACC[tt][mt],16)}"
    def adv(r): return f"v_add_u32 v{r}, {SLOT}, v{r}\nv_and_b32 v{r}, s45, v{r}"
    for l in ldfrag(0, 0): e(l)
    e(adv(XA[0]))
    e("L_gemm:")
    for ks in range(4):
        buf = ks % 2
        if ks < 3:
            ld = ldfrag(ks + 1, buf ^ 1)
            e("s_waitcnt lgkmcnt(0)")
            e(mf(buf, 0)); e(ld[0]); e(ld[1]); e(ld[2])
            e(mf(buf, 1)); e(ld[3]); e(ld[4]); e(ld[5])
            e(mf(buf, 2)); e(adv(XA[ks + 1]))
            if ks == 2: e(adv(WA[0]))
            e(mf(buf, 3))
            if ks == 2: e(adv(WA[1]))
        else:
            ld = ldfrag(0, buf ^ 1)
            e(f"""
            s_waitcnt lgkmcnt(0)
            s_add_u32 s{sST}, s{sST}, 1
            s_cmp_eq_u32 s{sST}, 9
            s_cbranch_scc1 L_gemm_last
            """)
            e(mf(buf, 0))
            e("s_barrier")
            e(ld[0]); e(ld[1]); e(ld[2])
            e(mf(buf, 1)); e(ld[3]); e(ld[4]); e(ld[5])
            e(mf(buf, 2)); e(adv(XA[0]))
            e(mf(buf, 3))
            e("s_branch L_gemm")
    e("L_gemm_last:")
    for k in range(4): e(mf(1, k))
    g.stamp(2)
    e(f"v_mov_b32 v{VN}, 0\ns_mul_i32 s{sCT}, s{sCT}, 3\nbuffer_load_dword v{VN}, v{VN}, s[{SRA}:{SRA+3}], 0 offen sc1")
    EB = 2 * SLOT
    sP, sTy = 48, 49
    VQK, VV, VX4, VX40 = XA[0], XA[1], XA[2], XA[3]
    e(f"""
    s_lshl_b32 s{sT}, s{sTP}, 11
    s_add_u32 s{sT}, s{sT}, {EB}
    v_add_u32 v{VQK}, s{sT}, v{L16}
    v_and_b32 v{T3}, 31, v{LANE}
    v_lshrrev_b32 v{T2}, 5, v{LANE}
    s_mul_i32 s{sT}, s{sTP}, 2560
    s_add_u32 s{sT}, s{sT}, {EB}
    v_mad_u32_u24 v{VX40}, v{T3}, 40, s{sT}
    v_lshl_add_u32 v{VV}, v{T2}, 4, v{VX40}
    s_lshl_b32 s{sT}, s{sTP}, 8
    s_add_u32 s{sT}, s{sT}, {EB + 4096}
    v_lshl_add_u32 v{VX4}, v{T3}, 2, s{sT}
    s_mul_i32 s50, s{sMP}, {4*5120}
    """)
    def main_tile(t):
        e(f"""
        s_lshl_b32 s{sP}, s{sMP}, 1
        s_add_u32 s{sP}, s{sP}, s{sCT}
        s_add_u32 s{sP}, s{sP}, {t}
        s_movk_i32 s{sT2}, 1024
        s_cmp_ge_u32 s{sP}, 32
        s_cselect_b64 vcc, -1, 0
        s_cselect_b32 s{sT2}, 1280, s{sT2}
        s_cmp_lt_u32 s{sP}, 16
        s_cselect_b32 s46, {f2u(QSCALE):#x}, 1.0
        v_cndmask_b32 v{T0}, v{VQK}, v{VV}, vcc
        v_add_u32 v{T0}, s50, v{T0}
        v_add_u32 v{T1}, s{sT2}, v{T0}
        s_mov_b32 s47, s46
        """)
        for tt in range(2):
            A = ACC[tt][t]; R = 64 + 16 * t + 8 * tt
            for i in range(0, 16, 2): e(f"v_pk_mul_f32 {vr(A+i,2)}, {vr(A+i,2)}, s[46:47]")
            for i in range(8): e(f"v_cvt_pk_bf16_f32 v{R+i}, v{A+2*i}, v{A+2*i+1}")
            for hd in range(2):
                for k in range(2):
                    e(f"ds_write_b64 v{(T0,T1)[tt]}, {vr(R+4*hd+2*k,2)} offset:{(2*t+hd)*5120 + 8*k}")
    main_tile(0)
    e(f"s_cmp_eq_u32 s{sMP}, 0\ns_cbranch_scc0 L_extras")
    main_tile(1)
    e("s_branch L_epi2\nL_extras:")
    DD = 80
    for k in range(4): e(f"v_mov_b32 v{DD+2*k+1}, 0x3f80")
    for j in range(3):
        e(f"""
        s_add_u32 s{sP}, s{sCT}, {j}
        s_mov_b64 exec, -1
        s_mov_b32 exec_{'hi' if j % 2 == 0 else 'lo'}, 0
        s_cmp_lt_u32 s{sP}, 16
        s_cselect_b32 s46, {f2u(QSCALE):#x}, 1.0
        s_mov_b32 s47, s46
        """)
        for tt in range(2):
            r0 = ACC[tt][1] + 4 * (j // 2)
            e(f"""
            v_pk_mul_f32 {vr(r0,2)}, {vr(r0,2)}, s[46:47]
            v_pk_mul_f32 {vr(r0+2,2)}, {vr(r0+2,2)}, s[46:47]
            v_cvt_pk_bf16_f32 v{DD+4*tt}, v{r0}, v{r0+1}
            v_cvt_pk_bf16_f32 v{DD+4*tt+2}, v{r0+2}, v{r0+3}
            """)
        e(f"s_cmp_ge_u32 s{sP}, 32\ns_cbranch_scc1 L_xv{j}")
        for tt in range(2):
            for hd in range(2):
                e(f"ds_write_b32 v{VX4}, v{DD+4*tt+2*hd} offset:{(2*j+hd)*5120 + tt*128}")
        e(f"s_branch L_xn{j}\nL_xv{j}:")
        for tt in range(2):
            for hd in range(2):
                e(f"ds_write_b64 v{VX40}, {vr(DD+4*tt+2*hd,2)} offset:{(2*j+hd)*5120 + 32 + tt*1280}")
        e(f"L_xn{j}:")
    e(f"""
    s_mov_b64 exec, -1
    L_epi2:
    s_waitcnt lgkmcnt(0)
    s_barrier
    """)
    g.stamp(3)
    e(f"""
    s_cmp_lt_u32 s{sW}, 2
    s_cbranch_scc1 L_nocopy
    s_sub_u32 s{sT3}, s{sW}, 2
    s_mul_i32 s{sT}, s{sT3}, 5120
    s_add_u32 s{sT}, s{sT}, {EB}
    v_add_u32 v{T0}, s{sT}, v{L16}
    """)
    for i in range(5): e(f"ds_read_b128 {vr(EP+4*i,4)}, v{T0} offset:{1024*i}")
    e(f"""
    s_cmp_lt_u32 s{sW}, 4
    s_cselect_b32 s{sP}, 2, 6
    s_mul_i32 s{sP}, s{sP}, s{sCT}
    s_add_u32 s{sP}, s{sP}, s{sT3}
    s_lshr_b32 s{sTy}, s{sP}, 5
    s_and_b32 s{sP}, s{sP}, 31
    s_lshl_b32 s{sP}, s{sP}, 4
    s_add_u32 s{sP}, s{sP}, s{sTT}
    s_mul_i32 s{sT}, s{sP}, {QI_BLK}
    s_mul_i32 s{sT2}, s{sP}, {KV_CHUNK}
    s_add_u32 s{sT2}, s{sT2}, {KV_OFF}
    s_cmp_eq_u32 s{sTy}, 0
    s_cselect_b32 s{sT}, s{sT}, s{sT2}
    s_cmp_eq_u32 s{sTy}, 2
    s_cselect_b32 s{sT2}, {V_IN}, 0
    s_cselect_b32 s{sT3}, -1, 0
    s_add_u32 s{sT}, s{sT}, s{sT2}
    s_add_u32 s{sT2}, s{sT}, 4096
    """)
    for i in range(4):
        e(f"s_waitcnt lgkmcnt({4-i})")
        e(f"buffer_store_dwordx4 {vr(EP+4*i,4)}, v{L16}, s[{SWS}:{SWS+3}], s{sT} offen offset:{1024*i} sc1")
    e(f"""
    s_mov_b32 exec_hi, s{sT3}
    s_waitcnt lgkmcnt(0)
    buffer_store_dwordx4 {vr(EP+16,4)}, v{L16}, s[{SWS}:{SWS+3}], s{sT2} offen sc1
    s_mov_b32 exec_hi, -1
    L_nocopy:
    """)
    e(f"""
    s_and_b32 s{sHEAD}, s2, 7
    s_lshl_b32 s{sHEAD}, s{sHEAD}, 2
    s_bfe_u32 s{sT}, s2, 0x20003
    s_add_u32 s{sHEAD}, s{sHEAD}, s{sT}
    s_lshr_b32 s{sQT}, s2, 5
    s_lshl_b32 s{sQT}, s{sQT}, 3
    s_add_u32 s{sQT}, s{sQT}, s{sW}
    s_mul_i32 s{sKVO}, s{sHEAD}, {KV_HEAD}
    s_add_u32 s{sKVO}, s{sKVO}, {KV_OFF}
    """)
    e(f"""
    s_lshl_b32 s{sT}, s2, 2
    s_load_dword s52, s[{pD}:{pD+1}], s{sT}
    s_lshr_b32 s{sT}, s2, 3
    s_lshl_b32 s{sT}, s{sT}, 2
    s_add_u32 s{sT}, s{sT}, 1024
    s_load_dword s53, s[{pD}:{pD+1}], s{sT}
    """)
    g.attn_setup()
    e(f"""
    s_cmp_lg_u32 s{sW}, 0
    s_cbranch_scc1 L_p1w
    s_mul_i32 s27, s{sCT}, 43
    s_lshr_b32 s27, s27, 7
    s_lshl_b32 s27, s27, 4
    s_add_u32 s27, s27, s{sTT}
    s_lshr_b32 s{sT}, s{sHEAD}, 1
    v_lshrrev_b32 v{T0}, 4, v{LANE}
    v_add_u32 v{T1}, 1, v{T0}
    v_cmp_gt_u32 vcc, 32, v{LANE}
    v_and_b32 v{T2}, 15, v{LANE}
    v_and_b32 v{T3}, 1, v{LANE}
    v_cndmask_b32 v{T1}, 0, v{T1}, vcc
    v_lshl_add_u32 v{T1}, v{T1}, 4, s{sT}
    v_mul_u32_u24 v{T1}, 43, v{T1}
    v_lshrrev_b32 v{T1}, 7, v{T1}
    s_lshr_b32 s{sT}, s{sQT}, 2
    v_add_u32 v{T3}, s{sT}, v{T3}
    v_cndmask_b32 v{T2}, v{T3}, v{T2}, vcc
    v_lshl_add_u32 v{T2}, v{T1}, 4, v{T2}
    v_lshlrev_b32 v{T2}, 7, v{T2}
    s_mov_b32 s28, {FL_OFF}
    s_mov_b32 s30, 0
    s_waitcnt vmcnt(0)
    L_nz:
    v_readfirstlane_b32 s{sNONCE}, v{VN}
    s_add_u32 s30, s30, 1
    s_cmp_gt_u32 s30, 0x8000
    s_cbranch_scc1 L_p1w
    s_cmp_lg_u32 s{sNONCE}, 0
    s_cbranch_scc1 L_p1w
    v_mov_b32 v{VN}, 0
    s_nop 0
    buffer_load_dword v{VN}, v{VN}, s[{SRA}:{SRA+3}], 0 offen sc1
    s_waitcnt vmcnt(0)
    s_branch L_nz
    L_p1w:
    s_waitcnt vmcnt(0) lgkmcnt(0)
    s_barrier
    """)
    g.stamp(4)
    e(f"s_cmp_lg_u32 s{sW}, 0\ns_cbranch_scc1 L_s1wait")
    g.signal(0, 27)
    g.poll("L_s1", T2, [28], T0)
    e("L_s1wait:\ns_barrier")
    g.stamp(5)

SA, SB, O, Q = 0, 32, 64, 80
K0, K1 = 84, 88
V = [92, 96, 100, 104]
QX, KX, IDX = 108, 110, 112
AK, AV, AKX = 113, 114, 115
aT0, aT1, aT2 = 117, 118, 119
sQM, sQXo = 54, 55
sKD, sKS = 56, 57

def attn_setup(g):
    e = g.e; T0, T1 = aT0, aT1
    e(f"""
    v_lshrrev_b32 v{T0}, 5, v{LANE}
    v_bfe_u32 v{T1}, v{LANE}, 2, 2
    v_lshl_add_u32 v{T0}, v{T0}, 3, v{T1}
    v_mul_u32_u24 v{AV}, 40, v{T0}
    v_and_b32 v{T0}, 1, v{LANE}
    v_lshlrev_b32 v{T0}, 4, v{T0}
    v_bfe_u32 v{T1}, v{LANE}, 1, 1
    v_lshl_add_u32 v{T0}, v{T1}, 3, v{T0}
    v_and_b32 v{T1}, 16, v{LANE}
    v_cmp_eq_u32 vcc, 0, v{T1}
    v_lshlrev_b32 v{AKX}, 2, v{LANE}
    v_mov_b32 v{AK}, v{L16}
    v_cndmask_b32 v{T0}, 32, v{T0}, vcc
    v_add_u32 v{AV}, v{AV}, v{T0}
    v_and_b32 v{T0}, 19, v{LANE}
    v_cmp_lt_u32 vcc, 16, v{T0}
    v_mov_b32 v{T1}, 0x100000
    v_mov_b32 v{KX+1}, 0x3f803f80
    v_cndmask_b32 v{AV}, v{AV}, v{T1}, vcc
    v_mov_b32 v{QX+1}, 0
    v_mov_b32 v{IDX}, 0xdddddddd
    v_and_b32 v{aT2}, 124, v{AKX}
    s_lshl_b32 s37, s{sHEAD}, 4
    s_lshr_b32 s38, s{sQT}, 2
    s_add_u32 s37, s37, s38
    s_mul_i32 s37, s37, {QI_BLK}
    s_and_b32 s38, s{sQT}, 3
    s_lshl_b32 s{sQM}, s38, 10
    s_add_u32 s{sQM}, s{sQM}, s37
    s_lshl_b32 s{sQXo}, s38, 7
    s_add_u32 s{sQXo}, s{sQXo}, s37
    s_add_u32 s{sQXo}, s{sQXo}, 4096
    s_lshl_b32 s{sKD}, s{sW}, 10
    s_add_u32 s{sKS}, s{sKD}, s{sKVO}
    s_lshr_b32 s37, s2, 5
    s_mul_i32 s37, s37, {2*KV_CHUNK}
    s_add_u32 s{sKS}, s{sKS}, s37
    s_add_u32 s61, s{sKVO}, {KV_HEAD}
    """)
    for i in range(0, 16, 2): e(f"v_mov_b64 {vr(O+i,2)}, 0")
    for i in range(0, 8, 2): e(f"v_mov_b64 {vr(SB+24+i,2)}, 0")
    e(f"v_mov_b64 {vr(V[3],2)}, 0\nv_mov_b64 {vr(V[3]+2,2)}, 0")

def phase2(g):
    e, X = g.e, g.X
    T0, T1, T2 = aT0, aT1, aT2
    def koff(b, t): return (b // 2) * KV_CHUNK + (b % 2) * 2048 + t * 1024
    def kxoff(b): return (b // 2) * KV_CHUNK + KX_IN + (b % 2) * 256
    def voff(b, gq, half): return (b // 2) * KV_CHUNK + V_IN + ((b % 2) * 64 + gq * 16 + half * 4) * 40
    def ldK(reg, b, t): e(f"ds_read_b128 {vr(reg,4)}, v{AK} offset:{koff(b,t)}")
    def ldKX(b): e(f"ds_read_b32 v{KX}, v{AKX} offset:{kxoff(b)}")
    def ldV(gq, b):
        e(f"ds_read_b64_tr_b16 {vr(V[gq],2)}, v{AV} offset:{voff(b,gq,0)}")
        e(f"ds_read_b64_tr_b16 {vr(V[gq]+2,2)}, v{AV} offset:{voff(b,gq,1)}")
    def m2b(T): e(f"v_mfma_f32_32x32x4_2b_bf16 {vr(T,32)}, {vr(KX,2)}, {vr(QX,2)}, 0")
    def mx16(T, Kr): e(f"v_mfma_f32_32x32x16_bf16 {vr(T,16)}, {vr(Kr,4)}, {vr(Q,4)}, {vr(T,16)}")
    def msm(gq, P): e(f"v_smfmac_f32_32x32x32_bf16 {vr(O,16)}, {vr(V[gq],4)}, {vr(P+8*gq,8)}, v{IDX}")
    def qk_simple(T):
        m2b(T)
        e("s_nop 15\ns_nop 1")
        mx16(T, K0); mx16(T + 16, K1)
        e("s_nop 11")
    def kv1():
        return f"""s_mov_b32 m0, s{sKD}
        s_add_u32 s{sKD}, s{sKD}, 8192
        buffer_load_dwordx4 v{L16}, s[{SWS}:{SWS+3}], s{sKS} offen sc1 lds
        s_add_u32 s{sKS}, s{sKS}, 8192
        s_cmp_ge_u32 s{sKS}, s61
        s_cselect_b32 s62, {KV_HEAD}, 0
        s_sub_u32 s{sKS}, s{sKS}, s62"""
    NK0 = 5
    e(kv1())
    e(f"""
    buffer_load_dwordx4 {vr(Q,4)}, v{L16}, s[{SWS}:{SWS+3}], s{sQM} offen sc1
    buffer_load_dword v{QX}, v{T2}, s[{SWS}:{SWS+3}], s{sQXo} offen sc1
    """)
    for n in range(1, NK0): e(kv1())
    e(f"s_waitcnt vmcnt({NK0-1})\ns_barrier")
    g.stamp(6)
    ldKX(0); ldK(K0, 0, 0); ldK(K1, 0, 1)
    ldV(0, 0); ldV(1, 0); ldV(2, 0)
    e("s_waitcnt lgkmcnt(8)")
    m2b(SA)
    e("s_nop 15\ns_nop 0\ns_waitcnt lgkmcnt(6)")
    mx16(SA, K0); mx16(SA + 16, K1)
    e("s_nop 10")
    e(f"v_max3_f32 v{T0}, v{SA}, v{SA+1}, v{SA+2}")
    e(f"v_max3_f32 v{T1}, v{SA+3}, v{SA+4}, v{SA+5}")
    for i in range(6, 30, 4):
        e(f"v_max3_f32 v{T0}, v{T0}, v{SA+i}, v{SA+i+1}")
        e(f"v_max3_f32 v{T1}, v{T1}, v{SA+i+2}, v{SA+i+3}")
    e(f"v_max3_f32 v{T0}, v{T0}, v{SA+30}, v{SA+31}")
    e(f"""
    v_max_f32 v{T0}, v{T0}, v{T1}
    v_mov_b32 v{T1}, v{T0}
    s_nop 1
    v_permlane32_swap_b32 v{T0}, v{T1}
    v_max_f32 v{T0}, v{T0}, v{T1}
    v_cvt_pk_bf16_f32 v{T1}, -v{T0}, -v{T0}
    v_and_b32 v{T2}, 0xffff0000, v{T1}
    v_sub_f32 v{T2}, -v{T0}, v{T2}
    v_cvt_pk_bf16_f32 v{QX+1}, -v{T0}, v{T2}
    s_nop 1
    """)
    qk_simple(SA)
    ldKX(1); ldK(K0, 1, 0); ldK(K1, 1, 1)
    e("s_waitcnt vmcnt(0) lgkmcnt(0)\ns_barrier")
    g.stamp(7)

    def iteration(b, Sx, Tx, extra):
        ev = {
            2: lambda: (e("s_waitcnt lgkmcnt(6)"), msm(3, Tx), ldV(3, b)),
            6: lambda: (m2b(Tx), ldKX(b + 2)),
            14: lambda: (msm(0, Sx), ldV(0, b + 1)),
            18: lambda: (e("s_waitcnt lgkmcnt(5)"), msm(1, Sx), ldV(1, b + 1)),
            22: lambda: (mx16(Tx, K0), ldK(K0, b + 2, 0)),
            26: lambda: (msm(2, Sx), ldV(2, b + 1)),
            30: lambda: (mx16(Tx + 16, K1), ldK(K1, b + 2, 1)),
        }
        for i in range(32):
            if i in ev:
                ev[i]()
                if extra:
                    x = extra.pop(0)
                    if x: e(x)
            e(f"v_exp_f32 v{Sx+i}, v{Sx+i}")

    KR, VRg, WR, A1, A2, A3, A0 = 120, 131, 140, 144, 145, 146, 147
    KF, WFp, U, VT, OUT = 148, 170, 178, 194, 200
    H01 = 208
    def hook_ssm_load():
        e(f"""
        s_lshr_b32 s37, s2, 2
        s_mul_i32 s37, s37, {32*1152}
        s_and_b32 s38, s2, 3
        s_mul_i32 s39, s38, 288
        s_add_u32 s37, s37, s39
        s_mul_i32 s38, s38, 1152
        v_lshrrev_b32 v{A0}, 2, v{TID}
        v_and_b32 v{A1}, 3, v{TID}
        v_sub_u32 v{A1}, 3, v{A1}
        v_mul_u32_u24 v{A1}, {8*1152}, v{A1}
        v_lshl_add_u32 v{A2}, v{A0}, 2, v{A1}
        v_cmp_gt_u32 vcc, 288, v{TID}
        v_add_u32 v{A2}, s37, v{A2}
        v_mov_b32 v{A3}, 0x40000000
        v_cndmask_b32 v{A2}, v{A3}, v{A2}, vcc
        v_lshl_add_u32 v{A0}, v{A0}, 4, s38
        v_subrev_u32 v{A1}, {3*1152}, v{A2}
        v_add_u32 v{A3}, {4*1152}, v{A2}
        """)
        g.srd(SRB, pK, S*D*2); g.srd(SRC, pV, S*D*2); g.srd(SRD_, pSH, D*8)
        l = [f"buffer_load_dwordx4 {vr(WR,4)}, v{A0}, s[{SRD_}:{SRD_+3}], 0 offen"]
        for j in range(3): l.append(f"buffer_load_dword v{KR+j}, v{A1}, s[{SRB}:{SRB+3}], 0 offen offset:{j*1152}")
        for j in range(8):
            a = A2 if j < 4 else A3
            l.append(f"buffer_load_dword v{KR+3+j}, v{a}, s[{SRB}:{SRB+3}], 0 offen offset:{(j%4)*1152}")
            l.append(f"buffer_load_dword v{VRg+j}, v{a}, s[{SRC}:{SRC+3}], 0 offen offset:{(j%4)*1152}")
        return ["\n".join(l[i:i+2]) for i in range(0, 20, 2)]
    def hook_h_ssm():
        e(f"""
        s_cmp_ge_u32 s{sW}, 5
        s_cbranch_scc1 L_hs3
        v_lshrrev_b32 v{A0}, 2, v{TID}
        v_and_b32 v{A1}, 3, v{TID}
        v_lshlrev_b32 v{A0}, 7, v{A0}
        v_lshl_add_u32 v{A0}, v{A1}, 4, v{A0}
        v_cmp_gt_u32 vcc, 288, v{TID}
        v_mov_b32 v{A3}, 0x40000000
        s_mul_i32 s37, s2, 9216
        s_add_u32 s37, s37, {UT_OFF}
        v_cndmask_b32 v{A0}, v{A3}, v{A0}, vcc
        s_waitcnt vmcnt(0)
        """)
        for j in range(4):
            for ch in range(2):
                src = WR + 2*ch + j//2
                e(f"v_lshlrev_b32 v{WFp+2*j+ch}, 16, v{src}" if j % 2 == 0 else f"v_and_b32 v{WFp+2*j+ch}, 0xffff0000, v{src}")
        for j in range(11):
            e(f"v_lshlrev_b32 v{KF+2*j}, 16, v{KR+j}\nv_and_b32 v{KF+2*j+1}, 0xffff0000, v{KR+j}")
        for t in range(8):
            u = vr(U+2*t, 2)
            e(f"""
            v_pk_mul_f32 {u}, {vr(KF+2*t,2)}, {vr(WFp+6,2)}
            v_lshlrev_b32 v{VT+2*(t%2)}, 16, v{VRg+t}
            v_pk_fma_f32 {u}, {vr(KF+2*(t+1),2)}, {vr(WFp+4,2)}, {u}
            v_and_b32 v{VT+2*(t%2)+1}, 0xffff0000, v{VRg+t}
            v_pk_fma_f32 {u}, {vr(KF+2*(t+2),2)}, {vr(WFp+2,2)}, {u}
            v_pk_fma_f32 {u}, {vr(KF+2*(t+3),2)}, {vr(WFp+0,2)}, {u}
            v_pk_mul_f32 {u}, {u}, {vr(VT+2*(t%2),2)}
            """)
        for ch in range(2):
            for j in range(4):
                e(f"v_cvt_pk_bf16_f32 v{OUT+4*ch+j}, v{U+2*(7-2*j)+ch}, v{U+2*(6-2*j)+ch}")
        e(f"""
        buffer_store_dwordx4 {vr(OUT,4)}, v{A0}, s[{SWS}:{SWS+3}], s37 offen sc1
        buffer_store_dwordx4 {vr(OUT+4,4)}, v{A0}, s[{SWS}:{SWS+3}], s37 offen offset:64 sc1
        L_hs3:
        """)
    def hook_hdma():
        g.srd(SRD_, pH, D*S*2)
        e(f"""
        s_and_b32 s37, s{sW}, 3
        s_lshr_b32 s38, s{sW}, 2
        s_lshl_b32 s44, s37, 10
        s_lshl_b32 s45, s38, 1
        s_add_u32 s45, s45, s44
        s_add_u32 s45, s45, 2
        s_mul_i32 s46, s38, {HO_IN}
        s_add_u32 s44, s44, s46
        s_add_u32 m0, s44, {H_BASE + 32}
        s_lshl_b32 s46, s2, 13
        s_add_u32 s47, s46, s45
        buffer_load_dwordx4 v{L16}, s[{SRD_}:{SRD_+3}], s47 offen lds
        s_add_u32 m0, s44, {H_BASE + H_SZ + 32}
        s_add_u32 s47, s47, 4096
        buffer_load_dwordx4 v{L16}, s[{SRD_}:{SRD_+3}], s47 offen lds
        s_add_u32 m0, s44, {H_BASE + 2*H_SZ + 32}
        s_lshr_b32 s47, s2, 2
        s_add_u32 s47, s47, 512
        s_lshl_b32 s47, s47, 12
        s_add_u32 s45, s47, s45
        buffer_load_dwordx4 v{L16}, s[{SRD_}:{SRD_+3}], s45 offen lds
        v_mov_b32 v{A1}, s47
        v_lshlrev_b32 v{A0}, 11, v{LANE}
        v_and_b32 v{A0}, 4096, v{A0}
        v_cmp_gt_u32 vcc, 4, v{LANE}
        v_add_u32 v{A0}, s46, v{A0}
        s_nop 0
        v_cndmask_b32 v{A0}, v{A1}, v{A0}, vcc
        buffer_load_dword v{H01}, v{A0}, s[{SRD_}:{SRD_+3}], 0 offen
        """)
    def hook_sigU():
        e(f"""
        s_waitcnt vmcnt(0) lgkmcnt(9)
        s_barrier
        s_cmp_lg_u32 s{sW}, 0
        s_cbranch_scc1 L_hu2
        """)
        g.signal(1)
        e("L_hu2:")
    def hook_fix():
        e(f"""
        s_cmp_lt_u32 s{sW}, 6
        s_cbranch_scc1 L_hu1
        s_waitcnt vmcnt(0)
        v_mov_b64 {vr(OUT,2)}, 0
        v_mov_b64 {vr(OUT+2,2)}, 0
        s_cmp_eq_u32 s{sW}, 7
        s_cbranch_scc1 L_hfix
        v_and_b32 v{A0}, {31*16}, v{L16}
        ds_write_b128 v{A0}, {vr(OUT,4)} offset:{UR_BASE + 4096}
        ds_write_b128 v{A0}, {vr(OUT,4)} offset:{UR_BASE + 4096 + UR_SZ}
        ds_write_b128 v{A0}, {vr(OUT,4)} offset:{UR_BASE + 4096 + 2*UR_SZ}
        s_branch L_hu1
        L_hfix:
        v_mul_u32_u24 v{A0}, {HO_IN}, v{LANE}
        v_and_b32 v{A1}, 1, v{LANE}
        v_cmp_eq_u32 vcc, 0, v{A1}
        v_mov_b64 {vr(OUT+4,2)}, 0
        v_mov_b32 v{OUT+6}, 0
        v_lshlrev_b32 v{A1}, 16, v{H01}
        v_cndmask_b32 v{OUT+7}, v{H01}, v{A1}, vcc
        s_mov_b64 exec, 63
        ds_write_b128 v{A0}, {vr(OUT,4)} offset:{H_BASE}
        ds_write_b128 v{A0}, {vr(OUT+4,4)} offset:{H_BASE+16}
        s_mov_b64 exec, -1
        L_hu1:
        """)
    def hook_pollU():
        e(f"""
        s_cmp_lg_u32 s{sW}, 0
        s_cbranch_scc1 L_hp1
        s_mul_i32 s27, s2, 911
        s_lshr_b32 s27, s27, 16
        s_lshl_b32 s27, s27, 7
        s_add_u32 s27, s27, {FL_OFF + 32768}
        s_mov_b32 s28, {FL_OFF + 32768 + 3*128}
        v_lshlrev_b32 v{A0}, 9, v{LANE}
        """)
        g.poll("L_su", A0, [27, 28], A1)
        e(f"""
        v_lshrrev_b32 v{A0}, 2, v{LANE}
        v_sub_u32 v{A0}, 15, v{A0}
        v_mul_u32_u24 v{A0}, 36864, v{A0}
        v_and_b32 v{A1}, 48, v{L16}
        v_add_u32 v{A0}, v{A0}, v{A1}
        s_lshl_b32 s37, s2, 7
        s_lshr_b32 s38, s2, 2
        s_lshl_b32 s38, s38, 6
        """)
        for n in range(3):
            for p in range(4):
                base = UT_OFF + (48 - 16*p) * 36864 + (64 if n == 1 else 0) + (512*64 if n == 2 else 0)
                e(f"""
                s_mov_b32 m0, {UR_BASE + n*UR_SZ + p*1024}
                s_add_u32 s39, s{38 if n == 2 else 37}, {base}
                buffer_load_dwordx4 v{A0}, s[{SWS}:{SWS+3}], s39 offen sc1 lds
                """)
        e("L_hp1:")
    ACC = 120
    def Af(buf, m): return (136 if buf == 0 else 200) + 4*m
    def Bf(buf, ep): return 168 + 4*ep if buf == 0 else (232 + 4*ep if ep < 4 else 32 + 4*(ep-4))
    AA, BA, cT0, cT1, cT2 = 48, 49, 50, 51, 52
    AH = [53, 54, 55]
    def loads(buf, nf, top, roff):
        out = []
        for m in range(nf):
            base = AA if m < 2 else AH[m // 2 - 1]
            o = ((m % 2) * 512 + roff) // 4
            out.append(f"ds_read2_b32 {vr(Af(buf,m),2)}, v{base} offset0:{o} offset1:{o+1}")
            out.append(f"ds_read2_b32 {vr(Af(buf,m)+2,2)}, v{base} offset0:{o+2} offset1:{o+3}")
            ep = top - m
            out.append(f"ds_read_b128 {vr(Bf(buf,ep),4)}, v{BA} offset:{(7-ep)*512 + roff}")
        return out
    def epi_tile(acc, ur, sD, dst):
        e(f"""
        v_and_b32 v{dst+2}, 0xffff0000, v{ur+1}
        v_lshlrev_b32 v{dst+3}, 16, v{ur+1}
        v_fmac_f32 v{acc}, s{sD}, v{dst+2}
        v_fmac_f32 v{acc+1}, s{sD}, v{dst+3}
        v_and_b32 v{dst+2}, 0xffff0000, v{ur}
        v_lshlrev_b32 v{dst+3}, 16, v{ur}
        v_fmac_f32 v{acc+2}, s{sD}, v{dst+2}
        v_fmac_f32 v{acc+3}, s{sD}, v{dst+3}
        v_cvt_pk_bf16_f32 v{dst}, v{acc}, v{acc+1}
        v_cvt_pk_bf16_f32 v{dst+1}, v{acc+2}, v{acc+3}
        """)
    def rr(tiles):
        per = [[(ti, mm, n - mm) for mm in range(n + 1)] for ti, n in enumerate(tiles)]
        out = []
        while any(per):
            for p in per:
                if p: out.append(p.pop(0))
        return out
    def yaddr(d, t):
        e(f"""
        v_and_b32 v{d}, 15, v{LANE}
        v_lshrrev_b32 v{t}, 4, v{LANE}
        v_lshlrev_b32 v{t}, 3, v{t}
        v_lshl_add_u32 v{t}, v{d}, 5, v{t}
        v_lshrrev_b32 v{d}, 1, v{d}
        v_mul_u32_u24 v{d}, 36864, v{d}
        v_and_or_b32 v{d}, v{t}, 63, v{d}
        """)
    def hook_conv():
        sT, sT2, sL, sC = 37, 38, 39, 41
        e(f"""
        v_and_b32 v{cT0}, 15, v{LANE}
        v_lshrrev_b32 v{cT1}, 4, v{LANE}
        v_and_b32 v{cT2}, 14, v{cT0}
        v_lshlrev_b32 v{cT2}, 1, v{cT2}
        v_lshl_add_u32 v{AA}, v{cT1}, 4, v{cT2}
        v_and_b32 v{cT2}, 1, v{cT0}
        v_mul_u32_u24 v{cT2}, {HO_IN}, v{cT2}
        v_sub_u32 v{cT0}, 15, v{cT0}
        v_lshlrev_b32 v{cT0}, 5, v{cT0}
        v_lshl_add_u32 v{BA}, v{cT1}, 4, v{cT0}
        s_lshr_b32 s{sT}, s{sW}, 1
        s_min_u32 s{sT}, s{sT}, 2
        s_and_b32 s{sT2}, s{sW}, 3
        s_lshl_b32 s{sT2}, s{sT2}, 7
        s_cmp_lt_u32 s{sW}, 4
        s_cselect_b32 s{sT2}, 0, s{sT2}
        s_mul_i32 s40, s{sT}, {H_SZ}
        s_add_u32 s40, s40, s{sT2}
        s_mul_i32 s{sL}, s{sT}, {UR_SZ}
        s_add_u32 s{sL}, s{sL}, {UR_BASE}
        s_add_u32 s{sT2}, s{sT2}, s{sL}
        v_add3_u32 v{AA}, v{AA}, v{cT2}, s40
        v_add_u32 v{BA}, s{sT2}, v{BA}
        """)
        for k in range(3): e(f"v_add_u32 v{AH[k]}, {1024*(k+1)}, v{AA}")
        for i in range(0, 16, 2): e(f"v_mov_b64 {vr(ACC+i,2)}, 0")
        e(f"""
        s_waitcnt vmcnt(0) lgkmcnt(0)
        s_barrier
        """)
        g.stamp(9)
        e(f"""
        s_cmp_ge_u32 s{sW}, 4
        s_cbranch_scc1 L_convC
        s_bitcmp1_b32 s{sW}, 0
        s_cbranch_scc1 L_set1
        """)
        for si, tiles in enumerate(([7, 6, 1, 0], [5, 4, 3, 2])):
            nf = max(tiles) + 1; top = tiles[0]
            if si: e("L_set1:")
            mfl = rr(tiles)
            for l in loads(0, nf, top, 0): e(l)
            e(f"s_mov_b32 s42, 0\nL_cl{si}:")
            for r in range(2):
                buf = r
                nxt = loads(buf ^ 1, nf, top, 64 * (r + 1))
                e("s_waitcnt lgkmcnt(0)")
                for k, (ti, mm, ep) in enumerate(mfl):
                    e(f"v_mfma_f32_16x16x32_bf16 {vr(ACC+4*ti,4)}, {vr(Af(buf,mm),4)}, {vr(Bf(buf,ep),4)}, {vr(ACC+4*ti,4)}")
                    for _ in range(2):
                        if nxt: e(nxt.pop(0))
                assert not nxt
            for r in (AA, BA, *AH): e(f"v_add_u32 v{r}, 128, v{r}")
            e(f"""
            s_add_u32 s42, s42, 1
            s_cmp_lt_u32 s42, 4
            s_cbranch_scc1 L_cl{si}
            """)
            yaddr(cT0, cT2)
            e(f"""
            v_sub_u32 v{AA}, 504, v{cT2}
            v_add_u32 v{AA}, s{sL}, v{AA}
            s_waitcnt lgkmcnt(0)
            """)
            for ti, n in enumerate(tiles): e(f"ds_read_b64 {vr(200+2*ti,2)}, v{AA} offset:{3584-512*n}")
            e(f"""
            s_lshl_b32 s{sT}, s52, 16
            s_and_b32 s{sT2}, s52, 0xffff0000
            s_bitcmp1_b32 s{sW}, 1
            s_cselect_b32 s{sT}, s{sT2}, s{sT}
            s_cselect_b32 s{sT2}, 64, 0
            s_lshl_b32 s{sC}, s2, 7
            s_add_u32 s{sC}, s{sC}, s{sT2}
            s_waitcnt lgkmcnt(0)
            """)
            for ti, n in enumerate(tiles):
                epi_tile(ACC + 4*ti, 200 + 2*ti, sT, 208 + 4*ti)
                e(f"""
                s_add_u32 s{sT2}, s{sC}, {YT_OFF + n*8*36864}
                buffer_store_dwordx2 {vr(208+4*ti,2)}, v{cT0}, s[{SWS}:{SWS+3}], s{sT2} offen sc1
                """)
            e("s_branch L_convdone")
        e(f"""
        L_convC:
        s_and_b32 s{sT}, s2, 3
        s_cmp_eq_u32 s{sT}, 1
        s_cbranch_scc1 L_cq1
        s_cmp_eq_u32 s{sT}, 2
        s_cbranch_scc1 L_cq2
        s_cmp_eq_u32 s{sT}, 3
        s_cbranch_scc1 L_cq3
        """)
        for qn in range(4):
            if qn: e(f"L_cq{qn}:")
            tiles = [7 - qn, qn]; nf = 8 - qn
            e(f"s_mov_b32 s42, 0\nL_cql{qn}:")
            for l in loads(0, nf, tiles[0], 0): e(l)
            e("s_waitcnt lgkmcnt(0)")
            for ti, mm, ep in rr(tiles):
                e(f"v_mfma_f32_16x16x32_bf16 {vr(ACC+4*ti,4)}, {vr(Af(0,mm),4)}, {vr(Bf(0,ep),4)}, {vr(ACC+4*ti,4)}")
            for r in (AA, BA, *AH): e(f"v_add_u32 v{r}, 64, v{r}")
            e(f"s_add_u32 s42, s42, 1\ns_cmp_lt_u32 s42, 2\ns_cbranch_scc1 L_cql{qn}")
            if qn < 3: e("s_branch L_cqd")
        e("L_cqd:")
        yaddr(130, cT2)
        e(f"""
        s_and_b32 s{sT2}, s{sW}, 3
        s_lshl_b32 s{sT2}, s{sT2}, 11
        s_add_u32 s{sT2}, s{sT2}, {CP_BASE}
        v_add_u32 v{cT0}, s{sT2}, v{L16}
        s_sub_u32 s{sT2}, 7, s{sT}
        s_bitcmp1_b32 s{sW}, 0
        s_cselect_b32 s58, s{sT}, s{sT2}
        s_lshl_b32 s{sT}, s58, 9
        s_sub_u32 s{sT}, {UR_BASE + 2*UR_SZ + 4088}, s{sT}
        ds_write_b128 v{cT0}, {vr(ACC,4)}
        ds_write_b128 v{cT0}, {vr(ACC+4,4)} offset:1024
        v_sub_u32 v{cT1}, s{sT}, v{cT2}
        ds_read_b64 {vr(ACC+8,2)}, v{cT1}
        """)
        e(f"""
        L_convdone:
        s_waitcnt lgkmcnt(0)
        """)
        g.stamp(10)
    def hook_pf():
        PF = 232
        e(f"""
        s_lshr_b32 s40, s2, 3
        s_mul_i32 s41, s40, 43
        s_lshr_b32 s41, s41, 8
        s_mul_i32 s41, s41, 6
        s_sub_u32 s41, s40, s41
        s_mul_i32 s41, s41, 192
        s_and_b32 s41, s41, 0xffffff80
        s_and_b32 s42, s2, 7
        s_lshl_b32 s42, s42, 3
        s_add_u32 s42, s42, s40
        s_sub_u32 s42, s42, 24
        s_mul_i32 s42, s42, 36864
        s_add_u32 s43, s42, 36864
        s_movk_i32 s44, 1152
        s_cmp_ge_u32 s40, 24
        s_cselect_b64 s[{SRB}:{SRB+1}], s[{pQ}:{pQ+1}], s[{pWO}:{pWO+1}]
        s_cselect_b32 s{SRB+2}, s43, {D*D*2}
        s_mov_b32 s{SRB+3}, 0x20000
        s_cselect_b32 s41, s42, s41
        s_cselect_b32 s44, 256, s44
        v_mul_u32_u24 v{PF+4}, s44, v{TID}
        s_add_u32 s42, s41, {512*1152}
        """)
        return [f"buffer_load_dword v{PF}, v{PF+4}, s[{SRB}:{SRB+3}], s41 offen",
                f"buffer_load_dword v{PF+1}, v{PF+4}, s[{SRB}:{SRB+3}], s41 offen offset:128",
                f"buffer_load_dword v{PF+2}, v{PF+4}, s[{SRB}:{SRB+3}], s42 offen",
                f"buffer_load_dword v{PF+3}, v{PF+4}, s[{SRB}:{SRB+3}], s42 offen offset:128"]
    DV = [240, 241, 242]
    sWD, sWSo = 59, 60
    def wo_setup():
        g.srd(SRB, pWO, D*D*2)
        for i in range(3):
            e(f"""
            v_add_u32 v{243}, {64*i}, v{LANE}
            v_mul_u32_u24 v{244}, 171, v{243}
            v_lshrrev_b32 v{244}, 11, v{244}
            v_mul_u32_u24 v{244}, {1152-192}, v{244}
            v_lshl_add_u32 v{DV[i]}, v{243}, 4, v{244}
            """)
        e(f"""
        s_lshr_b32 s40, s2, 3
        s_mul_i32 s41, s40, 43
        s_lshr_b32 s41, s41, 8
        s_mul_i32 s41, s41, 6
        s_sub_u32 s41, s40, s41
        s_mul_i32 s41, s41, 192
        s_cmp_ge_u32 s40, 24
        s_cselect_b32 s41, 0x40000000, s41
        s_mul_i32 s{sWD}, s{sW}, 3072
        s_mul_i32 s{sWSo}, s{sW}, {16*1152}
        s_add_u32 s{sWSo}, s{sWSo}, s41
        """)
    def wo_list():
        out = []
        for k in range(5):
            for i in range(3):
                t = f"s_add_u32 m0, s{sWD}, {k*8*3072 + i*1024}\n"
                t += (f"s_add_u32 s{sWSo}, s{sWSo}, {128*1152}\n" if (i == 0 and k) else "s_nop 0\n")
                t += f"buffer_load_dwordx4 v{DV[i]}, s[{SRB}:{SRB+3}], s{sWSo} offen lds"
                out.append(t)
        return out
    def hook_wo():
        wo_setup()
        e(f"""
        s_barrier
        s_and_b32 s37, s{sW}, 6
        s_cmp_lg_u32 s37, 4
        s_cbranch_scc1 L_cfin
        s_and_b32 s37, s{sW}, 1
        s_lshl_b32 s37, s37, 10
        s_add_u32 s37, s37, {CP_BASE}
        v_add_u32 v131, s37, v{L16}
        ds_read_b128 {vr(136,4)}, v131
        ds_read_b128 {vr(140,4)}, v131 offset:2048
        ds_read_b128 {vr(144,4)}, v131 offset:4096
        ds_read_b128 {vr(148,4)}, v131 offset:6144
        s_lshl_b32 s37, s53, 16
        s_and_b32 s38, s53, 0xffff0000
        s_bitcmp1_b32 s2, 2
        s_cselect_b32 s37, s38, s37
        s_lshr_b32 s41, s2, 2
        s_lshl_b32 s41, s41, 6
        s_mul_i32 s38, s58, {8*36864}
        s_add_u32 s41, s41, s38
        s_add_u32 s41, s41, {YT_OFF + 512*64}
        s_waitcnt lgkmcnt(0)
        """)
        for i in range(4): e(f"v_add_f32 v{136+i}, v{136+i}, v{140+i}\nv_add_f32 v{144+i}, v{144+i}, v{148+i}")
        for i in range(4): e(f"v_add_f32 v{136+i}, v{136+i}, v{144+i}")
        epi_tile(136, ACC + 8, 37, 152)
        e(f"""
        buffer_store_dwordx2 {vr(152,2)}, v130, s[{SWS}:{SWS+3}], s41 offen sc1
        L_cfin:
        """)

    base = 0
    CS = next((int(x[2:]) for x in X if x.startswith('cs')), 4)
    CC = next((int(x[2:]) for x in X if x.startswith('cc')), 8)
    def sp(l, pat):
        out = [None] * 14
        for x, p in zip(l, pat): out[p] = x
        return out
    for c in range(16):
        extra = []
        if 'fine' in X and 1 <= c <= 12: g.stamp(15 + c)
        if c == 0: extra = sp([kv1() for _ in range(9)], [0, 2, 3, 5, 6, 8, 9, 11, 13])
        if c == 1: extra = sp([kv1() for _ in range(5)], [0, 2, 3, 5, 6])
        if c == 2:
            extra = hook_ssm_load()
            if 'nossmld' in X: extra = []
        if c == 3: e(("s_waitcnt vmcnt(0)" if "nossmld" in X else "s_waitcnt vmcnt(20)") + "\ns_barrier")
        if c == CS: hook_h_ssm()
        if c == CS + 1: hook_sigU(); hook_hdma(); g.stamp(8)
        if c == CC - 1: hook_pollU(); hook_fix()
        if c == CC: hook_conv()
        if c == 10: pf = hook_pf(); extra = sp(pf[:1], [1])
        if c == 11: extra = sp(pf[1:2], [4])
        if c == 12: extra = sp(pf[2:], [8, 10])
        if c == 14:
            hook_wo(); g.stamp(11)
            wl = wo_list(); extra = sp(wl[:10], [0, 1, 3, 4, 6, 7, 8, 10, 11, 13])
        if c == 15: extra = wl[10:]
        if c - base == 4:
            for r in (AK, AV, AKX): e(f"v_add_u32 v{r}, {4*KV_CHUNK}, v{r}")
            base = c
        iteration(2 * (c - base), SA, SB, extra)
        iteration(2 * (c - base) + 1, SB, SA, extra)
        assert not extra
    e("s_waitcnt lgkmcnt(0)")
    msm(3, SB)
    g.stamp(12)
    e(f"""
    s_lshl_b32 s37, s{sW}, 2
    s_add_u32 s37, s37, {BAD_ADDR}
    v_mov_b32 v{SA+6}, s37
    s_mul_i32 s39, s{sQT}, {36*1024}
    s_lshl_b32 s46, s{sHEAD}, 10
    s_add_u32 s39, s39, {O_OFF}
    s_add_u32 s46, s46, s39
    s_lshl_b32 s47, s{sHEAD}, 7
    s_add_u32 s47, s47, s39
    s_add_u32 s47, s47, {32*1024}
    v_mov_b32 v{SA+4}, 0x7f7fffff
    s_nop 0
    v_mov_b32 v{T0}, v{O+10}
    v_mov_b32 v{T1}, v{O+10}
    v_add_f32 v{T2}, |v{O}|, |v{O+1}|
    v_add_f32 v{SA}, |v{O+2}|, |v{O+3}|
    v_permlane32_swap_b32 v{T0}, v{T1}
    v_add_f32 v{SA+1}, |v{O+4}|, |v{O+5}|
    v_add_f32 v{SA+2}, |v{O+6}|, |v{O+7}|
    v_add_f32 v{SA+3}, |v{O+8}|, |v{O+9}|
    v_add_f32 v{T2}, v{T2}, v{SA}
    v_add_f32 v{SA+1}, v{SA+1}, v{SA+2}
    v_add_f32 v{T2}, v{T2}, v{SA+1}
    v_cmp_nge_f32 vcc, 0x4e800000, v{T0}
    v_cmp_nle_f32 s[40:41], v{T2}, v{SA+4}
    v_cmp_nle_f32 s[42:43], v{SA+3}, v{SA+4}
    s_or_b64 s[40:41], vcc, s[40:41]
    v_cmp_nle_f32 vcc, 0x30800000, v{T0}
    s_or_b32 s40, s40, s42
    s_or_b64 s[40:41], vcc, s[40:41]
    s_cselect_b32 s48, 1, 0
    v_mov_b32 v{SA+5}, s48
    ds_write_b32 v{SA+6}, v{SA+5}
    """)
    def fin():
        e(f"v_rcp_f32 v{T0}, v{T0}\nv_lshlrev_b32 v{T1}, 2, v{LANE}")
        for i in range(10): e(f"v_mul_f32 v{O+i}, v{O+i}, v{T0}")
        for i in range(5): e(f"v_cvt_pk_bf16_f32 v{SA+8+i}, v{O+2*i}, v{O+2*i+1}")
        e(f"""
        buffer_store_dwordx4 {vr(SA+8,4)}, v{L16}, s[{SWS}:{SWS+3}], s46 offen sc1
        s_mov_b32 exec_hi, 0
        buffer_store_dword v{SA+12}, v{T1}, s[{SWS}:{SWS+3}], s47 offen sc1
        s_mov_b32 exec_hi, -1
        """)
    fin()
    e(f"""
    v_and_b32 v{SA+6}, 28, v{T1}
    s_waitcnt vmcnt(0) lgkmcnt(0)
    s_barrier
    ds_read_b32 v{SA+5}, v{SA+6} offset:{BAD_ADDR - 65536}
    """.replace(f"v_and_b32 v{SA+6}, 28, v{T1}", f"v_and_b32 v{SA+6}, 28, v{T1}\n    v_add_u32 v{SA+6}, 0x10000, v{SA+6}"))
    e(f"""
    s_waitcnt lgkmcnt(0)
    v_cmp_ne_u32 vcc, 0, v{SA+5}
    s_cmp_lg_u64 vcc, 0
    s_cbranch_scc1 L_slowall
    L_after:
    """)
    g.stamp(13)

    def tail():
        M = T2; sIT = 37
        e(f"""
        L_slowall:
        s_barrier
        s_lshl_b32 s{sKD}, s{sW}, 10
        s_add_u32 s{sKS}, s{sKD}, s{sKVO}
        s_mov_b32 s{sIT}, 0
        L_sa1:
        """)
        e(kv1())
        e(f"""
        s_add_u32 s{sIT}, s{sIT}, 1
        s_cmp_lt_u32 s{sIT}, 19
        s_cbranch_scc1 L_sa1
        s_waitcnt vmcnt(0)
        s_barrier
        s_cmp_eq_u32 s48, 0
        s_cbranch_scc1 L_sa2
        v_mov_b32 v{QX+1}, 0
        v_mov_b32 v{M}, 0xff800000
        s_mov_b32 s44, 0
        v_add_u32 v{AK}, {4*KV_CHUNK}, v{AK}
        v_add_u32 v{AV}, {4*KV_CHUNK}, v{AV}
        v_add_u32 v{AKX}, {4*KV_CHUNK}, v{AKX}
        L_slow_pass:
        v_subrev_u32 v{AK}, {16*KV_CHUNK}, v{AK}
        v_subrev_u32 v{AV}, {16*KV_CHUNK}, v{AV}
        v_subrev_u32 v{AKX}, {16*KV_CHUNK}, v{AKX}
        s_mov_b32 s{sIT}, 0
        L_slow_loop:
        """)
        for b in range(2):
            ldKX(b); ldK(K0, b, 0); ldK(K1, b, 1)
            for gq in range(4): ldV(gq, b)
            e("s_waitcnt lgkmcnt(0)")
            qk_simple(SA)
            e(f"s_cmp_eq_u32 s44, 0\ns_cbranch_scc0 L_slow_pv{b}")
            for i in range(0, 32, 2): e(f"v_max3_f32 v{M}, v{M}, v{SA+i}, v{SA+i+1}")
            e(f"s_branch L_slow_nx{b}\nL_slow_pv{b}:")
            for i in range(32): e(f"v_sub_f32 v{SA+i}, v{SA+i}, v{M}")
            for i in range(32): e(f"v_exp_f32 v{SA+i}, v{SA+i}")
            e("s_nop 1")
            for gq in range(4): msm(gq, SA)
            e(f"s_nop 7\nL_slow_nx{b}:")
        e(f"""
        v_add_u32 v{AK}, {KV_CHUNK}, v{AK}
        v_add_u32 v{AV}, {KV_CHUNK}, v{AV}
        v_add_u32 v{AKX}, {KV_CHUNK}, v{AKX}
        s_add_u32 s{sIT}, s{sIT}, 1
        s_cmp_lt_u32 s{sIT}, 16
        s_cbranch_scc1 L_slow_loop
        s_cmp_eq_u32 s44, 0
        s_cbranch_scc0 L_slow_done
        v_mov_b32 v{T1}, v{M}
        s_nop 1
        v_permlane32_swap_b32 v{M}, v{T1}
        v_max_f32 v{M}, v{M}, v{T1}
        """)
        for i in range(16): e(f"v_mov_b32 v{O+i}, 0")
        e(f"""
        s_mov_b32 s44, 1
        s_branch L_slow_pass
        L_slow_done:
        s_nop 11
        v_mov_b32 v{T0}, v{O+10}
        v_mov_b32 v{T1}, v{O+10}
        s_nop 1
        v_permlane32_swap_b32 v{T0}, v{T1}
        s_nop 0
        """)
        fin()
        e("L_sa2:\ns_waitcnt vmcnt(0) lgkmcnt(0)\ns_barrier")
        wo_setup()
        for l in wo_list(): e(l)
        e("s_waitcnt vmcnt(0)\ns_barrier\ns_branch L_after")
    return tail

def phase3(g):
    e, X = g.e, g.X
    OF, ACC, WF = 0, 72, 120
    WA, WX = 144, 145
    DV = [146, 147, 148]
    T0, T1, T2, T3 = 150, 151, 152, 153
    sWO, sOUT = SRB, SRC
    sTB, sFB, sT, sT2, sG, sTW, sKH, sIDX = 33, 34, 35, 36, 37, 38, 39, 40
    g.srd(sOUT, pOUT, S*1152*2)
    e(f"""
    s_lshr_b32 s{sIDX}, s2, 3
    s_and_b32 s{sT}, s2, 7
    s_cmp_lg_u32 s{sW}, 0
    s_cbranch_scc1 L_p3a
    """)
    g.signal(2)
    e(f"""
    L_p3a:
    s_cmp_ge_u32 s{sIDX}, 24
    s_cbranch_scc1 L_ssmf
    s_mul_i32 s{sT2}, s{sIDX}, 43
    s_lshr_b32 s{sT2}, s{sT2}, 8
    s_mul_i32 s{sFB}, s{sT2}, 6
    s_sub_u32 s{sFB}, s{sIDX}, s{sFB}
    s_lshl_b32 s{sTB}, s{sT}, 2
    s_add_u32 s{sTB}, s{sTB}, s{sT2}
    s_mul_i32 s45, s{sFB}, 192
    s_cmp_ge_u32 s{sW}, 4
    s_cbranch_scc1 L_endf
    s_and_b32 s{sTW}, s{sW}, 1
    s_lshr_b32 s{sKH}, s{sW}, 1
    s_lshl_b32 s46, s{sT}, 12
    s_lshl_b32 s{sT}, s{sTB}, 1
    s_add_u32 s{sT}, s{sT}, s{sTW}
    s_mul_i32 s{sT}, s{sT}, {36*1024}
    s_add_u32 s{sT}, s{sT}, {O_OFF}
    s_lshl_b32 s{sT2}, s{sKH}, 14
    s_add_u32 s43, s{sT}, s{sT2}
    s_lshl_b32 s{sT2}, s{sKH}, 11
    s_add_u32 s44, s{sT}, s{sT2}
    s_add_u32 s44, s44, 0x8000
    v_lshrrev_b32 v{T0}, 5, v{LANE}
    v_bfe_u32 v{T1}, v{LANE}, 2, 2
    v_and_b32 v{T2}, 3, v{LANE}
    v_lshlrev_b32 v{T2}, 3, v{T2}
    v_and_b32 v{T3}, 16, v{LANE}
    v_lshl_add_u32 v{T2}, v{T3}, 1, v{T2}
    v_mul_u32_u24 v{T1}, 192, v{T1}
    s_mul_i32 s{sT}, s{sKH}, {288*192}
    v_add3_u32 v{T2}, v{T2}, v{T1}, s{sT}
    v_mul_u32_u24 v{T1}, {4*192}, v{T0}
    v_add_u32 v{WA}, v{T2}, v{T1}
    v_mul_u32_u24 v{T1}, {72*192}, v{T0}
    v_add_u32 v{WX}, v{T2}, v{T1}
    v_and_b32 v{T3}, 31, v{LANE}
    v_lshlrev_b32 v{T3}, 2, v{T3}
    v_lshl_add_u32 v{T3}, v{T0}, 9, v{T3}
    s_cmp_lg_u32 s{sW}, 0
    s_cbranch_scc1 L_p3w
    """)
    e(f"""
    s_add_u32 s46, s46, {FL_OFF + 2*32768}
    v_and_b32 v4, 31, v{LANE}
    v_lshlrev_b32 v4, 7, v4
    """)
    g.poll("L_s2", 4, [46], 0)
    e("L_p3w:\ns_barrier")
    g.stamp(14)
    for i in range(16):
        if i % 4 == 0 and i: e(f"s_add_u32 s43, s43, 4096")
        e(f"buffer_load_dwordx4 {vr(OF+4*i,4)}, v{L16}, s[{SWS}:{SWS+3}], s43 offen offset:{(i%4)*1024} sc1")
    for i in range(8):
        e(f"buffer_load_dword v{OF+64+i}, v{T3}, s[{SWS}:{SWS+3}], s44 offen offset:{(i//4)*1024 + (i%4)*128} sc1")
    def ldw(ks, buf):
        for ft in range(3):
            for rd in range(2):
                if ks < 16: off = (18*ks + 2*(ks % 2) + 8*rd) * 192 + ft*64; a = WA
                else: off = (144*(ks-16) + 36*rd + 16) * 192 + ft*64; a = WX
                e(f"ds_read_b64_tr_b16 {vr(WF+12*buf+4*ft+2*rd,2)}, v{a} offset:{off}")
    ldw(0, 0)
    for ks in range(18):
        buf = ks % 2
        n = 23 - ks if ks < 16 else (4 if ks == 16 else 0)
        if ks < 17:
            ldw(ks+1, buf ^ 1)
            e(f"s_waitcnt vmcnt({n}) lgkmcnt(6)")
        else:
            e("s_waitcnt vmcnt(0) lgkmcnt(0)")
        for ft in range(3):
            c = "0" if ks == 0 else vr(ACC+16*ft,16)
            e(f"v_mfma_f32_32x32x16_bf16 {vr(ACC+16*ft,16)}, {vr(WF+12*buf+4*ft,4)}, {vr(OF+4*ks,4)}, {c}")
    g.stamp(15)
    RB = 110592
    e(f"""
    s_mul_i32 s{sT}, s{sW}, 6144
    s_xor_b32 s{sT2}, s{sW}, 2
    s_mul_i32 s{sT2}, s{sT2}, 6144
    v_add_u32 v{T3}, {RB}, v{L16}
    v_add_u32 v{T0}, s{sT}, v{T3}
    v_add_u32 v{T1}, s{sT2}, v{T3}
    s_nop 5
    s_cmp_eq_u32 s{sKH}, 0
    s_cbranch_scc0 L_kh1
    """)
    def red(kh):
        own, oth = 8*kh, 8*(1-kh)
        for ft in range(3):
            for gq in range(2):
                e(f"ds_write_b128 v{T0}, {vr(ACC+16*ft+oth+4*gq,4)} offset:{(2*ft+gq)*1024}")
        e("s_waitcnt lgkmcnt(0)\ns_barrier")
        for ft in range(3):
            for gq in range(2):
                e(f"ds_read_b128 {vr(OF+8*ft+4*gq,4)}, v{T1} offset:{(2*ft+gq)*1024}")
        for ft in range(3):
            e(f"s_waitcnt lgkmcnt({4-2*ft})")
            for i in range(8): e(f"v_add_f32 v{OF+8*ft+i}, v{OF+8*ft+i}, v{ACC+16*ft+own+i}")
    red(0)
    e("s_branch L_ost\nL_kh1:")
    red(1)
    e("L_ost:")
    for ft in range(3):
        for i in range(4): e(f"v_cvt_pk_bf16_f32 v{OF+24+4*ft+i}, v{OF+8*ft+2*i}, v{OF+8*ft+2*i+1}")
    e(f"""
    v_and_b32 v{T0}, 31, v{LANE}
    v_mul_u32_u24 v{T0}, 2304, v{T0}
    v_lshrrev_b32 v{T1}, 5, v{LANE}
    v_lshl_add_u32 v{T0}, v{T1}, 4, v{T0}
    s_lshl_b32 s{sT}, s{sTB}, 1
    s_add_u32 s{sT}, s{sT}, s{sTW}
    s_mul_i32 s{sT}, s{sT}, {32*2304}
    s_lshl_b32 s{sT2}, s{sKH}, 5
    s_add_u32 s{sT}, s{sT}, s{sT2}
    s_add_u32 s{sT}, s{sT}, s45
    """)
    for ft in range(3):
        b = OF + 24 + 4*ft
        e(f"v_permlane32_swap_b32 v{b}, v{b+2}\nv_permlane32_swap_b32 v{b+1}, v{b+3}")
    for ft in range(3):
        b = OF + 24 + 4*ft
        e(f"buffer_store_dwordx4 {vr(b,4)}, v{T0}, s[{sOUT}:{sOUT+3}], s{sT} offen offset:{ft*64}")
    g.flush()
    e("s_endpgm")
    Y, Q, OUTR = 8, 40, 72
    e(f"""
    L_ssmf:
    s_cmp_ge_u32 s{sW}, 5
    s_cbranch_scc1 L_endf
    s_lshl_b32 s{sT}, s{sT}, 3
    s_add_u32 s{sT}, s{sT}, s{sIDX}
    s_sub_u32 s{sT}, s{sT}, 24
    """)
    g.srd(SRB, pQ, S*D*2)
    e(f"""
    v_lshrrev_b32 v{T1}, 2, v{TID}
    v_and_b32 v{T0}, 3, v{TID}
    v_lshlrev_b32 v{T2}, 9, v{T1}
    v_lshl_add_u32 v{T2}, v{T0}, 4, v{T2}
    v_mul_u32_u24 v{T3}, {8*1152}, v{T0}
    v_lshl_add_u32 v{T3}, v{T1}, 4, v{T3}
    v_mul_u32_u24 v{T0}, {8*2304}, v{T0}
    v_lshl_add_u32 v{T0}, v{T1}, 4, v{T0}
    s_mul_i32 s43, s{sT}, 36864
    s_add_u32 s44, s43, {YT_OFF}
    s_add_u32 s45, s43, {4*1152}
    s_mul_i32 s{sT2}, s{sT}, {32*2304}
    s_add_u32 s{sT2}, s{sT2}, 1152
    """)
    for t in range(8):
        e(f"buffer_load_dwordx4 {vr(Q+4*t,4)}, v{T3}, s[{SRB}:{SRB+3}], s{43 if t < 4 else 45} offen offset:{(t%4)*1152}")
    e(f"s_cmp_lg_u32 s{sW}, 0\ns_cbranch_scc1 L_p3v")
    e(f"v_lshlrev_b32 v4, 7, v{LANE}")
    for i in range(4): e(f"s_mov_b32 s{46+i}, {FL_OFF + 2*32768 + 8192*i}")
    g.poll("L_s3", 4, [46, 47, 48, 49], 0)
    e(f"""
    L_p3v:
    s_barrier
    v_cmp_gt_u32 vcc, 288, v{TID}
    s_and_b64 exec, exec, vcc
    """)
    for c in range(8):
        e(f"buffer_load_dwordx4 {vr(Y+4*c,4)}, v{T2}, s[{SWS}:{SWS+3}], s44 offen offset:{64*c} sc1")
    e("s_waitcnt vmcnt(0)")
    A, B2 = 104, 108
    for t in range(8):
        for cp in range(4):
            a = A + 2 * (cp % 2); b = B2 + 2 * (cp % 2)
            e(f"v_lshlrev_b32 v{a}, 16, v{Q+4*t+cp}\nv_and_b32 v{a+1}, 0xffff0000, v{Q+4*t+cp}")
            for k in range(2):
                src = Y + 4*(2*cp+k) + t//2
                e(f"v_lshlrev_b32 v{b+k}, 16, v{src}" if t % 2 == 0 else f"v_and_b32 v{b+k}, 0xffff0000, v{src}")
            e(f"v_pk_mul_f32 {vr(a,2)}, {vr(a,2)}, {vr(b,2)}")
            e(f"v_cvt_pk_bf16_f32 v{OUTR+4*t+cp}, v{a}, v{a+1}")
        e(f"buffer_store_dwordx4 {vr(OUTR+4*t,4)}, v{T0}, s[{sOUT}:{sOUT+3}], s{sT2} offen")
        e(f"s_add_u32 s{sT2}, s{sT2}, 2304")
    e("L_endf:")
    g.flush()
    e("L_end:\ns_endpgm")

def build(X=()):
    g = G(X)
    g.e(f".globl {NAME}\n.p2align 8\n.type {NAME},@function\n{NAME}:")
    g.attn_setup = lambda: attn_setup(g)
    phase1(g)
    tail = phase2(g)
    phase3(g)
    tail()
    hdr = open("concat_heads__softmax_full_mha__ssm_conv_h3__prompt.s.ref").read().split("; Override")[0]
    s = hdr + "; @launch grid=(256,1,1) block=(512,1,1) lds=163840\n"
    s += '.amdgcn_target "amdgcn-amd-amdhsa--gfx950"\n.text\n' + g.e.text()
    s += '.section .rodata,"a"\n.p2align 6\n' + kernel_desc(NAME, 256)
    return s

if __name__ == "__main__":
    open(sys.argv[1], "w").write(build(tuple(sys.argv[2:])))
```

```python
import sys
from common import *

NAME = "concat_heads__softmax_full_mha__ssm_conv_h3__prompt_kernel"
SRA, SWS, SRB, SRC, SRD_ = 4, 8, 12, 16, 20
sW, sNONCE = 24, 25
sHEAD, sQT, sKVO = 31, 32, 51
pX, pWQ, pWO, pQ, pK, pV, pSH, pH, pD, pOUT, pDBG, pWS = range(64, 88, 2)
VST = 255
LANE, L16, TID, VN = 250, 251, 252, 253
H_BASE, H_SZ, HO_IN = 0, 8320, 4160
UR_BASE, UR_SZ = 24960, 4608
CP_BASE = 155648
BAD_ADDR = 126464 - 64

class G:
    def __init__(self, X):
        self.e = Asm(); self.X = X; self.ST = "st" in X
    def stamp(self, i):
        if self.ST: self.e(f"s_memtime s[88:89]\ns_waitcnt lgkmcnt(0)\nv_writelane_b32 v{VST}, s88, {i}")
    def rstamp(self, i):
        if self.ST: self.e(f"s_memrealtime s[88:89]\ns_waitcnt lgkmcnt(0)\nv_writelane_b32 v{VST}, s88, {i}")
    def flush(self):
        if self.ST:
            self.e("s_waitcnt vmcnt(0)")
            self.stamp(30); self.rstamp(31)
            self.e(f"""
            s_mov_b64 exec, -1
            s_lshl_b32 s88, s2, 3
            s_add_u32 s88, s88, s{sW}
            s_lshl_b32 s88, s88, 8
            s_add_u32 s88, s88, {ST_OFF}
            s_mov_b32 s{SWS+2}, 0x1000000
            v_lshlrev_b32 v0, 2, v{LANE}
            buffer_store_dword v{VST}, v0, s[{SWS}:{SWS+3}], s88 offen
            """)
    def srd(self, slot, ptr, nbytes):
        self.e(f"s_mov_b64 s[{slot}:{slot+1}], s[{ptr}:{ptr+1}]\ns_mov_b32 s{slot+2}, {nbytes}\ns_mov_b32 s{slot+3}, 0x20000")
    def signal(self, which, sidx=2):
        self.e(f"""
        s_lshl_b32 s26, s{sidx}, 7
        s_add_u32 s26, s26, {FL_OFF + which*32768}
        v_mov_b32 v{VN}, s{sNONCE}
        s_mov_b64 exec, 1
        buffer_store_dword v{VN}, v{L16}, s[{SWS}:{SWS+3}], s26 offen sc1
        s_mov_b64 exec, -1
        """)
    def poll(self, lbl, vaddr, soffs, tmp):
        e = self.e
        e(f"s_mov_b32 s30, 0\n{lbl}_poll:")
        for i, so in enumerate(soffs):
            e(f"buffer_load_dword v{tmp+i}, v{vaddr}, s[{SWS}:{SWS+3}], s{so} offen sc1")
        e("s_waitcnt vmcnt(0)")
        for i in range(len(soffs)): e(f"v_xor_b32 v{tmp+i}, s{sNONCE}, v{tmp+i}")
        for i in range(1, len(soffs)): e(f"v_or_b32 v{tmp}, v{tmp}, v{tmp+i}")
        e(f"""
        v_cmp_ne_u32 vcc, 0, v{tmp}
        s_add_u32 s30, s30, 1
        s_cmp_gt_u32 s30, 0x8000
        s_cbranch_scc1 {lbl}_pdone
        s_cmp_lg_u64 vcc, 0
        s_cbranch_scc1 {lbl}_poll
        {lbl}_pdone:
        """)

def phase1(g):
    e, X = g.e, g.X
    SLOT = 32768
    ACC = [[0, 16], [32, 48]]
    XF = [[64, 68], [72, 76]]
    WF = [[80, 84], [88, 92]]
    XA = [96, 97, 98, 99]; WA = [100, 101]
    DX = [102, 103]; DW = 104
    T0, T1, T2, T3 = 140, 141, 142, 143
    EP = 144
    sX, sWq = SRB, SRC
    sTP, sMP, sTT, sCT, sT, sT2, sT3 = 33, 34, 35, 36, 37, 38, 39
    sXO, sWO, sM0, sKB, sST = 40, 41, 42, 43, 44
    e(f"""
    s_cmp_ge_u32 s2, 256
    s_cbranch_scc1 L_end
    s_load_dwordx16 s[64:79], s[0:1], 0
    s_load_dwordx8 s[80:87], s[0:1], 64
    v_mov_b32 v{TID}, v0
    v_lshrrev_b32 v{T0}, 6, v0
    v_and_b32 v{LANE}, 63, v0
    s_and_b32 s{sT}, s2, 7
    v_readfirstlane_b32 s{sW}, v{T0}
    s_lshr_b32 s{sT2}, s2, 3
    s_lshr_b32 s{sTT}, s{sT}, 1
    s_lshl_b32 s{sTT}, s{sTT}, 2
    s_lshr_b32 s{sT3}, s{sT2}, 3
    s_add_u32 s{sTT}, s{sTT}, s{sT3}
    s_lshl_b32 s{sKB}, s{sT3}, 1
    s_and_b32 s{sCT}, s{sT}, 1
    s_lshl_b32 s{sCT}, s{sCT}, 3
    s_and_b32 s{sT3}, s{sT2}, 7
    s_add_u32 s{sCT}, s{sCT}, s{sT3}
    v_lshlrev_b32 v{L16}, 4, v{LANE}
    s_cmp_lt_u32 s{sW}, 4
    s_cbranch_scc1 L_cons
    """)
    e(f"""
    s_add_u32 s{sKB}, s{sKB}, s{sT3}
    s_cmp_ge_u32 s{sKB}, 9
    s_cselect_b32 s{sT}, 9, 0
    s_sub_u32 s{sKB}, s{sKB}, s{sT}
    s_and_b32 s{sT3}, s{sW}, 3
    v_lshrrev_b32 v{T0}, 3, v{LANE}
    s_lshl_b32 s{sT}, s{sTT}, 7
    s_lshl_b32 s{sT2}, s{sT3}, 5
    s_add_u32 s{sT}, s{sT}, s{sT2}
    v_add_u32 v{T0}, s{sT}, v{T0}
    v_mul_u32_u24 v{T0}, 1152, v{T0}
    v_lshrrev_b32 v{T1}, 4, v{LANE}
    v_and_b32 v{T2}, 7, v{LANE}
    v_xor_b32 v{T2}, v{T2}, v{T1}
    v_lshl_add_u32 v{DX[0]}, v{T2}, 4, v{T0}
    v_xor_b32 v{T2}, 4, v{T2}
    v_lshl_add_u32 v{DX[1]}, v{T2}, 4, v{T0}
    v_add_u32 v{DX[1]}, {8*1152}, v{DX[1]}
    v_and_b32 v{T2}, 15, v{LANE}
    v_lshlrev_b32 v{T3}, 2, v{T1}
    v_xor_b32 v{T2}, v{T2}, v{T3}
    v_lshrrev_b32 v{T3}, 2, v{T2}
    v_mul_u32_u24 v{T0}, 72, v{T3}
    v_bfe_u32 v{T3}, v{T2}, 1, 1
    v_mad_u32_u24 v{T0}, v{T3}, 40, v{T0}
    v_and_b32 v{T3}, 1, v{T2}
    v_lshl_add_u32 v{T0}, v{T3}, 4, v{T0}
    v_and_b32 v{T3}, 3, v{T2}
    v_mul_u32_u24 v{T3}, 72, v{T3}
    v_cmp_gt_u32 vcc, 12, v{T2}
    v_add_u32 v{T3}, 32, v{T3}
    s_lshl_b32 s{sT}, s{sT3}, 4
    v_cndmask_b32 v{T0}, v{T3}, v{T0}, vcc
    v_add_u32 v{T1}, s{sT}, v{T1}
    v_mul_u32_u24 v{T1}, 3456, v{T1}
    s_mul_i32 s{sT}, s{sCT}, 216
    v_cmp_eq_u32 vcc, 15, v{T2}
    v_add3_u32 v{DW}, v{T0}, v{T1}, s{sT}
    v_mov_b32 v{T3}, 0x40000000
    v_cndmask_b32 v{DW}, v{DW}, v{T3}, vcc
    s_lshl_b32 s{sM0}, s{sT3}, 12
    s_mov_b32 s{sX+2}, {S*D*2}
    s_mov_b32 s{sX+3}, 0x20000
    s_mov_b32 s{sWq+2}, {D*1728*2}
    s_mov_b32 s{sWq+3}, 0x20000
    s_mov_b32 s{sST}, 0
    s_waitcnt lgkmcnt(0)
    s_mov_b64 s[{sX}:{sX+1}], s[{pX}:{pX+1}]
    s_mov_b64 s[{sWq}:{sWq+1}], s[{pWQ}:{pWQ+1}]
    """)
    g.stamp(0); g.rstamp(29)
    PRE = 3 if "pre3" in X else 2
    e(f"""
    L_prod:
    s_lshl_b32 s{sXO}, s{sKB}, 7
    s_mul_i32 s{sWO}, s{sKB}, {64*3456}
    """)
    for i in range(4):
        e(f"""
        s_add_u32 m0, s{sM0}, {1024*i}
        {f"s_add_u32 s{sXO}, s{sXO}, {16*1152}" if i == 2 else "s_nop 0"}
        buffer_load_dwordx4 v{DX[i%2]}, s[{sX}:{sX+3}], s{sXO} offen lds
        s_add_u32 m0, s{sM0}, {16384 + 1024*i}
        {f"s_add_u32 s{sWO}, s{sWO}, {4*3456}" if i else "s_nop 0"}
        buffer_load_dwordx4 v{DW}, s[{sWq}:{sWq+3}], s{sWO} offen lds
        """)
    e(f"""
    s_add_u32 s{sM0}, s{sM0}, {SLOT}
    s_and_b32 s{sM0}, s{sM0}, {4*SLOT-1}
    s_add_u32 s{sKB}, s{sKB}, 1
    s_cmp_eq_u32 s{sKB}, 9
    s_cselect_b32 s{sKB}, 0, s{sKB}
    s_add_u32 s{sST}, s{sST}, 1
    s_cmp_lt_u32 s{sST}, {PRE}
    s_cbranch_scc1 L_prod
    s_waitcnt vmcnt({8*(PRE-1)})
    s_barrier
    s_cmp_lt_u32 s{sST}, 9
    s_cbranch_scc1 L_prod
    """)
    for k in range(PRE - 2, -1, -1):
        e(f"s_waitcnt vmcnt({8*k})\ns_barrier")
    g.srd(SWS, pWS, WS_USED)
    e("s_branch L_epi2")
    e(f"""
    L_cons:
    s_and_b32 s{sTP}, s{sW}, 1
    s_lshr_b32 s{sMP}, s{sW}, 1
    v_and_b32 v{T0}, 31, v{LANE}
    v_lshrrev_b32 v{T1}, 5, v{LANE}
    v_bfe_u32 v{T2}, v{LANE}, 1, 3
    v_xor_b32 v{T2}, v{T2}, v{T1}
    v_lshlrev_b32 v{T2}, 4, v{T2}
    v_lshl_add_u32 v{T2}, v{T0}, 7, v{T2}
    s_lshl_b32 s{sT}, s{sTP}, 13
    v_add_u32 v{XA[0]}, s{sT}, v{T2}
    v_xor_b32 v{XA[1]}, 32, v{XA[0]}
    v_xor_b32 v{XA[2]}, 64, v{XA[0]}
    v_xor_b32 v{XA[3]}, 0x60, v{XA[0]}
    v_bfe_u32 v{T2}, v{LANE}, 2, 2
    v_lshl_add_u32 v{T3}, v{T1}, 3, v{T2}
    v_lshlrev_b32 v{T3}, 8, v{T3}
    s_lshl_b32 s{sT}, s{sMP}, 1
    v_xor_b32 v{T2}, s{sT}, v{T2}
    v_lshl_add_u32 v{T3}, v{T2}, 6, v{T3}
    v_add_u32 v{T3}, 16384, v{T3}
    v_and_b32 v{T0}, 3, v{LANE}
    v_bfe_u32 v{T1}, v{LANE}, 4, 1
    v_lshlrev_b32 v{T1}, 5, v{T1}
    v_lshl_add_u32 v{T1}, v{T0}, 3, v{T1}
    v_add_u32 v{WA[0]}, v{T3}, v{T1}
    v_lshlrev_b32 v{T0}, 4, v{T0}
    s_cmp_eq_u32 s{sMP}, 0
    s_cselect_b64 vcc, -1, 0
    v_xor_b32 v{T3}, 64, v{T3}
    v_cndmask_b32 v{T1}, v{T0}, v{T1}, vcc
    v_add_u32 v{WA[1]}, v{T3}, v{T1}
    """)
    for i in range(0, 64, 2): e(f"v_mov_b64 {vr(i,2)}, 0")
    e("s_waitcnt lgkmcnt(0)")
    g.stamp(0); g.rstamp(29)
    g.srd(SWS, pWS, WS_USED)
    g.srd(SRA, pDBG, 256)
    e(f"""
    s_or_b32 s{sT}, s2, s{sW}
    s_cmp_lg_u32 s{sT}, 0
    s_cbranch_scc1 L_nononce
    s_memrealtime s[46:47]
    s_waitcnt lgkmcnt(0)
    s_or_b32 s46, s46, 1
    v_mov_b32 v{T0}, s46
    s_mov_b64 exec, 1
    buffer_store_dword v{T0}, v{L16}, s[{SRA}:{SRA+3}], 0 offen sc1
    s_mov_b64 exec, -1
    L_nononce:
    s_mov_b32 s{sST}, 0
    s_mov_b32 s45, {4*SLOT-1}
    s_barrier
    """)
    g.stamp(1)
    def ldfrag(ks, buf):
        out = []
        for t in range(2):
            out.append(f"ds_read_b128 {vr(XF[buf][t],4)}, v{XA[ks]} offset:{t*4096}")
            for h2 in range(2):
                out.append(f"ds_read_b64_tr_b16 {vr(WF[buf][t]+2*h2,2)}, v{WA[t]} offset:{ks*4096 + h2*1024}")
        return out
    def mf(buf, k):
        tt, mt = [(0, 0), (1, 0), (0, 1), (1, 1)][k]
        return f"v_mfma_f32_32x32x16_bf16 {vr(ACC[tt][mt],16)}, {vr(WF[buf][mt],4)}, {vr(XF[buf][tt],4)}, {vr(ACC[tt][mt],16)}"
    def adv(r): return f"v_add_u32 v{r}, {SLOT}, v{r}\nv_and_b32 v{r}, s45, v{r}"
    for l in ldfrag(0, 0): e(l)
    e(adv(XA[0]))
    e("L_gemm:")
    for ks in range(4):
        buf = ks % 2
        if ks < 3:
            ld = ldfrag(ks + 1, buf ^ 1)
            e("s_waitcnt lgkmcnt(0)")
            e(mf(buf, 0)); e(ld[0]); e(ld[1]); e(ld[2])
            e(mf(buf, 1)); e(ld[3]); e(ld[4]); e(ld[5])
            e(mf(buf, 2)); e(adv(XA[ks + 1]))
            if ks == 2: e(adv(WA[0]))
            e(mf(buf, 3))
            if ks == 2: e(adv(WA[1]))
        else:
            ld = ldfrag(0, buf ^ 1)
            e(f"""
            s_waitcnt lgkmcnt(0)
            s_add_u32 s{sST}, s{sST}, 1
            s_cmp_eq_u32 s{sST}, 9
            s_cbranch_scc1 L_gemm_last
            """)
            e(mf(buf, 0))
            e("s_barrier")
            e(ld[0]); e(ld[1]); e(ld[2])
            e(mf(buf, 1)); e(ld[3]); e(ld[4]); e(ld[5])
            e(mf(buf, 2)); e(adv(XA[0]))
            e(mf(buf, 3))
            e("s_branch L_gemm")
    e("L_gemm_last:")
    for k in range(4): e(mf(1, k))
    g.stamp(2)
    e(f"v_mov_b32 v{VN}, 0\ns_mul_i32 s{sCT}, s{sCT}, 3\nbuffer_load_dword v{VN}, v{VN}, s[{SRA}:{SRA+3}], 0 offen sc1")
    EB = 2 * SLOT
    sP, sTy = 48, 49
    VQK, VV, VX4, VX40 = XA[0], XA[1], XA[2], XA[3]
    e(f"""
    s_lshl_b32 s{sT}, s{sTP}, 11
    s_add_u32 s{sT}, s{sT}, {EB}
    v_add_u32 v{VQK}, s{sT}, v{L16}
    v_and_b32 v{T3}, 31, v{LANE}
    v_lshrrev_b32 v{T2}, 5, v{LANE}
    s_mul_i32 s{sT}, s{sTP}, 2560
    s_add_u32 s{sT}, s{sT}, {EB}
    v_mad_u32_u24 v{VX40}, v{T3}, 40, s{sT}
    v_lshl_add_u32 v{VV}, v{T2}, 4, v{VX40}
    s_lshl_b32 s{sT}, s{sTP}, 8
    s_add_u32 s{sT}, s{sT}, {EB + 4096}
    v_lshl_add_u32 v{VX4}, v{T3}, 2, s{sT}
    s_mul_i32 s50, s{sMP}, {4*5120}
    """)
    def main_tile(t):
        e(f"""
        s_lshl_b32 s{sP}, s{sMP}, 1
        s_add_u32 s{sP}, s{sP}, s{sCT}
        s_add_u32 s{sP}, s{sP}, {t}
        s_movk_i32 s{sT2}, 1024
        s_cmp_ge_u32 s{sP}, 32
        s_cselect_b64 vcc, -1, 0
        s_cselect_b32 s{sT2}, 1280, s{sT2}
        s_cmp_lt_u32 s{sP}, 16
        s_cselect_b32 s46, {f2u(QSCALE):#x}, 1.0
        v_cndmask_b32 v{T0}, v{VQK}, v{VV}, vcc
        v_add_u32 v{T0}, s50, v{T0}
        v_add_u32 v{T1}, s{sT2}, v{T0}
        s_mov_b32 s47, s46
        """)
        for tt in range(2):
            A = ACC[tt][t]; R = 64 + 16 * t + 8 * tt
            for i in range(0, 16, 2): e(f"v_pk_mul_f32 {vr(A+i,2)}, {vr(A+i,2)}, s[46:47]")
            for i in range(8): e(f"v_cvt_pk_bf16_f32 v{R+i}, v{A+2*i}, v{A+2*i+1}")
            for hd in range(2):
                for k in range(2):
                    e(f"ds_write_b64 v{(T0,T1)[tt]}, {vr(R+4*hd+2*k,2)} offset:{(2*t+hd)*5120 + 8*k}")
    main_tile(0)
    e(f"s_cmp_eq_u32 s{sMP}, 0\ns_cbranch_scc0 L_extras")
    main_tile(1)
    e("s_branch L_epi2\nL_extras:")
    DD = 80
    for k in range(4): e(f"v_mov_b32 v{DD+2*k+1}, 0x3f80")
    for j in range(3):
        e(f"""
        s_add_u32 s{sP}, s{sCT}, {j}
        s_mov_b64 exec, -1
        s_mov_b32 exec_{'hi' if j % 2 == 0 else 'lo'}, 0
        s_cmp_lt_u32 s{sP}, 16
        s_cselect_b32 s46, {f2u(QSCALE):#x}, 1.0
        s_mov_b32 s47, s46
        """)
        for tt in range(2):
            r0 = ACC[tt][1] + 4 * (j // 2)
            e(f"""
            v_pk_mul_f32 {vr(r0,2)}, {vr(r0,2)}, s[46:47]
            v_pk_mul_f32 {vr(r0+2,2)}, {vr(r0+2,2)}, s[46:47]
            v_cvt_pk_bf16_f32 v{DD+4*tt}, v{r0}, v{r0+1}
            v_cvt_pk_bf16_f32 v{DD+4*tt+2}, v{r0+2}, v{r0+3}
            """)
        e(f"s_cmp_ge_u32 s{sP}, 32\ns_cbranch_scc1 L_xv{j}")
        for tt in range(2):
            for hd in range(2):
                e(f"ds_write_b32 v{VX4}, v{DD+4*tt+2*hd} offset:{(2*j+hd)*5120 + tt*128}")
        e(f"s_branch L_xn{j}\nL_xv{j}:")
        for tt in range(2):
            for hd in range(2):
                e(f"ds_write_b64 v{VX40}, {vr(DD+4*tt+2*hd,2)} offset:{(2*j+hd)*5120 + 32 + tt*1280}")
        e(f"L_xn{j}:")
    e(f"""
    s_mov_b64 exec, -1
    L_epi2:
    s_waitcnt lgkmcnt(0)
    s_barrier
    """)
    g.stamp(3)
    e(f"""
    s_cmp_lt_u32 s{sW}, 2
    s_cbranch_scc1 L_nocopy
    s_sub_u32 s{sT3}, s{sW}, 2
    s_mul_i32 s{sT}, s{sT3}, 5120
    s_add_u32 s{sT}, s{sT}, {EB}
    v_add_u32 v{T0}, s{sT}, v{L16}
    """)
    for i in range(5): e(f"ds_read_b128 {vr(EP+4*i,4)}, v{T0} offset:{1024*i}")
    e(f"""
    s_cmp_lt_u32 s{sW}, 4
    s_cselect_b32 s{sP}, 2, 6
    s_mul_i32 s{sP}, s{sP}, s{sCT}
    s_add_u32 s{sP}, s{sP}, s{sT3}
    s_lshr_b32 s{sTy}, s{sP}, 5
    s_and_b32 s{sP}, s{sP}, 31
    s_lshl_b32 s{sP}, s{sP}, 4
    s_add_u32 s{sP}, s{sP}, s{sTT}
    s_mul_i32 s{sT}, s{sP}, {QI_BLK}
    s_mul_i32 s{sT2}, s{sP}, {KV_CHUNK}
    s_add_u32 s{sT2}, s{sT2}, {KV_OFF}
    s_cmp_eq_u32 s{sTy}, 0
    s_cselect_b32 s{sT}, s{sT}, s{sT2}
    s_cmp_eq_u32 s{sTy}, 2
    s_cselect_b32 s{sT2}, {V_IN}, 0
    s_cselect_b32 s{sT3}, -1, 0
    s_add_u32 s{sT}, s{sT}, s{sT2}
    s_add_u32 s{sT2}, s{sT}, 4096
    """)
    for i in range(4):
        e(f"s_waitcnt lgkmcnt({4-i})")
        e(f"buffer_store_dwordx4 {vr(EP+4*i,4)}, v{L16}, s[{SWS}:{SWS+3}], s{sT} offen offset:{1024*i} sc1")
    e(f"""
    s_mov_b32 exec_hi, s{sT3}
    s_waitcnt lgkmcnt(0)
    buffer_store_dwordx4 {vr(EP+16,4)}, v{L16}, s[{SWS}:{SWS+3}], s{sT2} offen sc1
    s_mov_b32 exec_hi, -1
    L_nocopy:
    """)
    e(f"""
    s_and_b32 s{sHEAD}, s2, 7
    s_lshl_b32 s{sHEAD}, s{sHEAD}, 2
    s_bfe_u32 s{sT}, s2, 0x20003
    s_add_u32 s{sHEAD}, s{sHEAD}, s{sT}
    s_lshr_b32 s{sQT}, s2, 5
    s_lshl_b32 s{sQT}, s{sQT}, 3
    s_add_u32 s{sQT}, s{sQT}, s{sW}
    s_mul_i32 s{sKVO}, s{sHEAD}, {KV_HEAD}
    s_add_u32 s{sKVO}, s{sKVO}, {KV_OFF}
    """)
    e(f"""
    s_lshl_b32 s{sT}, s2, 2
    s_load_dword s52, s[{pD}:{pD+1}], s{sT}
    s_lshr_b32 s{sT}, s2, 3
    s_lshl_b32 s{sT}, s{sT}, 2
    s_add_u32 s{sT}, s{sT}, 1024
    s_load_dword s53, s[{pD}:{pD+1}], s{sT}
    """)
    g.attn_setup()
    e(f"""
    s_cmp_lg_u32 s{sW}, 0
    s_cbranch_scc1 L_p1w
    s_mul_i32 s27, s{sCT}, 43
    s_lshr_b32 s27, s27, 7
    s_lshl_b32 s27, s27, 4
    s_add_u32 s27, s27, s{sTT}
    s_lshr_b32 s{sT}, s{sHEAD}, 1
    v_lshrrev_b32 v{T0}, 4, v{LANE}
    v_add_u32 v{T1}, 1, v{T0}
    v_cmp_gt_u32 vcc, 32, v{LANE}
    v_and_b32 v{T2}, 15, v{LANE}
    v_and_b32 v{T3}, 1, v{LANE}
    v_cndmask_b32 v{T1}, 0, v{T1}, vcc
    v_lshl_add_u32 v{T1}, v{T1}, 4, s{sT}
    v_mul_u32_u24 v{T1}, 43, v{T1}
    v_lshrrev_b32 v{T1}, 7, v{T1}
    s_lshr_b32 s{sT}, s{sQT}, 2
    v_add_u32 v{T3}, s{sT}, v{T3}
    v_cndmask_b32 v{T2}, v{T3}, v{T2}, vcc
    v_lshl_add_u32 v{T2}, v{T1}, 4, v{T2}
    v_lshlrev_b32 v{T2}, 7, v{T2}
    s_mov_b32 s28, {FL_OFF}
    s_mov_b32 s30, 0
    s_waitcnt vmcnt(0)
    L_nz:
    v_readfirstlane_b32 s{sNONCE}, v{VN}
    s_add_u32 s30, s30, 1
    s_cmp_gt_u32 s30, 0x8000
    s_cbranch_scc1 L_p1w
    s_cmp_lg_u32 s{sNONCE}, 0
    s_cbranch_scc1 L_p1w
    v_mov_b32 v{VN}, 0
    s_nop 0
    buffer_load_dword v{VN}, v{VN}, s[{SRA}:{SRA+3}], 0 offen sc1
    s_waitcnt vmcnt(0)
    s_branch L_nz
    L_p1w:
    s_waitcnt vmcnt(0) lgkmcnt(0)
    s_barrier
    """)
    g.stamp(4)
    e(f"s_cmp_lg_u32 s{sW}, 0\ns_cbranch_scc1 L_s1wait")
    g.signal(0, 27)
    g.poll("L_s1", T2, [28], T0)
    e("L_s1wait:\ns_barrier")
    g.stamp(5)

SA, SB, O, Q = 0, 32, 64, 80
K0, K1 = 84, 88
V = [92, 96, 100, 104]
QX, KX, IDX = 108, 110, 112
AK, AV, AKX = 113, 114, 115
aT0, aT1, aT2 = 117, 118, 119
sQM, sQXo = 54, 55
sKD, sKS = 56, 57

def attn_setup(g):
    e = g.e; T0, T1 = aT0, aT1
    e(f"""
    v_lshrrev_b32 v{T0}, 5, v{LANE}
    v_bfe_u32 v{T1}, v{LANE}, 2, 2
    v_lshl_add_u32 v{T0}, v{T0}, 3, v{T1}
    v_mul_u32_u24 v{AV}, 40, v{T0}
    v_and_b32 v{T0}, 1, v{LANE}
    v_lshlrev_b32 v{T0}, 4, v{T0}
    v_bfe_u32 v{T1}, v{LANE}, 1, 1
    v_lshl_add_u32 v{T0}, v{T1}, 3, v{T0}
    v_and_b32 v{T1}, 16, v{LANE}
    v_cmp_eq_u32 vcc, 0, v{T1}
    v_lshlrev_b32 v{AKX}, 2, v{LANE}
    v_mov_b32 v{AK}, v{L16}
    v_cndmask_b32 v{T0}, 32, v{T0}, vcc
    v_add_u32 v{AV}, v{AV}, v{T0}
    v_and_b32 v{T0}, 19, v{LANE}
    v_cmp_lt_u32 vcc, 16, v{T0}
    v_mov_b32 v{T1}, 0x100000
    v_mov_b32 v{KX+1}, 0x3f803f80
    v_cndmask_b32 v{AV}, v{AV}, v{T1}, vcc
    v_mov_b32 v{QX+1}, 0
    v_mov_b32 v{IDX}, 0xdddddddd
    v_and_b32 v{aT2}, 124, v{AKX}
    s_lshl_b32 s37, s{sHEAD}, 4
    s_lshr_b32 s38, s{sQT}, 2
    s_add_u32 s37, s37, s38
    s_mul_i32 s37, s37, {QI_BLK}
    s_and_b32 s38, s{sQT}, 3
    s_lshl_b32 s{sQM}, s38, 10
    s_add_u32 s{sQM}, s{sQM}, s37
    s_lshl_b32 s{sQXo}, s38, 7
    s_add_u32 s{sQXo}, s{sQXo}, s37
    s_add_u32 s{sQXo}, s{sQXo}, 4096
    s_lshl_b32 s{sKD}, s{sW}, 10
    s_add_u32 s{sKS}, s{sKD}, s{sKVO}
    s_lshr_b32 s37, s2, 5
    s_mul_i32 s37, s37, {2*KV_CHUNK}
    s_add_u32 s{sKS}, s{sKS}, s37
    s_add_u32 s61, s{sKVO}, {KV_HEAD}
    """)
    for i in range(0, 16, 2): e(f"v_mov_b64 {vr(O+i,2)}, 0")
    for i in range(0, 8, 2): e(f"v_mov_b64 {vr(SB+24+i,2)}, 0")
    e(f"v_mov_b64 {vr(V[3],2)}, 0\nv_mov_b64 {vr(V[3]+2,2)}, 0")

def phase2(g):
    e, X = g.e, g.X
    T0, T1, T2 = aT0, aT1, aT2
    def koff(b, t): return (b // 2) * KV_CHUNK + (b % 2) * 2048 + t * 1024
    def kxoff(b): return (b // 2) * KV_CHUNK + KX_IN + (b % 2) * 256
    def voff(b, gq, half): return (b // 2) * KV_CHUNK + V_IN + ((b % 2) * 64 + gq * 16 + half * 4) * 40
    def ldK(reg, b, t): e(f"ds_read_b128 {vr(reg,4)}, v{AK} offset:{koff(b,t)}")
    def ldKX(b): e(f"ds_read_b32 v{KX}, v{AKX} offset:{kxoff(b)}")
    def ldV(gq, b):
        e(f"ds_read_b64_tr_b16 {vr(V[gq],2)}, v{AV} offset:{voff(b,gq,0)}")
        e(f"ds_read_b64_tr_b16 {vr(V[gq]+2,2)}, v{AV} offset:{voff(b,gq,1)}")
    def m2b(T): e(f"v_mfma_f32_32x32x4_2b_bf16 {vr(T,32)}, {vr(KX,2)}, {vr(QX,2)}, 0")
    def mx16(T, Kr): e(f"v_mfma_f32_32x32x16_bf16 {vr(T,16)}, {vr(Kr,4)}, {vr(Q,4)}, {vr(T,16)}")
    def msm(gq, P): e(f"v_smfmac_f32_32x32x32_bf16 {vr(O,16)}, {vr(V[gq],4)}, {vr(P+8*gq,8)}, v{IDX}")
    def qk_simple(T):
        m2b(T)
        e("s_nop 15\ns_nop 1")
        mx16(T, K0); mx16(T + 16, K1)
        e("s_nop 11")
    def kv1():
        return f"""s_mov_b32 m0, s{sKD}
        s_add_u32 s{sKD}, s{sKD}, 8192
        buffer_load_dwordx4 v{L16}, s[{SWS}:{SWS+3}], s{sKS} offen sc1 lds
        s_add_u32 s{sKS}, s{sKS}, 8192
        s_cmp_ge_u32 s{sKS}, s61
        s_cselect_b32 s62, {KV_HEAD}, 0
        s_sub_u32 s{sKS}, s{sKS}, s62"""
    NK0 = 5
    e(kv1())
    e(f"""
    buffer_load_dwordx4 {vr(Q,4)}, v{L16}, s[{SWS}:{SWS+3}], s{sQM} offen sc1
    buffer_load_dword v{QX}, v{T2}, s[{SWS}:{SWS+3}], s{sQXo} offen sc1
    """)
    for n in range(1, NK0): e(kv1())
    e(f"s_waitcnt vmcnt({NK0-1})\ns_barrier")
    g.stamp(6)
    ldKX(0); ldK(K0, 0, 0); ldK(K1, 0, 1)
    ldV(0, 0); ldV(1, 0); ldV(2, 0)
    e("s_waitcnt lgkmcnt(8)")
    m2b(SA)
    e("s_nop 15\ns_nop 0\ns_waitcnt lgkmcnt(6)")
    mx16(SA, K0); mx16(SA + 16, K1)
    e("s_nop 10")
    e(f"v_max3_f32 v{T0}, v{SA}, v{SA+1}, v{SA+2}")
    e(f"v_max3_f32 v{T1}, v{SA+3}, v{SA+4}, v{SA+5}")
    for i in range(6, 30, 4):
        e(f"v_max3_f32 v{T0}, v{T0}, v{SA+i}, v{SA+i+1}")
        e(f"v_max3_f32 v{T1}, v{T1}, v{SA+i+2}, v{SA+i+3}")
    e(f"v_max3_f32 v{T0}, v{T0}, v{SA+30}, v{SA+31}")
    e(f"""
    v_max_f32 v{T0}, v{T0}, v{T1}
    v_mov_b32 v{T1}, v{T0}
    s_nop 1
    v_permlane32_swap_b32 v{T0}, v{T1}
    v_max_f32 v{T0}, v{T0}, v{T1}
    v_cvt_pk_bf16_f32 v{T1}, -v{T0}, -v{T0}
    v_and_b32 v{T2}, 0xffff0000, v{T1}
    v_sub_f32 v{T2}, -v{T0}, v{T2}
    v_cvt_pk_bf16_f32 v{QX+1}, -v{T0}, v{T2}
    s_nop 1
    """)
    qk_simple(SA)
    ldKX(1); ldK(K0, 1, 0); ldK(K1, 1, 1)
    e("s_waitcnt vmcnt(0) lgkmcnt(0)\ns_barrier")
    g.stamp(7)

    def iteration(b, Sx, Tx, extra):
        ev = {
            2: lambda: (e("s_waitcnt lgkmcnt(6)"), msm(3, Tx), ldV(3, b)),
            6: lambda: (m2b(Tx), ldKX(b + 2)),
            14: lambda: (msm(0, Sx), ldV(0, b + 1)),
            18: lambda: (e("s_waitcnt lgkmcnt(5)"), msm(1, Sx), ldV(1, b + 1)),
            22: lambda: (mx16(Tx, K0), ldK(K0, b + 2, 0)),
            26: lambda: (msm(2, Sx), ldV(2, b + 1)),
            30: lambda: (mx16(Tx + 16, K1), ldK(K1, b + 2, 1)),
        }
        for i in range(32):
            if i in ev:
                ev[i]()
                if extra:
                    x = extra.pop(0)
                    if x: e(x)
            e(f"v_exp_f32 v{Sx+i}, v{Sx+i}")

    KR, VRg, WR, A1, A2, A3, A0 = 120, 131, 140, 144, 145, 146, 147
    KF, WFp, U, VT, OUT = 148, 170, 178, 194, 200
    H01 = 208
    def hook_ssm_load():
        if "prio" in X:
            e(f"s_cmp_lt_u32 s{sW}, 4\ns_cbranch_scc1 L_np\ns_setprio 1\nL_np:")
        e(f"""
        s_cmp_ge_u32 s{sW}, 5
        s_cbranch_scc1 L_hs1
        s_cmp_eq_u32 s{sW}, 4
        s_cbranch_scc1 L_hs0
        s_mov_b32 s37, 0
        L_kvl:
        s_mov_b32 m0, s{sKD}
        s_add_u32 s{sKD}, s{sKD}, 4096
        buffer_load_dwordx4 v{L16}, s[{SWS}:{SWS+3}], s{sKS} offen sc1 lds
        s_add_u32 s{sKS}, s{sKS}, 4096
        s_cmp_ge_u32 s{sKS}, s61
        s_cselect_b32 s62, {KV_HEAD}, 0
        s_sub_u32 s{sKS}, s{sKS}, s62
        s_add_u32 s37, s37, 1
        s_cmp_lt_u32 s37, 28
        s_cbranch_scc1 L_kvl
        """)
        g.stamp(16)
        if "nossm" in X: e("s_branch L_hs1")
        e(f"""
        L_hs0:
        s_lshr_b32 s37, s2, 2
        s_mul_i32 s37, s37, {32*1152}
        s_and_b32 s38, s2, 3
        s_mul_i32 s39, s38, 288
        s_add_u32 s37, s37, s39
        s_mul_i32 s38, s38, 1152
        v_lshrrev_b32 v{A0}, 2, v{TID}
        v_and_b32 v{A1}, 3, v{TID}
        v_sub_u32 v{A1}, 3, v{A1}
        v_mul_u32_u24 v{A1}, {8*1152}, v{A1}
        v_lshl_add_u32 v{A2}, v{A0}, 2, v{A1}
        v_cmp_gt_u32 vcc, 288, v{TID}
        v_add_u32 v{A2}, s37, v{A2}
        v_mov_b32 v{A3}, 0x40000000
        v_cndmask_b32 v{A2}, v{A3}, v{A2}, vcc
        v_lshl_add_u32 v{A0}, v{A0}, 4, s38
        v_subrev_u32 v{A1}, {3*1152}, v{A2}
        v_add_u32 v{A3}, {4*1152}, v{A2}
        """)
        g.srd(SRB, pK, S*D*2); g.srd(SRC, pV, S*D*2); g.srd(SRD_, pSH, D*8)
        l = [f"buffer_load_dwordx4 {vr(WR,4)}, v{A0}, s[{SRD_}:{SRD_+3}], 0 offen"]
        for j in range(3): l.append(f"buffer_load_dword v{KR+j}, v{A1}, s[{SRB}:{SRB+3}], 0 offen offset:{j*1152}")
        for j in range(8):
            a = A2 if j < 4 else A3
            l.append(f"buffer_load_dword v{KR+3+j}, v{a}, s[{SRB}:{SRB+3}], 0 offen offset:{(j%4)*1152}")
            l.append(f"buffer_load_dword v{VRg+j}, v{a}, s[{SRC}:{SRC+3}], 0 offen offset:{(j%4)*1152}")
        for x in l: e(x)
        g.stamp(17)
        e("L_hs1:")
    def hook_h_ssm():
        e(f"""
        s_cmp_ge_u32 s{sW}, 5
        s_cbranch_scc1 L_hs3
        v_lshrrev_b32 v{A0}, 2, v{TID}
        v_and_b32 v{A1}, 3, v{TID}
        v_lshlrev_b32 v{A0}, 7, v{A0}
        v_lshl_add_u32 v{A0}, v{A1}, 4, v{A0}
        v_cmp_gt_u32 vcc, 288, v{TID}
        v_mov_b32 v{A3}, 0x40000000
        s_mul_i32 s37, s2, 9216
        s_add_u32 s37, s37, {UT_OFF}
        v_cndmask_b32 v{A0}, v{A3}, v{A0}, vcc
        s_waitcnt vmcnt(0)
        """)
        for j in range(4):
            for ch in range(2):
                src = WR + 2*ch + j//2
                e(f"v_lshlrev_b32 v{WFp+2*j+ch}, 16, v{src}" if j % 2 == 0 else f"v_and_b32 v{WFp+2*j+ch}, 0xffff0000, v{src}")
        for j in range(11):
            e(f"v_lshlrev_b32 v{KF+2*j}, 16, v{KR+j}\nv_and_b32 v{KF+2*j+1}, 0xffff0000, v{KR+j}")
        for t in range(8):
            u = vr(U+2*t, 2)
            e(f"""
            v_pk_mul_f32 {u}, {vr(KF+2*t,2)}, {vr(WFp+6,2)}
            v_lshlrev_b32 v{VT+2*(t%2)}, 16, v{VRg+t}
            v_pk_fma_f32 {u}, {vr(KF+2*(t+1),2)}, {vr(WFp+4,2)}, {u}
            v_and_b32 v{VT+2*(t%2)+1}, 0xffff0000, v{VRg+t}
            v_pk_fma_f32 {u}, {vr(KF+2*(t+2),2)}, {vr(WFp+2,2)}, {u}
            v_pk_fma_f32 {u}, {vr(KF+2*(t+3),2)}, {vr(WFp+0,2)}, {u}
            v_pk_mul_f32 {u}, {u}, {vr(VT+2*(t%2),2)}
            """)
        for ch in range(2):
            for j in range(4):
                e(f"v_cvt_pk_bf16_f32 v{OUT+4*ch+j}, v{U+2*(7-2*j)+ch}, v{U+2*(6-2*j)+ch}")
        e(f"""
        buffer_store_dwordx4 {vr(OUT,4)}, v{A0}, s[{SWS}:{SWS+3}], s37 offen sc1
        buffer_store_dwordx4 {vr(OUT+4,4)}, v{A0}, s[{SWS}:{SWS+3}], s37 offen offset:64 sc1
        L_hs3:
        """)
    def hook_hdma():
        e(f"s_cmp_ge_u32 s{sW}, 4\ns_cbranch_scc1 L_hd1")
        g.srd(SRD_, pH, D*S*2)
        e(f"""
        s_lshl_b32 s44, s{sW}, 10
        s_lshl_b32 s46, s2, 13
        s_lshr_b32 s47, s2, 2
        s_add_u32 s47, s47, 512
        s_lshl_b32 s47, s47, 12
        s_add_u32 s37, s46, s44
        s_add_u32 s38, s37, 4096
        s_add_u32 s39, s47, s44
        """)
        for cp in (1, 0):
            for n in range(3):
                e(f"""
                s_add_u32 m0, s44, {H_BASE + n*H_SZ + cp*HO_IN + 32}
                {"s_nop 0" if cp else f"s_add_u32 s{37+n}, s{37+n}, 2"}
                buffer_load_dwordx4 v{L16}, s[{SRD_}:{SRD_+3}], s{37+n} offen lds
                """)
        e(f"""
        v_mov_b32 v{A1}, s47
        v_lshlrev_b32 v{A0}, 11, v{LANE}
        v_and_b32 v{A0}, 4096, v{A0}
        v_cmp_gt_u32 vcc, 4, v{LANE}
        v_add_u32 v{A0}, s46, v{A0}
        s_nop 0
        v_cndmask_b32 v{A0}, v{A1}, v{A0}, vcc
        buffer_load_dword v{H01}, v{A0}, s[{SRD_}:{SRD_+3}], 0 offen
        L_hd1:
        """)
    def hook_sigU():
        e(f"""
        s_waitcnt vmcnt(0) lgkmcnt(9)
        s_barrier
        s_cmp_lg_u32 s{sW}, 0
        s_cbranch_scc1 L_hu2
        """)
        g.signal(1)
        e("L_hu2:")
    def hook_fix():
        e(f"""
        s_sub_u32 s37, s{sW}, 1
        s_cmp_ge_u32 s37, 2
        s_cbranch_scc1 L_hu1
        s_waitcnt vmcnt(0)
        v_mov_b64 {vr(OUT,2)}, 0
        v_mov_b64 {vr(OUT+2,2)}, 0
        s_cmp_eq_u32 s{sW}, 2
        s_cbranch_scc1 L_hfix
        v_and_b32 v{A0}, {31*16}, v{L16}
        ds_write_b128 v{A0}, {vr(OUT,4)} offset:{UR_BASE + 4096}
        ds_write_b128 v{A0}, {vr(OUT,4)} offset:{UR_BASE + 4096 + UR_SZ}
        ds_write_b128 v{A0}, {vr(OUT,4)} offset:{UR_BASE + 4096 + 2*UR_SZ}
        s_branch L_hu1
        L_hfix:
        v_mul_u32_u24 v{A0}, {HO_IN}, v{LANE}
        v_and_b32 v{A1}, 1, v{LANE}
        v_cmp_eq_u32 vcc, 0, v{A1}
        v_mov_b64 {vr(OUT+4,2)}, 0
        v_mov_b32 v{OUT+6}, 0
        v_lshlrev_b32 v{A1}, 16, v{H01}
        v_cndmask_b32 v{OUT+7}, 0, v{A1}, vcc
        s_mov_b64 exec, 63
        ds_write_b128 v{A0}, {vr(OUT,4)} offset:{H_BASE}
        ds_write_b128 v{A0}, {vr(OUT+4,4)} offset:{H_BASE+16}
        s_mov_b64 exec, -1
        L_hu1:
        """)
    def hook_pollU():
        e(f"""
        s_cmp_lg_u32 s{sW}, 0
        s_cbranch_scc1 L_hp1
        s_mul_i32 s27, s2, 911
        s_lshr_b32 s27, s27, 16
        s_lshl_b32 s27, s27, 7
        s_add_u32 s27, s27, {FL_OFF + 32768}
        s_mov_b32 s28, {FL_OFF + 32768 + 3*128}
        v_lshlrev_b32 v{A0}, 9, v{LANE}
        """)
        g.poll("L_su", A0, [27, 28], A1)
        e(f"""
        v_lshrrev_b32 v{A0}, 2, v{LANE}
        v_sub_u32 v{A0}, 15, v{A0}
        v_mul_u32_u24 v{A0}, 36864, v{A0}
        v_and_b32 v{A1}, 48, v{L16}
        v_add_u32 v{A0}, v{A0}, v{A1}
        s_lshl_b32 s37, s2, 7
        s_lshr_b32 s38, s2, 2
        s_lshl_b32 s38, s38, 6
        """)
        for n in range(3):
            for p in range(4):
                base = UT_OFF + (48 - 16*p) * 36864 + (64 if n == 1 else 0) + (512*64 if n == 2 else 0)
                e(f"""
                s_mov_b32 m0, {UR_BASE + n*UR_SZ + p*1024}
                s_add_u32 s39, s{38 if n == 2 else 37}, {base}
                buffer_load_dwordx4 v{A0}, s[{SWS}:{SWS+3}], s39 offen sc1 lds
                """)
        e("L_hp1:")
    ACC = 120
    def Af(buf, m): return (136 if buf == 0 else 200) + 4*m
    def Bf(buf, ep): return 168 + 4*ep if buf == 0 else (232 + 4*ep if ep < 4 else 32 + 4*(ep-4))
    AA, BA, cT0, cT1, cT2 = 48, 49, 50, 51, 52
    AH = [53, 54, 55]
    def loads(buf, nf, top, roff):
        out = []
        for m in range(nf):
            base = AA if m < 2 else AH[m // 2 - 1]
            o = ((m % 2) * 512 + roff) // 4
            out.append(f"ds_read2_b32 {vr(Af(buf,m),2)}, v{base} offset0:{o} offset1:{o+1}")
            out.append(f"ds_read2_b32 {vr(Af(buf,m)+2,2)}, v{base} offset0:{o+2} offset1:{o+3}")
            ep = top - m
            out.append(f"ds_read_b128 {vr(Bf(buf,ep),4)}, v{BA} offset:{(7-ep)*512 + roff}")
        return out
    def epi_tile(acc, ur, sD, dst):
        e(f"""
        v_and_b32 v{dst+2}, 0xffff0000, v{ur+1}
        v_lshlrev_b32 v{dst+3}, 16, v{ur+1}
        v_fmac_f32 v{acc}, s{sD}, v{dst+2}
        v_fmac_f32 v{acc+1}, s{sD}, v{dst+3}
        v_and_b32 v{dst+2}, 0xffff0000, v{ur}
        v_lshlrev_b32 v{dst+3}, 16, v{ur}
        v_fmac_f32 v{acc+2}, s{sD}, v{dst+2}
        v_fmac_f32 v{acc+3}, s{sD}, v{dst+3}
        v_cvt_pk_bf16_f32 v{dst}, v{acc}, v{acc+1}
        v_cvt_pk_bf16_f32 v{dst+1}, v{acc+2}, v{acc+3}
        """)
    def rr(tiles):
        per = [[(ti, mm, n - mm) for mm in range(n + 1)] for ti, n in enumerate(tiles)]
        out = []
        while any(per):
            for p in per:
                if p: out.append(p.pop(0))
        return out
    def yaddr(d, t):
        e(f"""
        v_and_b32 v{d}, 15, v{LANE}
        v_lshrrev_b32 v{t}, 4, v{LANE}
        v_lshlrev_b32 v{t}, 3, v{t}
        v_lshl_add_u32 v{t}, v{d}, 5, v{t}
        v_lshrrev_b32 v{d}, 1, v{d}
        v_mul_u32_u24 v{d}, 36864, v{d}
        v_and_or_b32 v{d}, v{t}, 63, v{d}
        """)
    def hook_conv():
        sT, sT2, sL, sC = 37, 38, 39, 41
        e(f"""
        s_waitcnt vmcnt(0) lgkmcnt(0)
        s_barrier
        """)
        g.stamp(9)
        e(f"""
        s_cmp_ge_u32 s{sW}, 4
        s_cbranch_scc1 L_convdone
        v_and_b32 v{cT0}, 15, v{LANE}
        v_lshrrev_b32 v{cT1}, 4, v{LANE}
        v_lshlrev_b32 v{cT2}, 1, v{cT0}
        v_lshl_add_u32 v248, v{cT1}, 4, v{cT2}
        v_and_b32 v{cT2}, 1, v{cT0}
        v_mul_u32_u24 v{cT2}, {HO_IN + 2}, v{cT2}
        v_add_u32 v248, v248, v{cT2}
        v_sub_u32 v{cT0}, 15, v{cT0}
        v_lshlrev_b32 v{cT0}, 5, v{cT0}
        v_lshl_add_u32 v249, v{cT1}, 4, v{cT0}
        s_lshr_b32 s{sT}, s{sW}, 1
        s_mul_i32 s40, s{sT}, {H_SZ}
        s_mul_i32 s{sL}, s{sT}, {UR_SZ}
        s_add_u32 s{sL}, s{sL}, {UR_BASE}
        v_add_u32 v{AA}, s40, v248
        v_add_u32 v{BA}, s{sL}, v249
        """)
        for k in range(3): e(f"v_add_u32 v{AH[k]}, {1024*(k+1)}, v{AA}")
        for i in range(0, 16, 2): e(f"v_mov_b64 {vr(ACC+i,2)}, 0")
        e(f"s_bitcmp1_b32 s{sW}, 0\ns_cbranch_scc1 L_set1")
        for si, tiles in enumerate(([7, 6, 1, 0], [5, 4, 3, 2])):
            nf = max(tiles) + 1; top = tiles[0]
            if si: e("L_set1:")
            mfl = rr(tiles)
            for l in loads(0, nf, top, 0): e(l)
            e(f"s_mov_b32 s42, 0\nL_cl{si}:")
            for r in range(2):
                buf = r
                nxt = loads(buf ^ 1, nf, top, 64 * (r + 1))
                e("s_waitcnt lgkmcnt(0)")
                for k, (ti, mm, ep) in enumerate(mfl):
                    e(f"v_mfma_f32_16x16x32_bf16 {vr(ACC+4*ti,4)}, {vr(Af(buf,mm),4)}, {vr(Bf(buf,ep),4)}, {vr(ACC+4*ti,4)}")
                    for _ in range(2):
                        if nxt: e(nxt.pop(0))
                assert not nxt
            for r in (AA, BA, *AH): e(f"v_add_u32 v{r}, 128, v{r}")
            e(f"""
            s_add_u32 s42, s42, 1
            s_cmp_lt_u32 s42, 4
            s_cbranch_scc1 L_cl{si}
            """)
            yaddr(cT0, cT2)
            e(f"""
            v_sub_u32 v{AA}, 504, v{cT2}
            v_add_u32 v{AA}, s{sL}, v{AA}
            s_waitcnt lgkmcnt(0)
            """)
            for ti, n in enumerate(tiles): e(f"ds_read_b64 {vr(200+2*ti,2)}, v{AA} offset:{3584-512*n}")
            e(f"""
            s_lshl_b32 s{sT}, s52, 16
            s_and_b32 s{sT2}, s52, 0xffff0000
            s_bitcmp1_b32 s{sW}, 1
            s_cselect_b32 s{sT}, s{sT2}, s{sT}
            s_cselect_b32 s{sT2}, 64, 0
            s_lshl_b32 s{sC}, s2, 7
            s_add_u32 s{sC}, s{sC}, s{sT2}
            s_waitcnt lgkmcnt(0)
            """)
            for ti, n in enumerate(tiles):
                epi_tile(ACC + 4*ti, 200 + 2*ti, sT, 208 + 4*ti)
                e(f"""
                s_add_u32 s{sT2}, s{sC}, {YT_OFF + n*8*36864}
                buffer_store_dwordx2 {vr(208+4*ti,2)}, v{cT0}, s[{SWS}:{SWS+3}], s{sT2} offen sc1
                """)
            if si == 0: e("s_branch L_convC")
        e(f"""
        L_convC:
        s_lshl_b32 s{sT2}, s{sW}, 7
        s_add_u32 s40, s{sT2}, {H_BASE + 2*H_SZ}
        s_add_u32 s{sT2}, s{sT2}, {UR_BASE + 2*UR_SZ}
        v_add_u32 v{AA}, s40, v248
        v_add_u32 v{BA}, s{sT2}, v249
        v_mov_b32 v130, v{cT0}
        """)
        for k in range(3): e(f"v_add_u32 v{AH[k]}, {1024*(k+1)}, v{AA}")
        for i in range(0, 8, 2): e(f"v_mov_b64 {vr(ACC+i,2)}, 0")
        e(f"""
        s_and_b32 s{sT}, s2, 3
        s_cmp_eq_u32 s{sT}, 1
        s_cbranch_scc1 L_cq1
        s_cmp_eq_u32 s{sT}, 2
        s_cbranch_scc1 L_cq2
        s_cmp_eq_u32 s{sT}, 3
        s_cbranch_scc1 L_cq3
        """)
        for qn in range(4):
            if qn: e(f"L_cq{qn}:")
            tiles = [7 - qn, qn]; nf = 8 - qn
            e(f"s_mov_b32 s42, 0\nL_cql{qn}:")
            for l in loads(0, nf, tiles[0], 0): e(l)
            e("s_waitcnt lgkmcnt(0)")
            for ti, mm, ep in rr(tiles):
                e(f"v_mfma_f32_16x16x32_bf16 {vr(ACC+4*ti,4)}, {vr(Af(0,mm),4)}, {vr(Bf(0,ep),4)}, {vr(ACC+4*ti,4)}")
            for r in (AA, BA, *AH): e(f"v_add_u32 v{r}, 64, v{r}")
            e(f"s_add_u32 s42, s42, 1\ns_cmp_lt_u32 s42, 2\ns_cbranch_scc1 L_cql{qn}")
            if qn < 3: e("s_branch L_cqd")
        e(f"""
        L_cqd:
        s_lshl_b32 s{sT2}, s{sW}, 11
        s_add_u32 s{sT2}, s{sT2}, {CP_BASE}
        v_add_u32 v{cT0}, s{sT2}, v{L16}
        s_sub_u32 s{sT2}, 7, s{sT}
        s_bitcmp1_b32 s{sW}, 0
        s_cselect_b32 s58, s{sT}, s{sT2}
        s_lshl_b32 s{sT}, s58, 9
        s_sub_u32 s{sT}, {UR_BASE + 2*UR_SZ + 4088}, s{sT}
        ds_write_b128 v{cT0}, {vr(ACC,4)}
        ds_write_b128 v{cT0}, {vr(ACC+4,4)} offset:1024
        v_sub_u32 v{cT1}, s{sT}, v{cT2}
        ds_read_b64 {vr(ACC+8,2)}, v{cT1}
        s_waitcnt lgkmcnt(0)
        L_convdone:
        """)
        g.stamp(10)
    def hook_pf():
        PF = 232
        e(f"""
        s_lshr_b32 s40, s2, 3
        s_mul_i32 s41, s40, 43
        s_lshr_b32 s41, s41, 8
        s_mul_i32 s41, s41, 6
        s_sub_u32 s41, s40, s41
        s_mul_i32 s41, s41, 192
        s_and_b32 s41, s41, 0xffffff80
        s_and_b32 s42, s2, 7
        s_lshl_b32 s42, s42, 3
        s_add_u32 s42, s42, s40
        s_sub_u32 s42, s42, 24
        s_mul_i32 s42, s42, 36864
        s_add_u32 s43, s42, 36864
        s_movk_i32 s44, 1152
        s_cmp_ge_u32 s40, 24
        s_cselect_b64 s[{SRB}:{SRB+1}], s[{pQ}:{pQ+1}], s[{pWO}:{pWO+1}]
        s_cselect_b32 s{SRB+2}, s43, {D*D*2}
        s_mov_b32 s{SRB+3}, 0x20000
        s_cselect_b32 s41, s42, s41
        s_cselect_b32 s44, 256, s44
        v_mul_u32_u24 v{PF+4}, s44, v{TID}
        s_add_u32 s42, s41, {512*1152}
        """)
        return [f"buffer_load_dword v{PF}, v{PF+4}, s[{SRB}:{SRB+3}], s41 offen",
                f"buffer_load_dword v{PF+1}, v{PF+4}, s[{SRB}:{SRB+3}], s41 offen offset:128",
                f"buffer_load_dword v{PF+2}, v{PF+4}, s[{SRB}:{SRB+3}], s42 offen",
                f"buffer_load_dword v{PF+3}, v{PF+4}, s[{SRB}:{SRB+3}], s42 offen offset:128"]
    DV = [240, 241, 242]
    sWD, sWSo = 59, 60
    def wo_setup():
        g.srd(SRB, pWO, D*D*2)
        for i in range(3):
            e(f"""
            v_add_u32 v{243}, {64*i}, v{LANE}
            v_mul_u32_u24 v{244}, 171, v{243}
            v_lshrrev_b32 v{244}, 11, v{244}
            v_mul_u32_u24 v{244}, {1152-192}, v{244}
            v_lshl_add_u32 v{DV[i]}, v{243}, 4, v{244}
            """)
        e(f"""
        s_lshr_b32 s40, s2, 3
        s_mul_i32 s41, s40, 43
        s_lshr_b32 s41, s41, 8
        s_mul_i32 s41, s41, 6
        s_sub_u32 s41, s40, s41
        s_mul_i32 s41, s41, 192
        s_cmp_ge_u32 s40, 24
        s_cselect_b32 s41, 0x40000000, s41
        s_mul_i32 s{sWD}, s{sW}, 3072
        s_mul_i32 s{sWSo}, s{sW}, {16*1152}
        s_add_u32 s{sWSo}, s{sWSo}, s41
        """)
    def wo_list():
        out = []
        for k in range(5):
            for i in range(3):
                t = f"s_add_u32 m0, s{sWD}, {k*8*3072 + i*1024}\n"
                t += (f"s_add_u32 s{sWSo}, s{sWSo}, {128*1152}\n" if (i == 0 and k) else "s_nop 0\n")
                t += f"buffer_load_dwordx4 v{DV[i]}, s[{SRB}:{SRB+3}], s{sWSo} offen lds"
                out.append(t)
        return out
    def hook_wo():
        wo_setup()
        e(f"""
        s_barrier
        s_cmp_ge_u32 s{sW}, 2
        s_cbranch_scc1 L_cfin
        s_and_b32 s37, s{sW}, 1
        s_lshl_b32 s37, s37, 10
        s_add_u32 s37, s37, {CP_BASE}
        v_add_u32 v131, s37, v{L16}
        ds_read_b128 {vr(136,4)}, v131
        ds_read_b128 {vr(140,4)}, v131 offset:2048
        ds_read_b128 {vr(144,4)}, v131 offset:4096
        ds_read_b128 {vr(148,4)}, v131 offset:6144
        s_lshl_b32 s37, s53, 16
        s_and_b32 s38, s53, 0xffff0000
        s_bitcmp1_b32 s2, 2
        s_cselect_b32 s37, s38, s37
        s_lshr_b32 s41, s2, 2
        s_lshl_b32 s41, s41, 6
        s_mul_i32 s38, s58, {8*36864}
        s_add_u32 s41, s41, s38
        s_add_u32 s41, s41, {YT_OFF + 512*64}
        s_waitcnt lgkmcnt(0)
        """)
        for i in range(4): e(f"v_add_f32 v{136+i}, v{136+i}, v{140+i}\nv_add_f32 v{144+i}, v{144+i}, v{148+i}")
        for i in range(4): e(f"v_add_f32 v{136+i}, v{136+i}, v{144+i}")
        epi_tile(136, ACC + 8, 37, 152)
        e(f"""
        buffer_store_dwordx2 {vr(152,2)}, v130, s[{SWS}:{SWS+3}], s41 offen sc1
        L_cfin:
        """)

    base = 0
    CS = next((int(x[2:]) for x in X if x.startswith('cs')), 4)
    CC = next((int(x[2:]) for x in X if x.startswith('cc')), 8)
    def sp(l, pat):
        out = [None] * 14
        for x, p in zip(l, pat): out[p] = x
        return out
    for c in range(16):
        extra = []
        if 'fine' in X and 1 <= c <= 12: g.stamp(15 + c)
        if c == 0: hook_ssm_load()
        if c == 3:
            g.stamp(18)
            e(("s_waitcnt vmcnt(0)" if "nossm" in X else "s_waitcnt vmcnt(20)") + "\ns_barrier")
            g.stamp(19)
        if "nossm" in X and c >= 3:
            if c == 14: wo_setup(); e("s_barrier"); g.stamp(11); wl = wo_list(); extra = sp(wl[:10], [0, 1, 3, 4, 6, 7, 8, 10, 11, 13])
            if c == 15: extra = wl[10:]
            if c == 10: pf = hook_pf(); extra = sp(pf[:1], [1])
            if c == 11: extra = sp(pf[1:2], [4])
            if c == 12: extra = sp(pf[2:], [8, 10])
            if c - base == 4:
                for r in (AK, AV, AKX): e(f"v_add_u32 v{r}, {4*KV_CHUNK}, v{r}")
                base = c
            iteration(2 * (c - base), SA, SB, extra)
            iteration(2 * (c - base) + 1, SB, SA, extra)
            continue
        if c == CS: hook_h_ssm()
        if c == CS + 1: hook_sigU(); hook_hdma(); g.stamp(8)
        if c == CC - 1: hook_pollU(); hook_fix()
        if c == CC: hook_conv()
        if c == 10: pf = hook_pf(); extra = sp(pf[:1], [1])
        if c == 11: extra = sp(pf[1:2], [4])
        if c == 12: extra = sp(pf[2:], [8, 10])
        if c == 14:
            hook_wo(); g.stamp(11)
            wl = wo_list(); extra = sp(wl[:10], [0, 1, 3, 4, 6, 7, 8, 10, 11, 13])
        if c == 15: extra = wl[10:]
        if c - base == 4:
            for r in (AK, AV, AKX): e(f"v_add_u32 v{r}, {4*KV_CHUNK}, v{r}")
            base = c
        iteration(2 * (c - base), SA, SB, extra)
        iteration(2 * (c - base) + 1, SB, SA, extra)
        assert not extra
    e("s_waitcnt lgkmcnt(0)")
    msm(3, SB)
    g.stamp(12)
    e(f"""
    s_lshl_b32 s37, s{sW}, 2
    s_add_u32 s37, s37, {BAD_ADDR}
    v_mov_b32 v{SA+6}, s37
    s_mul_i32 s39, s{sQT}, {36*1024}
    s_lshl_b32 s46, s{sHEAD}, 10
    s_add_u32 s39, s39, {O_OFF}
    s_add_u32 s46, s46, s39
    s_lshl_b32 s47, s{sHEAD}, 7
    s_add_u32 s47, s47, s39
    s_add_u32 s47, s47, {32*1024}
    v_mov_b32 v{SA+4}, 0x7f7fffff
    s_nop 0
    v_mov_b32 v{T0}, v{O+10}
    v_mov_b32 v{T1}, v{O+10}
    v_add_f32 v{T2}, |v{O}|, |v{O+1}|
    v_add_f32 v{SA}, |v{O+2}|, |v{O+3}|
    v_permlane32_swap_b32 v{T0}, v{T1}
    v_add_f32 v{SA+1}, |v{O+4}|, |v{O+5}|
    v_add_f32 v{SA+2}, |v{O+6}|, |v{O+7}|
    v_add_f32 v{SA+3}, |v{O+8}|, |v{O+9}|
    v_add_f32 v{T2}, v{T2}, v{SA}
    v_add_f32 v{SA+1}, v{SA+1}, v{SA+2}
    v_add_f32 v{T2}, v{T2}, v{SA+1}
    v_cmp_nge_f32 vcc, 0x4e800000, v{T0}
    v_cmp_nle_f32 s[40:41], v{T2}, v{SA+4}
    v_cmp_nle_f32 s[42:43], v{SA+3}, v{SA+4}
    s_or_b64 s[40:41], vcc, s[40:41]
    v_cmp_nle_f32 vcc, 0x30800000, v{T0}
    s_or_b32 s40, s40, s42
    s_or_b64 s[40:41], vcc, s[40:41]
    s_cselect_b32 s48, 1, 0
    v_mov_b32 v{SA+5}, s48
    ds_write_b32 v{SA+6}, v{SA+5}
    """)
    def fin():
        e(f"v_rcp_f32 v{T0}, v{T0}\nv_lshlrev_b32 v{T1}, 2, v{LANE}")
        for i in range(10): e(f"v_mul_f32 v{O+i}, v{O+i}, v{T0}")
        for i in range(5): e(f"v_cvt_pk_bf16_f32 v{SA+8+i}, v{O+2*i}, v{O+2*i+1}")
        e(f"""
        buffer_store_dwordx4 {vr(SA+8,4)}, v{L16}, s[{SWS}:{SWS+3}], s46 offen sc1
        s_mov_b32 exec_hi, 0
        buffer_store_dword v{SA+12}, v{T1}, s[{SWS}:{SWS+3}], s47 offen sc1
        s_mov_b32 exec_hi, -1
        """)
    fin()
    e(f"""
    v_and_b32 v{SA+6}, 28, v{T1}
    s_waitcnt vmcnt(0) lgkmcnt(0)
    s_barrier
    ds_read_b32 v{SA+5}, v{SA+6} offset:{BAD_ADDR - 65536}
    """.replace(f"v_and_b32 v{SA+6}, 28, v{T1}", f"v_and_b32 v{SA+6}, 28, v{T1}\n    v_add_u32 v{SA+6}, 0x10000, v{SA+6}"))
    e(f"""
    s_waitcnt lgkmcnt(0)
    v_cmp_ne_u32 vcc, 0, v{SA+5}
    s_cmp_lg_u64 vcc, 0
    s_cbranch_scc1 L_slowall
    L_after:
    """)
    g.stamp(13)

    def tail():
        M = T2; sIT = 37
        e(f"""
        L_slowall:
        s_barrier
        s_lshl_b32 s{sKD}, s{sW}, 10
        s_add_u32 s{sKS}, s{sKD}, s{sKVO}
        s_mov_b32 s{sIT}, 0
        L_sa1:
        """)
        e(kv1())
        e(f"""
        s_add_u32 s{sIT}, s{sIT}, 1
        s_cmp_lt_u32 s{sIT}, 19
        s_cbranch_scc1 L_sa1
        s_waitcnt vmcnt(0)
        s_barrier
        s_cmp_eq_u32 s48, 0
        s_cbranch_scc1 L_sa2
        v_mov_b32 v{QX+1}, 0
        v_mov_b32 v{M}, 0xff800000
        s_mov_b32 s44, 0
        v_add_u32 v{AK}, {4*KV_CHUNK}, v{AK}
        v_add_u32 v{AV}, {4*KV_CHUNK}, v{AV}
        v_add_u32 v{AKX}, {4*KV_CHUNK}, v{AKX}
        L_slow_pass:
        v_subrev_u32 v{AK}, {16*KV_CHUNK}, v{AK}
        v_subrev_u32 v{AV}, {16*KV_CHUNK}, v{AV}
        v_subrev_u32 v{AKX}, {16*KV_CHUNK}, v{AKX}
        s_mov_b32 s{sIT}, 0
        L_slow_loop:
        """)
        for b in range(2):
            ldKX(b); ldK(K0, b, 0); ldK(K1, b, 1)
            for gq in range(4): ldV(gq, b)
            e("s_waitcnt lgkmcnt(0)")
            qk_simple(SA)
            e(f"s_cmp_eq_u32 s44, 0\ns_cbranch_scc0 L_slow_pv{b}")
            for i in range(0, 32, 2): e(f"v_max3_f32 v{M}, v{M}, v{SA+i}, v{SA+i+1}")
            e(f"s_branch L_slow_nx{b}\nL_slow_pv{b}:")
            for i in range(32): e(f"v_sub_f32 v{SA+i}, v{SA+i}, v{M}")
            for i in range(32): e(f"v_exp_f32 v{SA+i}, v{SA+i}")
            e("s_nop 1")
            for gq in range(4): msm(gq, SA)
            e(f"s_nop 7\nL_slow_nx{b}:")
        e(f"""
        v_add_u32 v{AK}, {KV_CHUNK}, v{AK}
        v_add_u32 v{AV}, {KV_CHUNK}, v{AV}
        v_add_u32 v{AKX}, {KV_CHUNK}, v{AKX}
        s_add_u32 s{sIT}, s{sIT}, 1
        s_cmp_lt_u32 s{sIT}, 16
        s_cbranch_scc1 L_slow_loop
        s_cmp_eq_u32 s44, 0
        s_cbranch_scc0 L_slow_done
        v_mov_b32 v{T1}, v{M}
        s_nop 1
        v_permlane32_swap_b32 v{M}, v{T1}
        v_max_f32 v{M}, v{M}, v{T1}
        """)
        for i in range(16): e(f"v_mov_b32 v{O+i}, 0")
        e(f"""
        s_mov_b32 s44, 1
        s_branch L_slow_pass
        L_slow_done:
        s_nop 11
        v_mov_b32 v{T0}, v{O+10}
        v_mov_b32 v{T1}, v{O+10}
        s_nop 1
        v_permlane32_swap_b32 v{T0}, v{T1}
        s_nop 0
        """)
        fin()
        e("L_sa2:\ns_waitcnt vmcnt(0) lgkmcnt(0)\ns_barrier")
        wo_setup()
        for l in wo_list(): e(l)
        e("s_waitcnt vmcnt(0)\ns_barrier\ns_branch L_after")
    return tail

def phase3(g):
    e, X = g.e, g.X
    OF, ACC, WF = 0, 72, 120
    WA, WX = 144, 145
    DV = [146, 147, 148]
    T0, T1, T2, T3 = 150, 151, 152, 153
    sWO, sOUT = SRB, SRC
    sTB, sFB, sT, sT2, sG, sTW, sKH, sIDX = 33, 34, 35, 36, 37, 38, 39, 40
    g.srd(sOUT, pOUT, S*1152*2)
    e(f"""
    s_lshr_b32 s{sIDX}, s2, 3
    s_and_b32 s{sT}, s2, 7
    s_cmp_lg_u32 s{sW}, 0
    s_cbranch_scc1 L_p3a
    """)
    g.signal(2)
    e(f"""
    L_p3a:
    s_cmp_ge_u32 s{sIDX}, 24
    s_cbranch_scc1 L_ssmf
    s_mul_i32 s{sT2}, s{sIDX}, 43
    s_lshr_b32 s{sT2}, s{sT2}, 8
    s_mul_i32 s{sFB}, s{sT2}, 6
    s_sub_u32 s{sFB}, s{sIDX}, s{sFB}
    s_lshl_b32 s{sTB}, s{sT}, 2
    s_add_u32 s{sTB}, s{sTB}, s{sT2}
    s_mul_i32 s45, s{sFB}, 192
    s_cmp_ge_u32 s{sW}, 4
    s_cbranch_scc1 L_endf
    s_and_b32 s{sTW}, s{sW}, 1
    s_lshr_b32 s{sKH}, s{sW}, 1
    s_lshl_b32 s46, s{sT}, 12
    s_lshl_b32 s{sT}, s{sTB}, 1
    s_add_u32 s{sT}, s{sT}, s{sTW}
    s_mul_i32 s{sT}, s{sT}, {36*1024}
    s_add_u32 s{sT}, s{sT}, {O_OFF}
    s_lshl_b32 s{sT2}, s{sKH}, 14
    s_add_u32 s43, s{sT}, s{sT2}
    s_lshl_b32 s{sT2}, s{sKH}, 11
    s_add_u32 s44, s{sT}, s{sT2}
    s_add_u32 s44, s44, 0x8000
    v_lshrrev_b32 v{T0}, 5, v{LANE}
    v_bfe_u32 v{T1}, v{LANE}, 2, 2
    v_and_b32 v{T2}, 3, v{LANE}
    v_lshlrev_b32 v{T2}, 3, v{T2}
    v_and_b32 v{T3}, 16, v{LANE}
    v_lshl_add_u32 v{T2}, v{T3}, 1, v{T2}
    v_mul_u32_u24 v{T1}, 192, v{T1}
    s_mul_i32 s{sT}, s{sKH}, {288*192}
    v_add3_u32 v{T2}, v{T2}, v{T1}, s{sT}
    v_mul_u32_u24 v{T1}, {4*192}, v{T0}
    v_add_u32 v{WA}, v{T2}, v{T1}
    v_mul_u32_u24 v{T1}, {72*192}, v{T0}
    v_add_u32 v{WX}, v{T2}, v{T1}
    v_and_b32 v{T3}, 31, v{LANE}
    v_lshlrev_b32 v{T3}, 2, v{T3}
    v_lshl_add_u32 v{T3}, v{T0}, 9, v{T3}
    s_cmp_lg_u32 s{sW}, 0
    s_cbranch_scc1 L_p3w
    """)
    e(f"""
    s_add_u32 s46, s46, {FL_OFF + 2*32768}
    v_and_b32 v4, 31, v{LANE}
    v_lshlrev_b32 v4, 7, v4
    """)
    g.poll("L_s2", 4, [46], 0)
    e("L_p3w:\ns_barrier")
    g.stamp(14)
    for i in range(16):
        if i % 4 == 0 and i: e(f"s_add_u32 s43, s43, 4096")
        e(f"buffer_load_dwordx4 {vr(OF+4*i,4)}, v{L16}, s[{SWS}:{SWS+3}], s43 offen offset:{(i%4)*1024} sc1")
    for i in range(8):
        e(f"buffer_load_dword v{OF+64+i}, v{T3}, s[{SWS}:{SWS+3}], s44 offen offset:{(i//4)*1024 + (i%4)*128} sc1")
    def ldw(ks, buf):
        for ft in range(3):
            for rd in range(2):
                if ks < 16: off = (18*ks + 2*(ks % 2) + 8*rd) * 192 + ft*64; a = WA
                else: off = (144*(ks-16) + 36*rd + 16) * 192 + ft*64; a = WX
                e(f"ds_read_b64_tr_b16 {vr(WF+12*buf+4*ft+2*rd,2)}, v{a} offset:{off}")
    ldw(0, 0)
    for ks in range(18):
        buf = ks % 2
        n = 23 - ks if ks < 16 else (4 if ks == 16 else 0)
        if ks < 17:
            ldw(ks+1, buf ^ 1)
            e(f"s_waitcnt vmcnt({n}) lgkmcnt(6)")
        else:
            e("s_waitcnt vmcnt(0) lgkmcnt(0)")
        for ft in range(3):
            c = "0" if ks == 0 else vr(ACC+16*ft,16)
            e(f"v_mfma_f32_32x32x16_bf16 {vr(ACC+16*ft,16)}, {vr(WF+12*buf+4*ft,4)}, {vr(OF+4*ks,4)}, {c}")
    g.stamp(15)
    RB = 110592
    e(f"""
    s_mul_i32 s{sT}, s{sW}, 6144
    s_xor_b32 s{sT2}, s{sW}, 2
    s_mul_i32 s{sT2}, s{sT2}, 6144
    v_add_u32 v{T3}, {RB}, v{L16}
    v_add_u32 v{T0}, s{sT}, v{T3}
    v_add_u32 v{T1}, s{sT2}, v{T3}
    s_nop 5
    s_cmp_eq_u32 s{sKH}, 0
    s_cbranch_scc0 L_kh1
    """)
    def red(kh):
        own, oth = 8*kh, 8*(1-kh)
        for ft in range(3):
            for gq in range(2):
                e(f"ds_write_b128 v{T0}, {vr(ACC+16*ft+oth+4*gq,4)} offset:{(2*ft+gq)*1024}")
        e("s_waitcnt lgkmcnt(0)\ns_barrier")
        for ft in range(3):
            for gq in range(2):
                e(f"ds_read_b128 {vr(OF+8*ft+4*gq,4)}, v{T1} offset:{(2*ft+gq)*1024}")
        for ft in range(3):
            e(f"s_waitcnt lgkmcnt({4-2*ft})")
            for i in range(8): e(f"v_add_f32 v{OF+8*ft+i}, v{OF+8*ft+i}, v{ACC+16*ft+own+i}")
    red(0)
    e("s_branch L_ost\nL_kh1:")
    red(1)
    e("L_ost:")
    for ft in range(3):
        for i in range(4): e(f"v_cvt_pk_bf16_f32 v{OF+24+4*ft+i}, v{OF+8*ft+2*i}, v{OF+8*ft+2*i+1}")
    e(f"""
    v_and_b32 v{T0}, 31, v{LANE}
    v_mul_u32_u24 v{T0}, 2304, v{T0}
    v_lshrrev_b32 v{T1}, 5, v{LANE}
    v_lshl_add_u32 v{T0}, v{T1}, 4, v{T0}
    s_lshl_b32 s{sT}, s{sTB}, 1
    s_add_u32 s{sT}, s{sT}, s{sTW}
    s_mul_i32 s{sT}, s{sT}, {32*2304}
    s_lshl_b32 s{sT2}, s{sKH}, 5
    s_add_u32 s{sT}, s{sT}, s{sT2}
    s_add_u32 s{sT}, s{sT}, s45
    """)
    for ft in range(3):
        b = OF + 24 + 4*ft
        e(f"v_permlane32_swap_b32 v{b}, v{b+2}\nv_permlane32_swap_b32 v{b+1}, v{b+3}")
    for ft in range(3):
        b = OF + 24 + 4*ft
        e(f"buffer_store_dwordx4 {vr(b,4)}, v{T0}, s[{sOUT}:{sOUT+3}], s{sT} offen offset:{ft*64}")
    g.flush()
    e("s_endpgm")
    Y, Q, OUTR = 8, 40, 72
    e(f"""
    L_ssmf:
    s_cmp_ge_u32 s{sW}, 5
    s_cbranch_scc1 L_endf
    s_lshl_b32 s{sT}, s{sT}, 3
    s_add_u32 s{sT}, s{sT}, s{sIDX}
    s_sub_u32 s{sT}, s{sT}, 24
    """)
    g.srd(SRB, pQ, S*D*2)
    e(f"""
    v_lshrrev_b32 v{T1}, 2, v{TID}
    v_and_b32 v{T0}, 3, v{TID}
    v_lshlrev_b32 v{T2}, 9, v{T1}
    v_lshl_add_u32 v{T2}, v{T0}, 4, v{T2}
    v_mul_u32_u24 v{T3}, {8*1152}, v{T0}
    v_lshl_add_u32 v{T3}, v{T1}, 4, v{T3}
    v_mul_u32_u24 v{T0}, {8*2304}, v{T0}
    v_lshl_add_u32 v{T0}, v{T1}, 4, v{T0}
    s_mul_i32 s43, s{sT}, 36864
    s_add_u32 s44, s43, {YT_OFF}
    s_add_u32 s45, s43, {4*1152}
    s_mul_i32 s{sT2}, s{sT}, {32*2304}
    s_add_u32 s{sT2}, s{sT2}, 1152
    """)
    for t in range(8):
        e(f"buffer_load_dwordx4 {vr(Q+4*t,4)}, v{T3}, s[{SRB}:{SRB+3}], s{43 if t < 4 else 45} offen offset:{(t%4)*1152}")
    e(f"s_cmp_lg_u32 s{sW}, 0\ns_cbranch_scc1 L_p3v")
    e(f"v_lshlrev_b32 v4, 7, v{LANE}")
    for i in range(4): e(f"s_mov_b32 s{46+i}, {FL_OFF + 2*32768 + 8192*i}")
    g.poll("L_s3", 4, [46, 47, 48, 49], 0)
    e(f"""
    L_p3v:
    s_barrier
    v_cmp_gt_u32 vcc, 288, v{TID}
    s_and_b64 exec, exec, vcc
    """)
    for c in range(8):
        e(f"buffer_load_dwordx4 {vr(Y+4*c,4)}, v{T2}, s[{SWS}:{SWS+3}], s44 offen offset:{64*c} sc1")
    e("s_waitcnt vmcnt(0)")
    A, B2 = 104, 108
    for t in range(8):
        for cp in range(4):
            a = A + 2 * (cp % 2); b = B2 + 2 * (cp % 2)
            e(f"v_lshlrev_b32 v{a}, 16, v{Q+4*t+cp}\nv_and_b32 v{a+1}, 0xffff0000, v{Q+4*t+cp}")
            for k in range(2):
                src = Y + 4*(2*cp+k) + t//2
                e(f"v_lshlrev_b32 v{b+k}, 16, v{src}" if t % 2 == 0 else f"v_and_b32 v{b+k}, 0xffff0000, v{src}")
            e(f"v_pk_mul_f32 {vr(a,2)}, {vr(a,2)}, {vr(b,2)}")
            e(f"v_cvt_pk_bf16_f32 v{OUTR+4*t+cp}, v{a}, v{a+1}")
        e(f"buffer_store_dwordx4 {vr(OUTR+4*t,4)}, v{T0}, s[{sOUT}:{sOUT+3}], s{sT2} offen")
        e(f"s_add_u32 s{sT2}, s{sT2}, 2304")
    e("L_endf:")
    g.flush()
    e("L_end:\ns_endpgm")

def build(X=()):
    g = G(X)
    g.e(f".globl {NAME}\n.p2align 8\n.type {NAME},@function\n{NAME}:")
    g.attn_setup = lambda: attn_setup(g)
    phase1(g)
    tail = phase2(g)
    phase3(g)
    tail()
    hdr = open("concat_heads__softmax_full_mha__ssm_conv_h3__prompt.s.ref").read().split("; Override")[0]
    s = hdr + "; @launch grid=(256,1,1) block=(512,1,1) lds=163840\n"
    s += '.amdgcn_target "amdgcn-amd-amdhsa--gfx950"\n.text\n' + g.e.text()
    s += '.section .rodata,"a"\n.p2align 6\n' + kernel_desc(NAME, 256)
    if "nosc1" in X: s = s.replace(" sc1 lds", " lds")
    return s

if __name__ == "__main__":
    open(sys.argv[1], "w").write(build(tuple(sys.argv[2:])))
```

```python
import sys
from common import *

NAME = "concat_heads__softmax_full_mha__ssm_conv_h3__prompt_kernel"
SRA, SWS, SRB, SRC, SRD_ = 4, 8, 12, 16, 20
sW, sNONCE = 24, 25
sHEAD, sQT, sKVO = 31, 32, 51
pX, pWQ, pWO, pQ, pK, pV, pSH, pH, pD, pOUT, pDBG, pWS = range(64, 88, 2)
VST = 255
LANE, L16, TID, VN = 250, 251, 252, 253
UR_BASE, UR_SZ = 116736, 4608
H_BASE, H_SZ, HO_IN = 130560, 8320, 4160
CP_BASE = 65536
CNT = 163840 - 64
cS, cA, cW, cP, cU, cR, cF2, cF1 = 0, 4, 8, 12, 16, 20, 28, 32
sCA, sCC = 59, 60
WO_BASE = 0
PBOUND = 0x200000

class G:
    def __init__(self, X):
        self.e = Asm(); self.X = X; self.ST = "st" in X
        self.PS = next((int(x[2:]) for x in X if x.startswith("ps")), 2)
    def stamp(self, i):
        if self.ST: self.e(f"s_memtime s[88:89]\ns_waitcnt lgkmcnt(0)\nv_writelane_b32 v{VST}, s88, {i}")
    def rstamp(self, i):
        if self.ST: self.e(f"s_memrealtime s[88:89]\ns_waitcnt lgkmcnt(0)\nv_writelane_b32 v{VST}, s88, {i}")
    def flush(self):
        if self.ST:
            self.e("s_waitcnt vmcnt(0)")
            self.stamp(30); self.rstamp(31)
            self.e(f"""
            s_mov_b64 exec, -1
            s_lshl_b32 s88, s2, 3
            s_add_u32 s88, s88, s{sW}
            s_lshl_b32 s88, s88, 8
            s_add_u32 s88, s88, {ST_OFF}
            s_mov_b32 s{SWS+2}, 0x1000000
            v_lshlrev_b32 v0, 2, v{LANE}
            buffer_store_dword v{VST}, v0, s[{SWS}:{SWS+3}], s88 offen
            """)
    def srd(self, slot, ptr, nbytes):
        self.e(f"s_mov_b64 s[{slot}:{slot+1}], s[{ptr}:{ptr+1}]\ns_mov_b32 s{slot+2}, {nbytes}\ns_mov_b32 s{slot+3}, 0x20000")
    def signal(self, which, sidx=2):
        self.e(f"""
        s_lshl_b32 s26, s{sidx}, 7
        s_add_u32 s26, s26, {FL_OFF + which*32768}
        v_mov_b32 v{VN}, s{sNONCE}
        s_mov_b64 exec, 1
        buffer_store_dword v{VN}, v{L16}, s[{SWS}:{SWS+3}], s26 offen sc1
        s_mov_b64 exec, -1
        """)
    def ids(self):
        e = self.e
        self.srd(SWS, pWS, WS_USED); self.srd(SRA, pDBG, 256)
        e(f"""
        s_and_b32 s{sHEAD}, s2, 7
        s_lshl_b32 s{sHEAD}, s{sHEAD}, 2
        s_bfe_u32 s26, s2, 0x20003
        s_add_u32 s{sHEAD}, s{sHEAD}, s26
        s_lshr_b32 s{sQT}, s2, 5
        s_lshl_b32 s{sQT}, s{sQT}, 3
        s_add_u32 s{sQT}, s{sQT}, s{sW}
        s_mul_i32 s{sKVO}, s{sHEAD}, {KV_HEAD}
        s_add_u32 s{sKVO}, s{sKVO}, {KV_OFF}
        s_lshr_b32 s26, s2, 6
        s_mul_i32 s26, s26, 144
        s_and_b32 s27, s2, 63
        s_lshl_b32 s{sCA}, s27, 1
        s_add_u32 s{sCA}, s{sCA}, s26
        s_lshr_b32 s{sCC}, s27, 2
        s_add_u32 s{sCC}, s{sCC}, s26
        s_add_u32 s{sCC}, s{sCC}, 128
        """)
    def lds_init(self, t):
        self.e(f"""
        s_lshl_b32 s26, s{sCA}, 1
        s_load_dword s52, s[{pD}:{pD+1}], s26
        s_lshr_b32 s26, s{sCC}, 1
        s_lshl_b32 s26, s26, 2
        s_load_dword s53, s[{pD}:{pD+1}], s26
        v_mov_b64 {vr(244,2)}, 0
        v_mov_b64 {vr(246,2)}, 0
        v_and_b32 v248, {31*16}, v{L16}
        v_add_u32 v248, {UR_BASE + 4096}, v248
        ds_write_b128 v248, {vr(244,4)}
        ds_write_b128 v248, {vr(244,4)} offset:{UR_SZ}
        ds_write_b128 v248, {vr(244,4)} offset:{2*UR_SZ}
        v_and_b32 v248, 48, v{L16}
        v_add_u32 v248, {CNT}, v248
        ds_write_b128 v248, {vr(244,4)}
        """)
    def hdma(self, t):
        e = self.e
        self.srd(SRD_, pH, D*S*2)
        e(f"""
        s_and_b32 s26, s{sW}, 3
        s_lshl_b32 s26, s26, 10
        s_lshl_b32 s27, s{sCA}, 12
        s_lshl_b32 s29, s{sCC}, 12
        v_mov_b32 v{t+1}, s29
        v_lshlrev_b32 v{t}, 11, v{LANE}
        v_and_b32 v{t}, 4096, v{t}
        v_cmp_gt_u32 vcc, 4, v{LANE}
        v_add_u32 v{t}, s27, v{t}
        s_add_u32 s27, s27, s26
        s_add_u32 s28, s27, 4096
        s_add_u32 s29, s29, s26
        v_cndmask_b32 v{t}, v{t+1}, v{t}, vcc
        v_mov_b32 v{VN}, 0
        """)
        for cp in (1, 0):
            for n in range(3):
                e(f"""
                s_add_u32 m0, s26, {H_BASE + n*H_SZ + cp*HO_IN + 32}
                {"s_nop 0" if cp else f"s_add_u32 s{27+n}, s{27+n}, 2"}
                buffer_load_dwordx4 v{L16}, s[{SRD_}:{SRD_+3}], s{27+n} offen lds
                """)
        e(f"""
        buffer_load_dword v249, v{t}, s[{SRD_}:{SRD_+3}], 0 offen
        buffer_load_dword v{VN}, v{VN}, s[{SRA}:{SRA+3}], 0 offen sc1
        """)
    def hfix(self, lbl, t):
        self.e(f"""
        s_cmp_lg_u32 s{sW}, 7
        s_cbranch_scc1 L_hf{lbl}
        v_mul_u32_u24 v{t}, {HO_IN}, v{LANE}
        v_and_b32 v{t+1}, 1, v{LANE}
        v_cmp_eq_u32 vcc, 0, v{t+1}
        v_mov_b64 {vr(240,2)}, 0
        v_mov_b64 {vr(242,2)}, 0
        v_mov_b64 {vr(244,2)}, 0
        v_mov_b32 v246, 0
        v_lshlrev_b32 v{t+1}, 16, v249
        v_cndmask_b32 v247, 0, v{t+1}, vcc
        v_add_u32 v{t}, {H_BASE}, v{t}
        s_mov_b64 exec, 63
        ds_write_b128 v{t}, {vr(240,4)}
        ds_write_b128 v{t}, {vr(244,4)} offset:16
        s_mov_b64 exec, -1
        L_hf{lbl}:
        """)
        self.arrive(cU, t + 2)
    def nonce(self, lbl):
        self.e(f"""
        s_mov_b32 s30, 0
        {lbl}:
        v_readfirstlane_b32 s{sNONCE}, v{VN}
        s_add_u32 s30, s30, 1
        s_cmp_gt_u32 s30, {PBOUND}
        s_cbranch_scc1 {lbl}_d
        s_cmp_lg_u32 s{sNONCE}, 0
        s_cbranch_scc1 {lbl}_d
        v_mov_b32 v{VN}, 0
        s_nop 0
        buffer_load_dword v{VN}, v{VN}, s[{SRA}:{SRA+3}], 0 offen sc1
        s_waitcnt vmcnt(0)
        s_branch {lbl}
        {lbl}_d:
        """)
    def arrive(self, c, tmp, ret=None):
        self.e(f"v_mov_b32 v{tmp}, {CNT + c}\nv_mov_b32 v{tmp+1}, 1\ns_mov_b64 exec, 1")
        if ret is None:
            self.e(f"ds_add_u32 v{tmp}, v{tmp+1}\ns_mov_b64 exec, -1")
        else:
            self.e(f"ds_add_rtn_u32 v{tmp+1}, v{tmp}, v{tmp+1}\ns_mov_b64 exec, -1\ns_waitcnt lgkmcnt(0)\nv_readfirstlane_b32 s{ret}, v{tmp+1}")
    def spin(self, lbl, c, n, tmp, vaddr=None):
        if vaddr is None:
            self.e(f"v_mov_b32 v{tmp}, {CNT + c}"); vaddr = tmp
        self.e(f"""
        s_branch {lbl}
        {lbl}_s:
        s_sleep 1
        {lbl}:
        ds_read_b32 v{tmp+1}, v{vaddr}
        s_waitcnt lgkmcnt(0)
        v_readfirstlane_b32 s30, v{tmp+1}
        s_cmp_lt_u32 s30, {n}
        s_cbranch_scc1 {lbl}_s
        """)
    def poll(self, lbl, vaddr, soffs, tmp):
        e = self.e
        e(f"s_mov_b32 s30, 0\n{lbl}_poll:")
        for i, so in enumerate(soffs):
            e(f"buffer_load_dword v{tmp+i}, v{vaddr}, s[{SWS}:{SWS+3}], s{so} offen sc1")
        e("s_waitcnt vmcnt(0)")
        for i in range(len(soffs)): e(f"v_xor_b32 v{tmp+i}, s{sNONCE}, v{tmp+i}")
        for i in range(1, len(soffs)): e(f"v_or_b32 v{tmp}, v{tmp}, v{tmp+i}")
        e(f"""
        v_cmp_ne_u32 vcc, 0, v{tmp}
        s_add_u32 s30, s30, 1
        s_cmp_gt_u32 s30, {PBOUND}
        s_cbranch_scc1 {lbl}_pdone
        s_cmp_eq_u64 vcc, 0
        s_cbranch_scc1 {lbl}_pdone
        s_sleep {self.PS}
        s_branch {lbl}_poll
        {lbl}_pdone:
        """)

def phase1(g):
    e, X = g.e, g.X
    SLOT = 36864; WOFF = 16384; WROW = 320
    ACC = [0, 16, 32, 48, 64]
    XF = [80, 84]
    WF = [[88, 92, 96, 100, 104], [108, 112, 116, 120, 124]]
    XA = [128, 129, 130, 131]; WA, WB, WE = 132, 133, 134
    DX = [128, 129]; DW = [130, 131, 132, 133, 134]
    T0, T1, T2, T3 = 140, 141, 142, 143
    EP = 144
    sX, sWq = SRB, SRC
    sTT, sCT, sT, sT2, sT3 = 35, 36, 37, 38, 39
    sXO, sWO, sM0, sKB, sST, sDL = 40, 41, 42, 43, 44, 45
    e(f"""
    s_cmp_ge_u32 s2, 256
    s_cbranch_scc1 L_end
    s_load_dwordx16 s[64:79], s[0:1], 0
    s_load_dwordx8 s[80:87], s[0:1], 64
    v_mov_b32 v{TID}, v0
    v_lshrrev_b32 v{T0}, 6, v0
    v_and_b32 v{LANE}, 63, v0
    s_and_b32 s{sT}, s2, 7
    v_readfirstlane_b32 s{sW}, v{T0}
    s_lshr_b32 s{sT2}, s2, 3
    v_lshlrev_b32 v{L16}, 4, v{LANE}
    s_cmp_ge_u32 s{sT2}, 24
    s_cbranch_scc1 L_ssmwg
    s_mul_i32 s{sT3}, s{sT2}, 43
    s_lshr_b32 s{sT3}, s{sT3}, 8
    s_mul_i32 s{sCT}, s{sT3}, 6
    s_sub_u32 s{sT2}, s{sT2}, s{sCT}
    s_lshr_b32 s{sTT}, s{sT}, 1
    s_lshl_b32 s{sTT}, s{sTT}, 2
    s_add_u32 s{sTT}, s{sTT}, s{sT3}
    s_and_b32 s{sCT}, s{sT}, 1
    s_mul_i32 s{sCT}, s{sCT}, 6
    s_add_u32 s{sCT}, s{sCT}, s{sT2}
    s_cmp_lt_u32 s{sW}, 4
    s_cbranch_scc1 L_cons
    """)
    e(f"""
    s_lshl_b32 s{sKB}, s{sT3}, 1
    s_add_u32 s{sKB}, s{sKB}, s{sT2}
    s_lshr_b32 s{sT2}, s{sT2}, 1
    s_add_u32 s{sKB}, s{sKB}, s{sT2}
    s_cmp_ge_u32 s{sKB}, 9
    s_cselect_b32 s{sT}, 9, 0
    s_sub_u32 s{sKB}, s{sKB}, s{sT}
    s_and_b32 s{sT3}, s{sW}, 3
    v_lshrrev_b32 v{T0}, 3, v{LANE}
    s_lshl_b32 s{sT}, s{sTT}, 7
    s_lshl_b32 s{sT2}, s{sT3}, 5
    s_add_u32 s{sT}, s{sT}, s{sT2}
    v_add_u32 v{T0}, s{sT}, v{T0}
    v_mul_u32_u24 v{T0}, 1152, v{T0}
    v_lshrrev_b32 v{T1}, 4, v{LANE}
    v_and_b32 v{T2}, 7, v{LANE}
    v_xor_b32 v{T2}, v{T2}, v{T1}
    v_lshl_add_u32 v{DX[0]}, v{T2}, 4, v{T0}
    v_xor_b32 v{T2}, 4, v{T2}
    v_lshl_add_u32 v{DX[1]}, v{T2}, 4, v{T0}
    v_add_u32 v{DX[1]}, {8*1152}, v{DX[1]}
    s_mul_i32 s{sT}, s{sCT}, 288
    s_and_b32 s{sT}, s{sT}, 0xffffffc0
    s_mul_i32 s{sT2}, s{sT3}, {16*3456}
    s_add_u32 s{sT}, s{sT}, s{sT2}
    """)
    for i in range(5):
        e(f"""
        v_add_u32 v{T0}, {64*i}, v{LANE}
        v_mul_u32_u24 v{T1}, 205, v{T0}
        v_lshrrev_b32 v{T1}, 12, v{T1}
        v_mul_u32_u24 v{T1}, {3456-320}, v{T1}
        v_lshl_add_u32 v{T1}, v{T0}, 4, v{T1}
        v_add_u32 v{DW[i]}, s{sT}, v{T1}
        """)
    e(f"""
    s_lshl_b32 s{sM0}, s{sT3}, 12
    s_mul_i32 s46, s{sT3}, 5120
    s_add_u32 s46, s46, {WOFF}
    s_mov_b32 s{sX+2}, {S*D*2}
    s_mov_b32 s{sX+3}, 0x20000
    s_mov_b32 s{sWq+2}, {D*1728*2}
    s_mov_b32 s{sWq+3}, 0x20000
    s_mov_b32 s{sST}, 0
    s_mov_b32 s47, 0
    s_waitcnt lgkmcnt(0)
    s_mov_b64 s[{sX}:{sX+1}], s[{pX}:{pX+1}]
    s_mov_b64 s[{sWq}:{sWq+1}], s[{pWQ}:{pWQ+1}]
    """)
    g.stamp(0); g.rstamp(29)
    e(f"""
    L_prod:
    s_lshl_b32 s{sXO}, s{sKB}, 7
    s_mul_i32 s{sWO}, s{sKB}, {64*3456}
    s_add_u32 s48, s{sM0}, s47
    s_add_u32 s49, s46, s47
    """)
    for i in range(5):
        e(f"""
        s_add_u32 m0, s49, {1024*i}
        s_nop 0
        buffer_load_dwordx4 v{DW[i]}, s[{sWq}:{sWq+3}], s{sWO} offen lds
        """)
        if i < 4:
            e(f"""
            s_add_u32 m0, s48, {1024*i}
            {f"s_add_u32 s{sXO}, s{sXO}, {16*1152}" if i == 2 else "s_nop 0"}
            buffer_load_dwordx4 v{DX[i%2]}, s[{sX}:{sX+3}], s{sXO} offen lds
            """)
    e(f"""
    s_add_u32 s47, s47, {SLOT}
    s_cmp_eq_u32 s47, {3*SLOT}
    s_cselect_b32 s47, 0, s47
    s_add_u32 s{sKB}, s{sKB}, 1
    s_cmp_eq_u32 s{sKB}, 9
    s_cselect_b32 s{sKB}, 0, s{sKB}
    s_add_u32 s{sST}, s{sST}, 1
    s_cmp_lt_u32 s{sST}, 2
    s_cbranch_scc1 L_prod
    s_waitcnt vmcnt(9)
    s_barrier
    s_cmp_lt_u32 s{sST}, 9
    s_cbranch_scc1 L_prod
    """)
    g.ids()
    HL = "hlate" in X
    if not HL: g.hdma(T0)
    e(f"s_waitcnt vmcnt({0 if HL else 8})\ns_barrier\ns_branch L_epi2")
    e(f"""
    L_cons:
    v_and_b32 v{T0}, 31, v{LANE}
    v_lshrrev_b32 v{T1}, 5, v{LANE}
    v_bfe_u32 v{T2}, v{LANE}, 1, 3
    v_xor_b32 v{T2}, v{T2}, v{T1}
    v_lshlrev_b32 v{T2}, 4, v{T2}
    v_lshl_add_u32 v{T2}, v{T0}, 7, v{T2}
    s_lshl_b32 s{sT}, s{sW}, 12
    v_add_u32 v{XA[0]}, s{sT}, v{T2}
    v_xor_b32 v{XA[1]}, 32, v{XA[0]}
    v_xor_b32 v{XA[2]}, 64, v{XA[0]}
    v_xor_b32 v{XA[3]}, 0x60, v{XA[0]}
    v_bfe_u32 v{T2}, v{LANE}, 2, 2
    v_lshl_add_u32 v{T3}, v{T1}, 3, v{T2}
    v_mul_u32_u24 v{T3}, {WROW}, v{T3}
    s_and_b32 s{sT}, s{sCT}, 1
    s_lshl_b32 s{sT}, s{sT}, 5
    s_add_u32 s{sT}, s{sT}, {WOFF}
    v_add_u32 v{T3}, s{sT}, v{T3}
    v_and_b32 v{T0}, 3, v{LANE}
    v_bfe_u32 v{T1}, v{LANE}, 4, 1
    v_lshl_add_u32 v{T2}, v{T0}, 3, v{T3}
    v_lshl_add_u32 v{WA}, v{T1}, 5, v{T2}
    v_lshl_add_u32 v{WB}, v{T1}, 8, v{T2}
    v_mad_u32_u24 v{WE}, v{T0}, 72, v{T3}
    """.replace(f"v_mad_u32_u24 v{WE}, v{T0}, 72, v{T3}", f"v_mul_u32_u24 v{T0}, 72, v{T0}\n    v_add_u32 v{WE}, v{T0}, v{T3}"))
    for i in range(0, 80, 2): e(f"v_mov_b64 {vr(i,2)}, 0")
    e("s_waitcnt lgkmcnt(0)")
    g.stamp(0); g.rstamp(29)
    g.ids()
    g.lds_init(T0)
    e(f"""
    s_or_b32 s{sT}, s2, s{sW}
    s_cmp_lg_u32 s{sT}, 0
    s_cbranch_scc1 L_nononce
    s_memrealtime s[46:47]
    s_waitcnt lgkmcnt(0)
    s_or_b32 s46, s46, 1
    v_mov_b32 v{T0}, s46
    s_mov_b64 exec, 1
    buffer_store_dword v{T0}, v{L16}, s[{SRA}:{SRA+3}], 0 offen sc1
    s_mov_b64 exec, -1
    L_nononce:
    s_mov_b32 s{sST}, 0
    s_mov_b32 s{sDL}, {SLOT}
    s_mov_b32 s33, {SLOT}
    s_mov_b32 s46, 0
    s_waitcnt lgkmcnt(0)
    s_barrier
    """)
    g.stamp(1)
    def ldfrag(ks, buf):
        out = [f"ds_read_b128 {vr(XF[buf],4)}, v{XA[ks]}"]
        for t in range(5):
            reg, col = (WB, 0) if t == 0 else ((WE, 32) if t == 4 else (WA, 72*t - 32))
            for h2 in range(2):
                out.append(f"ds_read_b64_tr_b16 {vr(WF[buf][t]+2*h2,2)}, v{reg} offset:{(ks*16 + h2*4)*WROW + col}")
        return out
    def mf(buf, t): return f"v_mfma_f32_32x32x16_bf16 {vr(ACC[t],16)}, {vr(WF[buf][t],4)}, {vr(XF[buf],4)}, {vr(ACC[t],16)}"
    def adv(r): return f"v_add_u32 v{r}, s{sDL}, v{r}"
    for l in ldfrag(0, 0): e(l)
    e("L_gemm:")
    for ks in range(4):
        buf = ks % 2
        ld = ldfrag((ks + 1) % 4, buf ^ 1)
        if ks < 3:
            e("s_waitcnt lgkmcnt(8)"); e(mf(buf, 0)); e("\n".join(ld[0:4]))
            e("s_waitcnt lgkmcnt(10)"); e(mf(buf, 1)); e("\n".join(ld[4:8]))
            e("s_waitcnt lgkmcnt(12)"); e(mf(buf, 2)); e("\n".join(ld[8:11]))
            e("s_waitcnt lgkmcnt(11)"); e(mf(buf, 3))
            if ks == 0: e(adv(XA[0])); e(adv(XA[1]))
            if ks == 1: e(adv(XA[2]))
            if ks == 2: e(adv(XA[3])); e(adv(WA)); e(adv(WB)); e(adv(WE))
            e(mf(buf, 4))
        else:
            e(f"""
            s_add_u32 s{sST}, s{sST}, 1
            s_cmp_eq_u32 s{sST}, 9
            s_cbranch_scc1 L_gemm_last
            s_waitcnt lgkmcnt(8)
            """)
            e(mf(buf, 0))
            e("s_waitcnt lgkmcnt(0)\ns_barrier")
            e(mf(buf, 1)); e("\n".join(ld[0:4]))
            e(mf(buf, 2)); e("\n".join(ld[4:8]))
            e(mf(buf, 3)); e("\n".join(ld[8:11]))
            e(f"""
            s_add_u32 s46, s46, 1
            s_cmp_eq_u32 s46, 2
            s_cselect_b32 s{sDL}, {-2*SLOT}, s33
            s_cmp_eq_u32 s46, 3
            s_cselect_b32 s46, 0, s46
            """)
            e(mf(buf, 4))
    e("s_branch L_gemm\nL_gemm_last:\ns_waitcnt lgkmcnt(0)")
    for t in range(5): e(mf(1, t))
    g.stamp(2)
    e(f"v_mov_b32 v{VN}, 0\ns_nop 0\nbuffer_load_dword v{VN}, v{VN}, s[{SRA}:{SRA+3}], 0 offen sc1")
    e(f"""
    v_and_b32 v{T3}, 31, v{LANE}
    v_lshrrev_b32 v{T2}, 5, v{LANE}
    s_cmp_lt_u32 s{sCT}, 4
    s_cselect_b32 s46, {f2u(QSCALE):#x}, 1.0
    s_mov_b32 s47, s46
    s_cmp_ge_u32 s{sCT}, 8
    s_cbranch_scc1 L_epv
    s_lshl_b32 s{sT}, s{sW}, 10
    v_add_u32 v{T0}, s{sT}, v{L16}
    s_lshl_b32 s{sT}, s{sW}, 7
    s_add_u32 s{sT}, s{sT}, 4096
    v_lshl_add_u32 v{T1}, v{T3}, 2, s{sT}
    s_branch L_epc
    L_epv:
    s_mul_i32 s{sT}, s{sW}, 1280
    v_mad_u32_u24 v{T1}, v{T3}, 40, s{sT}
    v_lshl_add_u32 v{T0}, v{T2}, 4, v{T1}
    v_add_u32 v{T1}, 32, v{T1}
    L_epc:
    v_mul_u32_u24 v{T2}, {2*5120}, v{T2}
    v_add_u32 v{T1}, v{T1}, v{T2}
    s_cmp_ge_u32 s{sCT}, 4
    s_cbranch_scc1 L_nosc
    """)
    for i in range(0, 72, 2): e(f"v_pk_mul_f32 {vr(i,2)}, {vr(i,2)}, s[46:47]")
    e("L_nosc:")
    for t in range(4):
        hs = (0, 7) if t == 0 else (2*t - 1, 2*t)
        R = 80 + 8*t
        for i in range(8): e(f"v_cvt_pk_bf16_f32 v{R+i}, v{ACC[t]+2*i}, v{ACC[t]+2*i+1}")
        for hd in range(2):
            e(f"ds_write2_b64 v{T0}, {vr(R+4*hd,2)}, {vr(R+4*hd+2,2)} offset0:0 offset1:1" if hs[hd] == 0 else
              f"ds_write_b64 v{T0}, {vr(R+4*hd,2)} offset:{hs[hd]*5120}\nds_write_b64 v{T0}, {vr(R+4*hd+2,2)} offset:{hs[hd]*5120+8}")
    DD = 112
    for k in range(4):
        e(f"v_cvt_pk_bf16_f32 v{DD+2*k}, v{ACC[4]+2*k}, v{ACC[4]+2*k+1}\nv_mov_b32 v{DD+2*k+1}, 0x3f80")
    e(f"s_cmp_ge_u32 s{sCT}, 8\ns_cbranch_scc1 L_xv")
    for k in range(4): e(f"ds_write_b32 v{T1}, v{DD+2*k} offset:{(4*(k//2) + k%2)*5120}")
    e("s_branch L_epi2\nL_xv:")
    for k in range(4): e(f"ds_write_b64 v{T1}, {vr(DD+2*k,2)} offset:{(4*(k//2) + k%2)*5120}")
    e(f"""
    L_epi2:
    s_waitcnt lgkmcnt(0)
    s_barrier
    """)
    g.stamp(3)
    e(f"s_cmp_lt_u32 s{sW}, 4\ns_cbranch_scc1 L_gapO")
    e(f"""
    s_and_b32 s{sT3}, s{sW}, 3
    s_mul_i32 s{sT}, s{sT3}, 10240
    v_add_u32 v{T0}, s{sT}, v{L16}
    """)
    for i in range(10): e(f"ds_read_b128 {vr(EP+4*i,4)}, v{T0} offset:{1024*i}")
    e(f"""
    s_and_b32 s48, s{sCT}, 3
    s_lshl_b32 s48, s48, 2
    s_add_u32 s48, s48, s{sT3}
    s_lshl_b32 s48, s48, 5
    s_add_u32 s48, s48, s{sTT}
    s_mul_i32 s{sT}, s48, {QI_BLK}
    s_mul_i32 s{sT2}, s48, {KV_CHUNK}
    s_add_u32 s{sT2}, s{sT2}, {KV_OFF}
    s_mov_b32 s49, {KV_HEAD}
    s_cmp_lt_u32 s{sCT}, 4
    s_cselect_b32 s{sT}, s{sT}, s{sT2}
    s_cselect_b32 s49, {QI_HEAD}, s49
    s_cmp_ge_u32 s{sCT}, 8
    s_cselect_b32 s{sT2}, {V_IN}, 0
    s_cselect_b32 s{sT3}, -1, 0
    s_add_u32 s{sT}, s{sT}, s{sT2}
    """)
    for hd in range(2):
        e(f"s_add_u32 s{sT2}, s{sT}, 4096")
        for i in range(4):
            e(f"s_waitcnt lgkmcnt({9-5*hd-i})")
            e(f"buffer_store_dwordx4 {vr(EP+20*hd+4*i,4)}, v{L16}, s[{SWS}:{SWS+3}], s{sT} offen offset:{1024*i} sc1")
        e(f"""
        s_mov_b32 exec_hi, s{sT3}
        s_waitcnt lgkmcnt({5-5*hd})
        buffer_store_dwordx4 {vr(EP+20*hd+16,4)}, v{L16}, s[{SWS}:{SWS+3}], s{sT2} offen sc1
        s_mov_b32 exec_hi, -1
        s_add_u32 s{sT}, s{sT}, s49
        """)
    if HL: g.hdma(T0)
    e(f"""
    s_lshl_b32 s27, s{sCT}, 4
    s_add_u32 s27, s27, s{sTT}
    """)
    if not HL:
        e("s_waitcnt vmcnt(10)")
        g.hfix("a", T0)
    g.attn_setup()
    e("s_waitcnt vmcnt(0)")
    if HL: g.hfix("a", T0)
    g.nonce("L_n1")
    g.arrive(cS, T0, 30)
    e("s_cmp_lg_u32 s30, 3\ns_cbranch_scc1 L_gapY")
    g.signal(0, 27)
    e("s_branch L_gapY")

    KR, VRg, WR, KF, WFp, U, VT, OUT = 0, 11, 20, 32, 54, 62, 78, 84
    KB, VB = 0, 41216
    e(f"""
    L_ssmwg:
    s_lshl_b32 s{sTT}, s{sT}, 3
    s_add_u32 s{sTT}, s{sTT}, s{sT2}
    s_sub_u32 s{sTT}, s{sTT}, 24
    s_mul_i32 s{sT}, s{sTT}, 36864
    v_lshlrev_b32 v{T0}, 4, v{TID}
    v_add_u32 v{T1}, s{sT}, v{T0}
    v_subrev_u32 v{T0}, {3*1152}, v{T1}
    s_lshl_b32 s{sM0}, s{sW}, 10
    s_add_u32 s{SRB+2}, s{sT}, 36864
    s_mov_b32 s{SRB+3}, 0x20000
    s_add_u32 s{SRC+2}, s{sT}, 36864
    s_mov_b32 s{SRC+3}, 0x20000
    s_waitcnt lgkmcnt(0)
    s_mov_b64 s[{SRB}:{SRB+1}], s[{pK}:{pK+1}]
    s_mov_b64 s[{SRC}:{SRC+1}], s[{pV}:{pV+1}]
    """)
    g.stamp(0); g.rstamp(29)
    for i in range(5):
        e(f"""
        s_add_u32 s46, s{sW}, {8*i}
        s_mul_i32 s46, s46, 57
        s_lshr_b32 s46, s46, 9
        s_lshl_b32 s46, s46, 5
        s_add_u32 s46, s46, s{sM0}
        s_add_u32 m0, s46, {KB + 8192*i}
        s_nop 0
        buffer_load_dwordx4 v{T0}, s[{SRB}:{SRB+3}], 0 offen lds
        s_add_u32 m0, s46, {VB + 8192*i}
        v_add_u32 v{T0}, 8192, v{T0}
        buffer_load_dwordx4 v{T1}, s[{SRC}:{SRC+3}], 0 offen lds
        v_add_u32 v{T1}, 8192, v{T1}
        """)
    g.srd(SRD_, pSH, D*8)
    e(f"v_lshrrev_b32 v{T2}, 2, v{TID}\nv_lshlrev_b32 v{T3}, 4, v{T2}")
    for r in range(3):
        e(f"buffer_load_dwordx4 {vr(WR+4*r,4)}, v{T3}, s[{SRD_}:{SRD_+3}], 0 offen offset:{2048*r}" if r < 2 else
          f"v_add_u32 v{T3}, 4096, v{T3}\nbuffer_load_dwordx4 {vr(WR+4*r,4)}, v{T3}, s[{SRD_}:{SRD_+3}], 0 offen")
    g.ids()
    g.lds_init(T0)
    e(f"""
    v_and_b32 v{T1}, 3, v{TID}
    v_sub_u32 v{T0}, 3, v{T1}
    v_mul_u32_u24 v{T0}, {8*1152+32}, v{T0}
    v_lshl_add_u32 v{T0}, v{T2}, 2, v{T0}
    v_lshlrev_b32 v{T2}, 7, v{T2}
    v_lshl_add_u32 v{T1}, v{T1}, 4, v{T2}
    s_mul_i32 s48, s{sTT}, 36864
    s_add_u32 s48, s48, {UT_OFF}
    s_mov_b32 s{sST}, 0
    s_waitcnt vmcnt(0) lgkmcnt(0)
    s_barrier
    """)
    g.stamp(1)
    e(f"s_cmp_lt_u32 s{sW}, 4\ns_cbranch_scc1 L_sl0")
    g.hdma(92)
    e(f"L_sl0:\nL_ssml:")
    for j in range(11): e(f"ds_read_b32 v{KR+j}, v{T0} offset:{KB + j*1152 + (32 if j >= 8 else 0)}")
    for j in range(8): e(f"ds_read_b32 v{VRg+j}, v{T0} offset:{VB + j*1152}")
    for j in range(4):
        for ch in range(2):
            src = WR + 2*ch + j//2
            e(f"v_lshlrev_b32 v{WFp+2*j+ch}, 16, v{src}" if j % 2 == 0 else f"v_and_b32 v{WFp+2*j+ch}, 0xffff0000, v{src}")
    for i in range(0, 8, 2): e(f"v_mov_b64 {vr(WR+i,2)}, {vr(WR+4+i,2)}")
    e("s_waitcnt lgkmcnt(8)")
    for j in range(11): e(f"v_lshlrev_b32 v{KF+2*j}, 16, v{KR+j}\nv_and_b32 v{KF+2*j+1}, 0xffff0000, v{KR+j}")
    e("s_waitcnt lgkmcnt(0)")
    for t in range(8):
        u = vr(U+2*t, 2)
        e(f"""
        v_pk_mul_f32 {u}, {vr(KF+2*t,2)}, {vr(WFp+6,2)}
        v_lshlrev_b32 v{VT+2*(t%2)}, 16, v{VRg+t}
        v_pk_fma_f32 {u}, {vr(KF+2*(t+1),2)}, {vr(WFp+4,2)}, {u}
        v_and_b32 v{VT+2*(t%2)+1}, 0xffff0000, v{VRg+t}
        v_pk_fma_f32 {u}, {vr(KF+2*(t+2),2)}, {vr(WFp+2,2)}, {u}
        v_pk_fma_f32 {u}, {vr(KF+2*(t+3),2)}, {vr(WFp+0,2)}, {u}
        v_pk_mul_f32 {u}, {u}, {vr(VT+2*(t%2),2)}
        """)
    for ch in range(2):
        for j in range(4):
            e(f"v_cvt_pk_bf16_f32 v{OUT+4*ch+j}, v{U+2*(7-2*j)+ch}, v{U+2*(6-2*j)+ch}")
    e(f"""
    buffer_store_dwordx4 {vr(OUT,4)}, v{T1}, s[{SWS}:{SWS+3}], s48 offen sc1
    buffer_store_dwordx4 {vr(OUT+4,4)}, v{T1}, s[{SWS}:{SWS+3}], s48 offen offset:64 sc1
    v_add_u32 v{T0}, 512, v{T0}
    s_add_u32 s48, s48, 16384
    s_add_u32 s{sST}, s{sST}, 1
    s_cmp_lt_u32 s{sST}, 2
    s_cbranch_scc1 L_ssml
    s_cmp_eq_u32 s{sST}, 3
    s_cbranch_scc1 L_ssmd
    s_cmp_lt_u32 s{sW}, 2
    s_cbranch_scc1 L_ssml
    L_ssmd:
    s_cmp_ge_u32 s{sW}, 4
    s_cbranch_scc1 L_sd1
    v_mov_b32 v{VN}, 0
    s_nop 0
    buffer_load_dword v{VN}, v{VN}, s[{SRA}:{SRA+3}], 0 offen sc1
    L_sd1:
    s_waitcnt vmcnt(0)
    s_barrier
    """)
    g.stamp(3)
    e(f"s_cmp_lt_u32 s{sW}, 4\ns_cbranch_scc1 L_gapO")
    g.nonce("L_n2")
    e(f"s_cmp_lg_u32 s{sW}, 4\ns_cbranch_scc1 L_sd2")
    g.signal(1, sTT)
    e("L_sd2:")
    g.hfix("b", T0)
    g.attn_setup()
    g.arrive(cS, T0)

SA, SB, O, Q = 0, 32, 64, 80
K0, K1 = 84, 88
V = [92, 96, 100, 104]
QX, KX, IDX = 108, 110, 112
AK, AV, AKX = 113, 114, 115
aT0, aT1, aT2 = 117, 118, 119
sQM, sQXo = 54, 55
sKD, sKS = 56, 57
NK0 = 10

def attn_setup(g):
    e = g.e; T0, T1 = aT0, aT1
    e(f"""
    v_lshrrev_b32 v{T0}, 5, v{LANE}
    v_bfe_u32 v{T1}, v{LANE}, 2, 2
    v_lshl_add_u32 v{T0}, v{T0}, 3, v{T1}
    v_mul_u32_u24 v{AV}, 40, v{T0}
    v_and_b32 v{T0}, 1, v{LANE}
    v_lshlrev_b32 v{T0}, 4, v{T0}
    v_bfe_u32 v{T1}, v{LANE}, 1, 1
    v_lshl_add_u32 v{T0}, v{T1}, 3, v{T0}
    v_and_b32 v{T1}, 16, v{LANE}
    v_cmp_eq_u32 vcc, 0, v{T1}
    v_lshlrev_b32 v{AKX}, 2, v{LANE}
    v_mov_b32 v{AK}, v{L16}
    v_cndmask_b32 v{T0}, 32, v{T0}, vcc
    v_add_u32 v{AV}, v{AV}, v{T0}
    v_and_b32 v{T0}, 19, v{LANE}
    v_cmp_lt_u32 vcc, 16, v{T0}
    v_mov_b32 v{T1}, 0x100000
    v_mov_b32 v{KX+1}, 0x3f803f80
    v_cndmask_b32 v{AV}, v{AV}, v{T1}, vcc
    v_mov_b32 v{QX+1}, 0
    v_mov_b32 v{IDX}, 0xdddddddd
    v_and_b32 v{aT2}, 124, v{AKX}
    s_lshl_b32 s37, s{sHEAD}, 4
    s_lshr_b32 s38, s{sQT}, 2
    s_add_u32 s37, s37, s38
    s_mul_i32 s37, s37, {QI_BLK}
    s_and_b32 s38, s{sQT}, 3
    s_lshl_b32 s{sQM}, s38, 10
    s_add_u32 s{sQM}, s{sQM}, s37
    s_lshl_b32 s{sQXo}, s38, 7
    s_add_u32 s{sQXo}, s{sQXo}, s37
    s_add_u32 s{sQXo}, s{sQXo}, 4096
    s_and_b32 s{sKD}, s{sW}, 3
    s_lshl_b32 s{sKD}, s{sKD}, 10
    s_cmp_lt_u32 s{sW}, 4
    s_cselect_b32 s37, {NK0*4096}, 0
    s_add_u32 s{sKD}, s{sKD}, s37
    s_add_u32 s{sKS}, s{sKD}, s{sKVO}
    s_lshr_b32 s37, s2, 5
    s_mul_i32 s37, s37, {2*KV_CHUNK}
    s_add_u32 s{sKS}, s{sKS}, s37
    s_add_u32 s61, s{sKVO}, {KV_HEAD}
    s_cmp_ge_u32 s{sKS}, s61
    s_cselect_b32 s62, {KV_HEAD}, 0
    s_sub_u32 s{sKS}, s{sKS}, s62
    """)
    for i in range(0, 16, 2): e(f"v_mov_b64 {vr(O+i,2)}, 0")
    for i in range(0, 8, 2): e(f"v_mov_b64 {vr(SB+24+i,2)}, 0")
    e(f"v_mov_b64 {vr(V[3],2)}, 0\nv_mov_b64 {vr(V[3]+2,2)}, 0")


def kv1():
    return f"""s_mov_b32 m0, s{sKD}
    s_add_u32 s{sKD}, s{sKD}, 4096
    buffer_load_dwordx4 v{L16}, s[{SWS}:{SWS+3}], s{sKS} offen sc1 lds
    s_add_u32 s{sKS}, s{sKS}, 4096
    s_cmp_ge_u32 s{sKS}, s61
    s_cselect_b32 s62, {KV_HEAD}, 0
    s_sub_u32 s{sKS}, s{sKS}, s62"""

def gap(g):
    e, X = g.e, g.X
    T0, T1, T2, T3 = 140, 141, 142, 143
    qld = f"""
    buffer_load_dwordx4 {vr(Q,4)}, v{L16}, s[{SWS}:{SWS+3}], s{sQM} offen sc1
    buffer_load_dword v{QX}, v{aT2}, s[{SWS}:{SWS+3}], s{sQXo} offen sc1
    """
    e(f"""
    L_gapY:
    """)
    g.stamp(4)
    e(f"""
    s_cmp_lg_u32 s{sW}, 4
    s_cbranch_scc1 L_gy2
    s_lshr_b32 s37, s{sHEAD}, 3
    v_lshrrev_b32 v{T0}, 4, v{LANE}
    v_add_u32 v{T1}, 1, v{T0}
    v_cmp_gt_u32 vcc, 32, v{LANE}
    v_and_b32 v{T2}, 15, v{LANE}
    v_and_b32 v{T3}, 1, v{LANE}
    v_cndmask_b32 v{T1}, 0, v{T1}, vcc
    v_lshl_add_u32 v{T1}, v{T1}, 2, s37
    s_lshr_b32 s37, s2, 5
    s_lshl_b32 s37, s37, 1
    v_add_u32 v{T3}, s37, v{T3}
    v_cndmask_b32 v{T2}, v{T3}, v{T2}, vcc
    v_lshl_add_u32 v{T2}, v{T1}, 4, v{T2}
    v_lshlrev_b32 v{T2}, 7, v{T2}
    s_mov_b32 s28, {FL_OFF}
    """)
    g.poll("L_s1", T2, [28], T0)
    g.arrive(cF1, T0)
    e("L_gy2:")
    g.spin("L_spF1", cF1, 1, T0)
    g.spin("L_spS", cS, 4, T0)
    g.stamp(5)
    e(kv1()); e(kv1()); e(qld)
    for n in range(2, NK0): e(kv1())
    e(f"s_waitcnt vmcnt({NK0-2})\ns_branch L_e2")
    ACC = 120
    def Af(buf, m): return (136 if buf == 0 else 200) + 4*m
    def Bf(buf, ep): return (168 if buf == 0 else 0) + 4*ep
    AA, BA, cT0, cT1, cT2, LA, LB = 32, 33, 34, 35, 36, 37, 38
    AH = [39, 40, 41]; CT = 42
    def loads(buf, nf, top, roff):
        out = []
        for m in range(nf):
            base = AA if m < 2 else AH[m // 2 - 1]
            o = ((m % 2) * 512 + roff) // 4
            out.append(f"ds_read2_b32 {vr(Af(buf,m),2)}, v{base} offset0:{o} offset1:{o+1}")
            out.append(f"ds_read2_b32 {vr(Af(buf,m)+2,2)}, v{base} offset0:{o+2} offset1:{o+3}")
            ep = top - m
            out.append(f"ds_read_b128 {vr(Bf(buf,ep),4)}, v{BA} offset:{(7-ep)*512 + roff}")
        return out
    def epi_tile(acc, ur, sD, dst):
        e(f"""
        v_and_b32 v{dst+2}, 0xffff0000, v{ur+1}
        v_lshlrev_b32 v{dst+3}, 16, v{ur+1}
        v_fmac_f32 v{acc}, s{sD}, v{dst+2}
        v_fmac_f32 v{acc+1}, s{sD}, v{dst+3}
        v_and_b32 v{dst+2}, 0xffff0000, v{ur}
        v_lshlrev_b32 v{dst+3}, 16, v{ur}
        v_fmac_f32 v{acc+2}, s{sD}, v{dst+2}
        v_fmac_f32 v{acc+3}, s{sD}, v{dst+3}
        v_cvt_pk_bf16_f32 v{dst}, v{acc}, v{acc+1}
        v_cvt_pk_bf16_f32 v{dst+1}, v{acc+2}, v{acc+3}
        """)
    def rr(tiles):
        per = [[(ti, mm, n - mm) for mm in range(n + 1)] for ti, n in enumerate(tiles)]
        out = []
        while any(per):
            for p in per:
                if p: out.append(p.pop(0))
        return out
    sT, sT2, sL, sC = 37, 38, 39, 41
    e("L_gapO:\ns_waitcnt vmcnt(0)")
    g.nonce("L_n3")
    e(f"""
    s_cmp_lg_u32 s{sW}, 0
    s_cbranch_scc1 L_go1
    s_mov_b32 s27, {FL_OFF + 32768}
    v_lshlrev_b32 v{cT0}, 7, v{LANE}
    """)
    g.poll("L_su", cT0, [27], cT1)
    e(f"""
    v_lshrrev_b32 v{cT0}, 2, v{LANE}
    v_sub_u32 v{cT0}, 15, v{cT0}
    v_mul_u32_u24 v{cT0}, 36864, v{cT0}
    v_and_b32 v{cT1}, 48, v{L16}
    v_add_u32 v{cT0}, v{cT0}, v{cT1}
    s_lshl_b32 s37, s{sCA}, 6
    s_lshl_b32 s38, s{sCC}, 6
    """)
    for n in (2, 0, 1):
        for p in range(4):
            base = UT_OFF + (48 - 16*p) * 36864 + (64 if n == 1 else 0)
            e(f"""
            s_mov_b32 m0, {UR_BASE + n*UR_SZ + p*1024}
            s_add_u32 s39, s{38 if n == 2 else 37}, {base}
            buffer_load_dwordx4 v{cT0}, s[{SWS}:{SWS+3}], s39 offen sc1 lds
            """)
    e("L_go1:")
    g.attn_setup()
    e(f"""
    v_and_b32 v{cT0}, 15, v{LANE}
    v_lshrrev_b32 v{cT1}, 4, v{LANE}
    v_lshlrev_b32 v{cT2}, 1, v{cT0}
    v_lshl_add_u32 v{LA}, v{cT1}, 4, v{cT2}
    v_and_b32 v{cT2}, 1, v{cT0}
    v_mul_u32_u24 v{cT2}, {HO_IN + 2}, v{cT2}
    v_add_u32 v{LA}, v{LA}, v{cT2}
    v_sub_u32 v{cT2}, 15, v{cT0}
    v_lshlrev_b32 v{cT2}, 5, v{cT2}
    v_lshl_add_u32 v{LB}, v{cT1}, 4, v{cT2}
    s_lshl_b32 s{sT2}, s{sW}, 7
    s_add_u32 s40, s{sT2}, {H_BASE + 2*H_SZ}
    s_add_u32 s{sT2}, s{sT2}, {UR_BASE + 2*UR_SZ}
    v_add_u32 v{AA}, s40, v{LA}
    v_add_u32 v{BA}, s{sT2}, v{LB}
    v_lshlrev_b32 v{cT2}, 3, v{cT1}
    v_lshl_add_u32 v{cT2}, v{cT0}, 5, v{cT2}
    v_lshrrev_b32 v{cT0}, 1, v{cT0}
    v_mul_u32_u24 v{cT0}, 36864, v{cT0}
    v_and_or_b32 v{cT0}, v{cT2}, 63, v{cT0}
    """)
    for k in range(3): e(f"v_add_u32 v{AH[k]}, {1024*(k+1)}, v{AA}")
    for i in range(0, 8, 2): e(f"v_mov_b64 {vr(ACC+i,2)}, 0")
    e(f"s_cmp_lg_u32 s{sW}, 0\ns_cbranch_scc1 L_go2\ns_waitcnt vmcnt(0)")
    g.arrive(cU, CT)
    e("L_go2:")
    g.spin("L_spU", cU, 5, CT)
    g.stamp(4)
    e(f"""
    s_and_b32 s{sT}, s2, 3
    s_cmp_eq_u32 s{sT}, 1
    s_cbranch_scc1 L_cq1
    s_cmp_eq_u32 s{sT}, 2
    s_cbranch_scc1 L_cq2
    s_cmp_eq_u32 s{sT}, 3
    s_cbranch_scc1 L_cq3
    """)
    for qn in range(4):
        if qn: e(f"L_cq{qn}:")
        tiles = [7 - qn, qn]; nf = 8 - qn
        e(f"s_mov_b32 s42, 0\nL_cql{qn}:")
        for l in loads(0, nf, tiles[0], 0): e(l)
        e("s_waitcnt lgkmcnt(0)")
        for ti, mm, ep in rr(tiles):
            e(f"v_mfma_f32_16x16x32_bf16 {vr(ACC+4*ti,4)}, {vr(Af(0,mm),4)}, {vr(Bf(0,ep),4)}, {vr(ACC+4*ti,4)}")
        for r in (AA, BA, *AH): e(f"v_add_u32 v{r}, 64, v{r}")
        e(f"s_add_u32 s42, s42, 1\ns_cmp_lt_u32 s42, 2\ns_cbranch_scc1 L_cql{qn}")
        if qn < 3: e("s_branch L_cqd")
    e(f"""
    L_cqd:
    s_lshl_b32 s{sT2}, s{sW}, 11
    s_add_u32 s{sT2}, s{sT2}, {CP_BASE}
    v_add_u32 v{cT1}, s{sT2}, v{L16}
    s_sub_u32 s{sT2}, 7, s{sT}
    s_bitcmp1_b32 s{sW}, 0
    s_cselect_b32 s58, s{sT}, s{sT2}
    s_lshr_b32 s{sT}, s{sW}, 1
    s_mul_i32 s40, s{sT}, {H_SZ}
    s_add_u32 s40, s40, {H_BASE}
    s_mul_i32 s{sL}, s{sT}, {UR_SZ}
    s_add_u32 s{sL}, s{sL}, {UR_BASE}
    ds_write_b128 v{cT1}, {vr(ACC,4)}
    ds_write_b128 v{cT1}, {vr(ACC+4,4)} offset:1024
    v_add_u32 v{AA}, s40, v{LA}
    v_add_u32 v{BA}, s{sL}, v{LB}
    """)
    g.arrive(cP, CT)
    for k in range(3): e(f"v_add_u32 v{AH[k]}, {1024*(k+1)}, v{AA}")
    e(f"s_bitcmp1_b32 s{sW}, 0\ns_cbranch_scc1 L_set1")
    for si, tiles in enumerate(([7, 6, 1, 0], [5, 4, 3, 2])):
        nf = max(tiles) + 1; top = tiles[0]
        if si: e("L_set1:")
        mfl = rr(tiles)
        for l in loads(0, nf, top, 0): e(l)
        for i in range(0, 16, 2): e(f"v_mov_b64 {vr(ACC+i,2)}, 0")
        e(f"s_mov_b32 s42, 0\nL_cl{si}:")
        for r in range(2):
            buf = r
            nxt = loads(buf ^ 1, nf, top, 64 * (r + 1))
            e("s_waitcnt lgkmcnt(0)")
            for k, (ti, mm, ep) in enumerate(mfl):
                e(f"v_mfma_f32_16x16x32_bf16 {vr(ACC+4*ti,4)}, {vr(Af(buf,mm),4)}, {vr(Bf(buf,ep),4)}, {vr(ACC+4*ti,4)}")
                for _ in range(2):
                    if nxt: e(nxt.pop(0))
            assert not nxt
        for r in (AA, BA, *AH): e(f"v_add_u32 v{r}, 128, v{r}")
        e(f"""
        s_add_u32 s42, s42, 1
        s_cmp_lt_u32 s42, 4
        s_cbranch_scc1 L_cl{si}
        v_sub_u32 v{AA}, 504, v{cT2}
        v_add_u32 v{AA}, s{sL}, v{AA}
        """)
        for ti, n in enumerate(tiles): e(f"ds_read_b64 {vr(200+2*ti,2)}, v{AA} offset:{3584-512*n}")
        e(f"""
        s_lshl_b32 s{sT}, s52, 16
        s_and_b32 s{sT2}, s52, 0xffff0000
        s_bitcmp1_b32 s{sW}, 1
        s_cselect_b32 s{sT}, s{sT2}, s{sT}
        s_cselect_b32 s{sT2}, 64, 0
        s_lshl_b32 s{sC}, s{sCA}, 6
        s_add_u32 s{sC}, s{sC}, s{sT2}
        s_waitcnt lgkmcnt(0)
        """)
        for ti, n in enumerate(tiles):
            epi_tile(ACC + 4*ti, 200 + 2*ti, sT, 208 + 4*ti)
            e(f"""
            s_add_u32 s{sT2}, s{sC}, {YT_OFF + n*8*36864}
            buffer_store_dwordx2 {vr(208+4*ti,2)}, v{cT0}, s[{SWS}:{SWS+3}], s{sT2} offen sc1
            """)
        if si == 0: e("s_branch L_cend")
    e(f"""
    L_cend:
    s_cmp_ge_u32 s{sW}, 2
    s_cbranch_scc1 L_cfin
    """)
    g.spin("L_spP", cP, 4, CT)
    e(f"""
    s_lshl_b32 s37, s{sW}, 10
    s_add_u32 s37, s37, {CP_BASE}
    v_add_u32 v{cT1}, s37, v{L16}
    s_lshl_b32 s37, s58, 9
    s_sub_u32 s37, {UR_BASE + 2*UR_SZ + 4088}, s37
    v_sub_u32 v{AA}, s37, v{cT2}
    ds_read_b128 {vr(136,4)}, v{cT1}
    ds_read_b128 {vr(140,4)}, v{cT1} offset:2048
    ds_read_b128 {vr(144,4)}, v{cT1} offset:4096
    ds_read_b128 {vr(148,4)}, v{cT1} offset:6144
    ds_read_b64 {vr(200,2)}, v{AA}
    s_lshl_b32 s37, s53, 16
    s_and_b32 s38, s53, 0xffff0000
    s_bitcmp1_b32 s{sCC}, 0
    s_cselect_b32 s37, s38, s37
    s_lshl_b32 s41, s{sCC}, 6
    s_mul_i32 s38, s58, {8*36864}
    s_add_u32 s41, s41, s38
    s_add_u32 s41, s41, {YT_OFF}
    s_waitcnt lgkmcnt(0)
    """)
    for i in range(4): e(f"v_add_f32 v{136+i}, v{136+i}, v{140+i}\nv_add_f32 v{144+i}, v{144+i}, v{148+i}")
    for i in range(4): e(f"v_add_f32 v{136+i}, v{136+i}, v{144+i}")
    epi_tile(136, 200, 37, 152)
    e(f"""
    buffer_store_dwordx2 {vr(152,2)}, v{cT0}, s[{SWS}:{SWS+3}], s41 offen sc1
    L_cfin:
    """)
    g.stamp(5)
    g.spin("L_spF1b", cF1, 1, CT)
    e(qld)
    e("s_waitcnt vmcnt(0)\nL_e2:\ns_barrier")

def phase2(g):
    e, X = g.e, g.X
    T0, T1, T2 = aT0, aT1, aT2
    def koff(b, t): return (b // 2) * KV_CHUNK + (b % 2) * 2048 + t * 1024
    def kxoff(b): return (b // 2) * KV_CHUNK + KX_IN + (b % 2) * 256
    def voff(b, gq, half): return (b // 2) * KV_CHUNK + V_IN + ((b % 2) * 64 + gq * 16 + half * 4) * 40
    def ldK(reg, b, t): e(f"ds_read_b128 {vr(reg,4)}, v{AK} offset:{koff(b,t)}")
    def ldKX(b): e(f"ds_read_b32 v{KX}, v{AKX} offset:{kxoff(b)}")
    def ldV(gq, b):
        e(f"ds_read_b64_tr_b16 {vr(V[gq],2)}, v{AV} offset:{voff(b,gq,0)}")
        e(f"ds_read_b64_tr_b16 {vr(V[gq]+2,2)}, v{AV} offset:{voff(b,gq,1)}")
    def m2b(T): e(f"v_mfma_f32_32x32x4_2b_bf16 {vr(T,32)}, {vr(KX,2)}, {vr(QX,2)}, 0")
    def mx16(T, Kr): e(f"v_mfma_f32_32x32x16_bf16 {vr(T,16)}, {vr(Kr,4)}, {vr(Q,4)}, {vr(T,16)}")
    def msm(gq, P): e(f"v_smfmac_f32_32x32x32_bf16 {vr(O,16)}, {vr(V[gq],4)}, {vr(P+8*gq,8)}, v{IDX}")
    def qk_simple(T):
        m2b(T)
        e("s_nop 15\ns_nop 1")
        mx16(T, K0); mx16(T + 16, K1)
        e("s_nop 11")
    g.stamp(6)
    ldKX(0); ldK(K0, 0, 0); ldK(K1, 0, 1)
    ldV(0, 0); ldV(1, 0); ldV(2, 0)
    e("s_waitcnt lgkmcnt(8)")
    m2b(SA)
    e("s_nop 15\ns_nop 0\ns_waitcnt lgkmcnt(6)")
    mx16(SA, K0); mx16(SA + 16, K1)
    e("s_nop 10")
    e(f"v_max3_f32 v{T0}, v{SA}, v{SA+1}, v{SA+2}")
    e(f"v_max3_f32 v{T1}, v{SA+3}, v{SA+4}, v{SA+5}")
    for i in range(6, 30, 4):
        e(f"v_max3_f32 v{T0}, v{T0}, v{SA+i}, v{SA+i+1}")
        e(f"v_max3_f32 v{T1}, v{T1}, v{SA+i+2}, v{SA+i+3}")
    e(f"v_max3_f32 v{T0}, v{T0}, v{SA+30}, v{SA+31}")
    e(f"""
    v_max_f32 v{T0}, v{T0}, v{T1}
    v_mov_b32 v{T1}, v{T0}
    s_nop 1
    v_permlane32_swap_b32 v{T0}, v{T1}
    v_max_f32 v{T0}, v{T0}, v{T1}
    v_cvt_pk_bf16_f32 v{T1}, -v{T0}, -v{T0}
    v_and_b32 v{T2}, 0xffff0000, v{T1}
    v_sub_f32 v{T2}, -v{T0}, v{T2}
    v_cvt_pk_bf16_f32 v{QX+1}, -v{T0}, v{T2}
    s_nop 1
    """)
    qk_simple(SA)
    ldKX(1); ldK(K0, 1, 0); ldK(K1, 1, 1)
    e("s_waitcnt vmcnt(0) lgkmcnt(0)\ns_barrier")
    g.stamp(7)

    def iteration(b, Sx, Tx, extra):
        ev = {
            2: lambda: (e("s_waitcnt lgkmcnt(6)"), msm(3, Tx), ldV(3, b)),
            6: lambda: (m2b(Tx), ldKX(b + 2)),
            14: lambda: (msm(0, Sx), ldV(0, b + 1)),
            18: lambda: (e("s_waitcnt lgkmcnt(5)"), msm(1, Sx), ldV(1, b + 1)),
            22: lambda: (mx16(Tx, K0), ldK(K0, b + 2, 0)),
            26: lambda: (msm(2, Sx), ldV(2, b + 1)),
            30: lambda: (mx16(Tx + 16, K1), ldK(K1, b + 2, 1)),
        }
        for i in range(32):
            if i in ev:
                ev[i]()
                if extra:
                    x = extra.pop(0)
                    if x: e(x)
            e(f"v_exp_f32 v{Sx+i}, v{Sx+i}")


    YR, QR, PF = 200, 216, 232
    def hook_kv():
        e(f"""
        s_cmp_ge_u32 s{sW}, 4
        s_cbranch_scc1 L_hk1
        s_mov_b32 s37, 0
        L_kvl:
        """)
        e(kv1())
        e(f"""
        s_add_u32 s37, s37, 1
        s_cmp_lt_u32 s37, {38 - NK0}
        s_cbranch_scc1 L_kvl
        s_branch L_hk2
        L_hk1:
        s_cmp_lg_u32 s{sW}, 4
        s_cbranch_scc1 L_hk2
        """)
        g.signal(3)
        e("L_hk2:")
    def hook_pf(k):
        e(f"s_cmp_ge_u32 s{sW}, 4\ns_cbranch_scc1 L_pf{k}")
        if k == 0:
            g.srd(SRB, pWO, D*D*2)
            e(f"""
            s_lshr_b32 s40, s2, 3
            s_mul_i32 s41, s40, 43
            s_lshr_b32 s41, s41, 8
            s_mul_i32 s41, s41, 6
            s_sub_u32 s41, s40, s41
            s_mul_i32 s41, s41, 192
            s_and_b32 s41, s41, 0xffffff80
            s_cmp_ge_u32 s40, 24
            s_cselect_b32 s41, 0x40000000, s41
            v_mul_u32_u24 v{PF+1}, 1152, v{TID}
            """)
        if k < 4:
            e(f"buffer_load_dword v{PF}, v{PF+1}, s[{SRB}:{SRB+3}], s41 offen offset:{128*(k%2)}")
            if k % 2: e(f"s_add_u32 s41, s41, {256*1152}")
        else:
            e(f"buffer_load_dword v{PF}, v{PF+1}, s[{SRB}:{SRB+3}], s41 offen\nbuffer_load_dword v{PF}, v{PF+1}, s[{SRB}:{SRB+3}], s41 offen offset:128")
        e(f"L_pf{k}:")
    def hook_p3ld():
        A = PF + 2
        e(f"""
        s_cmp_ge_u32 s{sW}, 3
        s_cbranch_scc1 L_p3l
        s_and_b32 s38, s2, 3
        s_lshl_b32 s46, s38, 13
        s_add_u32 s46, s46, {FL_OFF + 3*32768}
        v_lshlrev_b32 v{A}, 7, v{LANE}
        """)
        g.poll("L_s3", A, [46], A + 1)
        g.srd(SRD_, pQ, S*D*2)
        e(f"""
        s_lshr_b32 s37, s2, 2
        s_mul_i32 s37, s37, {32*1152}
        s_mul_i32 s38, s38, 288
        s_add_u32 s37, s37, s38
        s_add_u32 s38, s37, {4*1152}
        s_mul_i32 s44, s2, 9216
        s_add_u32 s44, s44, {YT_OFF}
        v_lshrrev_b32 v{A}, 2, v{TID}
        v_and_b32 v{A+1}, 3, v{TID}
        v_lshlrev_b32 v{A+2}, 8, v{A}
        v_lshl_add_u32 v{A+2}, v{A+1}, 4, v{A+2}
        v_mul_u32_u24 v{A+1}, {8*1152}, v{A+1}
        v_lshl_add_u32 v{A}, v{A}, 3, v{A+1}
        v_cmp_gt_u32 vcc, 144, v{TID}
        s_and_b64 exec, exec, vcc
        """)
        for c in range(4):
            e(f"buffer_load_dwordx4 {vr(YR+4*c,4)}, v{A+2}, s[{SWS}:{SWS+3}], s44 offen offset:{64*c} sc1")
        for t in range(8):
            e(f"buffer_load_dwordx2 {vr(QR+2*t,2)}, v{A}, s[{SRD_}:{SRD_+3}], s{37 if t < 4 else 38} offen offset:{(t%4)*1152}")
        e("s_mov_b64 exec, -1\nL_p3l:")
    DV = [240, 241, 242]
    sWD, sWSo = 48, 49
    def wo_setup():
        g.srd(SRB, pWO, D*D*2)
        for i in range(3):
            e(f"""
            v_add_u32 v{243}, {64*i}, v{LANE}
            v_mul_u32_u24 v{244}, 171, v{243}
            v_lshrrev_b32 v{244}, 11, v{244}
            v_mul_u32_u24 v{244}, {1152-192}, v{244}
            v_lshl_add_u32 v{DV[i]}, v{243}, 4, v{244}
            """)
        e(f"""
        s_lshr_b32 s40, s2, 3
        s_mul_i32 s41, s40, 43
        s_lshr_b32 s41, s41, 8
        s_mul_i32 s41, s41, 6
        s_sub_u32 s41, s40, s41
        s_mul_i32 s41, s41, 192
        s_cmp_ge_u32 s40, 24
        s_cselect_b32 s41, 0x40000000, s41
        s_mul_i32 s{sWD}, s{sW}, 3072
        s_mul_i32 s{sWSo}, s{sW}, {16*1152}
        s_add_u32 s{sWSo}, s{sWSo}, s41
        """)
    def wo_list():
        out = []
        for k in range(5):
            for i in range(3):
                t = f"s_add_u32 m0, s{sWD}, {k*8*3072 + i*1024}\n"
                t += (f"s_add_u32 s{sWSo}, s{sWSo}, {128*1152}\n" if (i == 0 and k) else "s_nop 0\n")
                t += f"buffer_load_dwordx4 v{DV[i]}, s[{SRB}:{SRB+3}], s{sWSo} offen lds"
                out.append(t)
        return out

    base = 0
    def sp(l, pat):
        out = [None] * 14
        for x, p in zip(l, pat): out[p] = x
        return out
    for c in range(16):
        extra = []
        if c == 0: hook_kv()
        if c == 3: e("s_waitcnt vmcnt(0)\ns_barrier"); g.stamp(8)
        if 4 <= c <= 8: hook_pf(c - 4)
        if c == 11: hook_p3ld()
        if c == 14:
            wo_setup(); e("s_barrier"); g.stamp(9)
            wl = wo_list(); extra = sp(wl[:10], [0, 1, 3, 4, 6, 7, 8, 10, 11, 13])
        if c == 15: extra = wl[10:]
        if c - base == 4:
            for r in (AK, AV, AKX): e(f"v_add_u32 v{r}, {4*KV_CHUNK}, v{r}")
            base = c
        iteration(2 * (c - base), SA, SB, extra)
        iteration(2 * (c - base) + 1, SB, SA, extra)
        assert not extra
    e("s_waitcnt lgkmcnt(0)")
    msm(3, SB)
    g.stamp(10)
    e("s_nop 3")
    e(f"""
    s_mul_i32 s39, s{sQT}, {36*1024}
    s_lshl_b32 s46, s{sHEAD}, 10
    s_add_u32 s39, s39, {O_OFF}
    s_add_u32 s46, s46, s39
    s_lshl_b32 s47, s{sHEAD}, 7
    s_add_u32 s47, s47, s39
    s_add_u32 s47, s47, {32*1024}
    v_mov_b32 v{SA+4}, 0x7f7fffff
    v_mov_b32 v{T0}, v{O+10}
    v_mov_b32 v{T1}, v{O+10}
    v_add_f32 v{T2}, |v{O}|, |v{O+1}|
    v_add_f32 v{SA}, |v{O+2}|, |v{O+3}|
    v_permlane32_swap_b32 v{T0}, v{T1}
    v_add_f32 v{SA+1}, |v{O+4}|, |v{O+5}|
    v_add_f32 v{SA+2}, |v{O+6}|, |v{O+7}|
    v_add_f32 v{SA+3}, |v{O+8}|, |v{O+9}|
    v_add_f32 v{T2}, v{T2}, v{SA}
    v_add_f32 v{SA+1}, v{SA+1}, v{SA+2}
    v_add_f32 v{T2}, v{T2}, v{SA+1}
    v_cmp_nge_f32 vcc, 0x4e800000, v{T0}
    v_cmp_nle_f32 s[40:41], v{T2}, v{SA+4}
    v_cmp_nle_f32 s[42:43], v{SA+3}, v{SA+4}
    s_or_b64 s[40:41], vcc, s[40:41]
    v_cmp_nle_f32 vcc, 0x30800000, v{T0}
    s_or_b32 s40, s40, s42
    s_or_b64 s[40:41], vcc, s[40:41]
    s_cbranch_scc1 L_slow
    L_afin:
    v_rcp_f32 v{T0}, v{T0}
    v_lshlrev_b32 v{T1}, 2, v{LANE}
    """)
    OS = 112
    for i in range(10): e(f"v_mul_f32 v{O+i}, v{O+i}, v{T0}")
    for i in range(5): e(f"v_cvt_pk_bf16_f32 v{OS+i}, v{O+2*i}, v{O+2*i+1}")
    e(f"""
    buffer_store_dwordx4 {vr(OS,4)}, v{L16}, s[{SWS}:{SWS+3}], s46 offen sc1
    s_mov_b32 exec_hi, 0
    buffer_store_dword v{OS+4}, v{T1}, s[{SWS}:{SWS+3}], s47 offen sc1
    s_mov_b32 exec_hi, -1
    """)

    def tail():
        M = T2; sIT = 37
        GV, GX = 120, 121
        e(f"""
        L_slow:
        v_mov_b32 v{QX+1}, 0
        v_mov_b32 v{M}, 0xff800000
        s_mov_b32 s44, 0
        v_and_b32 v{T0}, 31, v{LANE}
        v_lshrrev_b32 v{T1}, 5, v{LANE}
        v_mul_u32_u24 v{GV}, 320, v{T1}
        v_and_b32 v{T1}, 3, v{T0}
        v_lshl_add_u32 v{GV}, v{T1}, 1, v{GV}
        v_bfe_u32 v{T1}, v{T0}, 2, 1
        v_lshl_add_u32 v{GV}, v{T1}, 4, v{GV}
        v_bfe_u32 v{T1}, v{T0}, 3, 1
        v_lshl_add_u32 v{GV}, v{T1}, 3, v{GV}
        v_bfe_u32 v{T1}, v{T0}, 4, 1
        v_lshl_add_u32 v{GV}, v{T1}, 5, v{GV}
        v_cmp_gt_u32 vcc, 20, v{T0}
        v_mov_b32 v{T1}, 0x40000000
        v_lshlrev_b32 v{GX}, 2, v{LANE}
        v_cndmask_b32 v{GV}, v{T1}, v{GV}, vcc
        L_slow_pass:
        s_mov_b32 s{sIT}, 0
        L_slow_loop:
        s_lshr_b32 s40, s{sIT}, 1
        s_mul_i32 s40, s40, {KV_CHUNK}
        s_add_u32 s40, s40, s{sKVO}
        s_and_b32 s41, s{sIT}, 1
        s_lshl_b32 s42, s41, 11
        s_add_u32 s42, s42, s40
        s_lshl_b32 s43, s41, 8
        s_add_u32 s43, s43, s40
        s_add_u32 s43, s43, {KX_IN}
        s_mul_i32 s41, s41, 2560
        s_add_u32 s41, s41, s40
        s_add_u32 s41, s41, {V_IN}
        buffer_load_dword v{KX}, v{GX}, s[{SWS}:{SWS+3}], s43 offen sc1
        buffer_load_dwordx4 {vr(K0,4)}, v{L16}, s[{SWS}:{SWS+3}], s42 offen sc1
        buffer_load_dwordx4 {vr(K1,4)}, v{L16}, s[{SWS}:{SWS+3}], s42 offen offset:1024 sc1
        s_waitcnt vmcnt(0)
        """)
        qk_simple(SA)
        e("s_cmp_eq_u32 s44, 0\ns_cbranch_scc0 L_slow_pv")
        for i in range(0, 32, 2): e(f"v_max3_f32 v{M}, v{M}, v{SA+i}, v{SA+i+1}")
        e("s_branch L_slow_nx\nL_slow_pv:")
        for gq in range(4):
            for j in range(8):
                e(f"buffer_load_ushort v{SB+8*gq+j}, v{GV}, s[{SWS}:{SWS+3}], s41 offen offset:{(16*gq+j)*40} sc1")
        for i in range(32): e(f"v_sub_f32 v{SA+i}, v{SA+i}, v{M}")
        for i in range(32): e(f"v_exp_f32 v{SA+i}, v{SA+i}")
        e("s_waitcnt vmcnt(0)")
        for gq in range(4):
            for j in range(4):
                e(f"v_lshl_or_b32 v{V[gq]+j}, v{SB+8*gq+2*j+1}, 16, v{SB+8*gq+2*j}")
        e("s_nop 1")
        for gq in range(4): msm(gq, SA)
        e(f"""
        s_nop 7
        L_slow_nx:
        s_add_u32 s{sIT}, s{sIT}, 1
        s_cmp_lt_u32 s{sIT}, 32
        s_cbranch_scc1 L_slow_loop
        s_cmp_eq_u32 s44, 0
        s_cbranch_scc0 L_slow_done
        v_mov_b32 v{T1}, v{M}
        s_nop 1
        v_permlane32_swap_b32 v{M}, v{T1}
        v_max_f32 v{M}, v{M}, v{T1}
        """)
        for i in range(16): e(f"v_mov_b32 v{O+i}, 0")
        e(f"""
        s_mov_b32 s44, 1
        s_branch L_slow_pass
        L_slow_done:
        s_nop 11
        v_mov_b32 v{T0}, v{O+10}
        v_mov_b32 v{T1}, v{O+10}
        s_nop 1
        v_permlane32_swap_b32 v{T0}, v{T1}
        s_nop 0
        s_branch L_afin
        """)
    return tail

def sig_last(g, lbl, c, n, which, tmp):
    g.arrive(c, tmp, 30)
    g.e(f"s_cmp_lg_u32 s30, {n-1}\ns_cbranch_scc1 {lbl}")
    g.signal(which)
    g.e(f"{lbl}:")

def phase3(g):
    e, X = g.e, g.X
    sOUT = SRC
    g.srd(sOUT, pOUT, S*1152*2)
    e(f"s_cmp_ge_u32 s{sW}, 4\ns_cbranch_scc1 L_grpY")
    YR, QR = 200, 216
    OUTR, PO, QF = 16, 41, 48
    e(f"""
    v_lshrrev_b32 v0, 2, v{TID}
    v_and_b32 v1, 3, v{TID}
    v_mul_u32_u24 v{PO}, {8*2304}, v1
    v_lshl_add_u32 v{PO}, v0, 3, v{PO}
    s_lshr_b32 s45, s2, 2
    s_mul_i32 s45, s45, {32*2304}
    s_and_b32 s38, s2, 3
    s_mul_i32 s38, s38, 288
    s_add_u32 s45, s45, s38
    s_add_u32 s45, s45, 1152
    s_waitcnt vmcnt(0)
    """)
    sig_last(g, "L_sgA1", cA, 8, 2, 2)
    g.stamp(11)
    e(f"s_cmp_eq_u32 s{sW}, 3\ns_cbranch_scc1 L_endf")
    g.spin("L_spA1", cA, 8, 2)
    e(f"v_cmp_gt_u32 vcc, 144, v{TID}\ns_and_b64 exec, exec, vcc")
    for t in range(8):
        for cp in range(2):
            b = 4 + 2 * cp; a = 8 + 2 * cp
            e(f"v_lshlrev_b32 v{a}, 16, v{QR+2*t+cp}\nv_and_b32 v{a+1}, 0xffff0000, v{QR+2*t+cp}")
            for k in range(2):
                src = YR + 4*(2*cp+k) + t//2
                e(f"v_lshlrev_b32 v{b+k}, 16, v{src}" if t % 2 == 0 else f"v_and_b32 v{b+k}, 0xffff0000, v{src}")
            e(f"v_pk_mul_f32 {vr(a,2)}, {vr(a,2)}, {vr(b,2)}")
            e(f"v_cvt_pk_bf16_f32 v{OUTR+2*t+cp}, v{a}, v{a+1}")
        e(f"buffer_store_dwordx2 {vr(OUTR+2*t,2)}, v{PO}, s[{sOUT}:{sOUT+3}], s45 offen")
        e(f"s_add_u32 s45, s45, 2304")
    e("s_branch L_endf")

    OF, ACC, WF = 0, 72, 120
    WA, WX = 144, 145
    T0, T1, T2, T3 = 150, 151, 152, 153
    sTB, sFB, sT, sT2, sG, sTW, sKH, sIDX = 33, 34, 35, 36, 37, 38, 39, 40
    RB = 122880
    e(f"""
    L_grpY:
    s_lshr_b32 s{sIDX}, s2, 3
    s_and_b32 s{sT}, s2, 7
    s_mul_i32 s{sT2}, s{sIDX}, 43
    s_lshr_b32 s{sT2}, s{sT2}, 8
    s_mul_i32 s{sFB}, s{sT2}, 6
    s_sub_u32 s{sFB}, s{sIDX}, s{sFB}
    s_lshl_b32 s{sTB}, s{sT}, 2
    s_add_u32 s{sTB}, s{sTB}, s{sT2}
    s_mul_i32 s45, s{sFB}, 192
    s_lshl_b32 s46, s{sT}, 12
    s_add_u32 s46, s46, {FL_OFF + 2*32768}
    s_and_b32 s{sTW}, s{sW}, 1
    s_bfe_u32 s{sKH}, s{sW}, 0x10001
    s_lshl_b32 s{sT}, s{sTB}, 1
    s_add_u32 s{sT}, s{sT}, s{sTW}
    s_mul_i32 s{sT}, s{sT}, {36*1024}
    s_add_u32 s{sT}, s{sT}, {O_OFF}
    s_lshl_b32 s{sT2}, s{sKH}, 14
    s_add_u32 s43, s{sT}, s{sT2}
    s_lshl_b32 s{sT2}, s{sKH}, 11
    s_add_u32 s44, s{sT}, s{sT2}
    s_add_u32 s44, s44, 0x8000
    v_lshrrev_b32 v{T0}, 5, v{LANE}
    v_bfe_u32 v{T1}, v{LANE}, 2, 2
    v_and_b32 v{T2}, 3, v{LANE}
    v_lshlrev_b32 v{T2}, 3, v{T2}
    v_and_b32 v{T3}, 16, v{LANE}
    v_lshl_add_u32 v{T2}, v{T3}, 1, v{T2}
    v_mul_u32_u24 v{T1}, 192, v{T1}
    s_mul_i32 s{sT}, s{sKH}, {288*192}
    v_add3_u32 v{T2}, v{T2}, v{T1}, s{sT}
    v_mul_u32_u24 v{T1}, {4*192}, v{T0}
    v_add_u32 v{WA}, v{T2}, v{T1}
    v_mul_u32_u24 v{T1}, {72*192}, v{T0}
    v_add_u32 v{WX}, v{T2}, v{T1}
    v_and_b32 v{T3}, 31, v{LANE}
    v_lshlrev_b32 v4, 7, v{T3}
    v_lshlrev_b32 v{T3}, 2, v{T3}
    v_lshl_add_u32 v{T3}, v{T0}, 9, v{T3}
    s_waitcnt vmcnt(0)
    """)
    sig_last(g, "L_sgA3", cA, 8, 2, T0)
    g.stamp(11)
    e(f"""
    s_cmp_ge_u32 s{sIDX}, 24
    s_cbranch_scc1 L_endf
    s_cmp_lg_u32 s{sW}, 4
    s_cbranch_scc1 L_p2w
    """)
    g.poll("L_s2", 4, [46], 0)
    g.arrive(cF2, T0)
    e("L_p2w:")
    g.spin("L_spF2", cF2, 1, T0)
    g.stamp(12)
    for i in range(16):
        if i % 4 == 0 and i: e(f"s_add_u32 s43, s43, 4096")
        e(f"buffer_load_dwordx4 {vr(OF+4*i,4)}, v{L16}, s[{SWS}:{SWS+3}], s43 offen offset:{(i%4)*1024} sc1")
    for i in range(8):
        e(f"buffer_load_dword v{OF+64+i}, v{T3}, s[{SWS}:{SWS+3}], s44 offen offset:{(i//4)*1024 + (i%4)*128} sc1")
    g.spin("L_spA2", cA, 8, T0)
    def ldw(ks, buf):
        for ft in range(3):
            for rd in range(2):
                if ks < 16: off = (18*ks + 2*(ks % 2) + 8*rd) * 192 + ft*64; a = WA
                else: off = (144*(ks-16) + 36*rd + 16) * 192 + ft*64; a = WX
                e(f"ds_read_b64_tr_b16 {vr(WF+12*buf+4*ft+2*rd,2)}, v{a} offset:{off}")
    ldw(0, 0)
    for ks in range(18):
        buf = ks % 2
        n = 23 - ks if ks < 16 else (4 if ks == 16 else 0)
        if ks < 17:
            ldw(ks+1, buf ^ 1)
            e(f"s_waitcnt vmcnt({n}) lgkmcnt(6)")
        else:
            e("s_waitcnt vmcnt(0) lgkmcnt(0)")
        for ft in range(3):
            c = "0" if ks == 0 else vr(ACC+16*ft,16)
            e(f"v_mfma_f32_32x32x16_bf16 {vr(ACC+16*ft,16)}, {vr(WF+12*buf+4*ft,4)}, {vr(OF+4*ks,4)}, {c}")
    g.stamp(13)
    e(f"""
    s_and_b32 s{sT}, s{sW}, 3
    s_xor_b32 s{sT2}, s{sT}, 2
    s_mul_i32 s{sT}, s{sT}, 6144
    s_mul_i32 s{sT2}, s{sT2}, 6144
    s_add_u32 s{sT}, s{sT}, {RB}
    s_add_u32 s{sT2}, s{sT2}, {RB}
    v_add_u32 v{T0}, s{sT}, v{L16}
    v_add_u32 v{T1}, s{sT2}, v{L16}
    s_lshl_b32 s{sT}, s{sTW}, 2
    s_add_u32 s{sT}, s{sT}, {CNT + cR}
    v_mov_b32 v{T2}, s{sT}
    v_mov_b32 v{T3}, 1
    s_cmp_eq_u32 s{sKH}, 0
    s_cbranch_scc0 L_kh1
    """)
    def red(kh):
        own, oth = 8*kh, 8*(1-kh)
        for ft in range(3):
            for gq in range(2):
                e(f"ds_write_b128 v{T0}, {vr(ACC+16*ft+oth+4*gq,4)} offset:{(2*ft+gq)*1024}")
        e(f"s_mov_b64 exec, 1\nds_add_u32 v{T2}, v{T3}\ns_mov_b64 exec, -1")
        g.spin(f"L_spR{kh}", None, 2, T2, vaddr=T2)
        for ft in range(3):
            for gq in range(2):
                e(f"ds_read_b128 {vr(OF+8*ft+4*gq,4)}, v{T1} offset:{(2*ft+gq)*1024}")
        for ft in range(3):
            e(f"s_waitcnt lgkmcnt({4-2*ft})")
            for i in range(8): e(f"v_add_f32 v{OF+8*ft+i}, v{OF+8*ft+i}, v{ACC+16*ft+own+i}")
    red(0)
    e("s_branch L_ost\nL_kh1:")
    red(1)
    e("L_ost:")
    for ft in range(3):
        for i in range(4): e(f"v_cvt_pk_bf16_f32 v{OF+24+4*ft+i}, v{OF+8*ft+2*i}, v{OF+8*ft+2*i+1}")
    e(f"""
    v_and_b32 v{T0}, 31, v{LANE}
    v_mul_u32_u24 v{T0}, 2304, v{T0}
    v_lshrrev_b32 v{T1}, 5, v{LANE}
    v_lshl_add_u32 v{T0}, v{T1}, 4, v{T0}
    s_lshl_b32 s{sT}, s{sTB}, 1
    s_add_u32 s{sT}, s{sT}, s{sTW}
    s_mul_i32 s{sT}, s{sT}, {32*2304}
    s_lshl_b32 s{sT2}, s{sKH}, 5
    s_add_u32 s{sT}, s{sT}, s{sT2}
    s_add_u32 s{sT}, s{sT}, s45
    """)
    for ft in range(3):
        b = OF + 24 + 4*ft
        e(f"v_permlane32_swap_b32 v{b}, v{b+2}\nv_permlane32_swap_b32 v{b+1}, v{b+3}")
    for ft in range(3):
        b = OF + 24 + 4*ft
        e(f"buffer_store_dwordx4 {vr(b,4)}, v{T0}, s[{sOUT}:{sOUT+3}], s{sT} offen offset:{ft*64}")
    e("L_endf:")
    g.flush()
    e("L_end:\ns_endpgm")

def build(X=()):
    g = G(X)
    g.e(f".globl {NAME}\n.p2align 8\n.type {NAME},@function\n{NAME}:")
    g.attn_setup = lambda: attn_setup(g)
    phase1(g)
    gap(g)
    tail = phase2(g)
    phase3(g)
    tail()
    hdr = open("concat_heads__softmax_full_mha__ssm_conv_h3__prompt.s.ref").read().split("; Override")[0]
    s = hdr + "; @launch grid=(256,1,1) block=(512,1,1) lds=163840\n"
    s += '.amdgcn_target "amdgcn-amd-amdhsa--gfx950"\n.text\n' + g.e.text()
    s += '.section .rodata,"a"\n.p2align 6\n' + kernel_desc(NAME, 256)
    return s

if __name__ == "__main__":
    open(sys.argv[1], "w").write(build(tuple(sys.argv[2:])))
```

```python
import sys
from common import *

NAME = "concat_heads__softmax_full_mha__ssm_conv_h3__prompt_kernel"
SRA, SWS, SRB, SRC, SRD_ = 4, 8, 12, 16, 20
sW, sNONCE = 24, 25
sHEAD, sQT, sKVO = 31, 32, 51
pX, pWQ, pWO, pQ, pK, pV, pSH, pH, pD, pOUT, pDBG, pWS = range(64, 88, 2)
VST = 255
LANE, L16, TID, VN = 250, 251, 252, 253
UR_BASE, UR_SZ = 116736, 4608
H_BASE, H_SZ, HO_IN = 130560, 8320, 4160
CP_BASE = 65536
CNT = 163840 - 64
cS, cA, cW, cP, cU, cR, cF2, cF1 = 0, 4, 8, 12, 16, 20, 28, 32
sCA, sCC = 59, 60
WO_BASE = 0
PBOUND = 0x200000

class G:
    def __init__(self, X):
        self.e = Asm(); self.X = X; self.ST = "st" in X
        self.PS = next((int(x[2:]) for x in X if x.startswith("ps")), 2)
    def stamp(self, i):
        if self.ST: self.e(f"s_memtime s[88:89]\ns_waitcnt lgkmcnt(0)\nv_writelane_b32 v{VST}, s88, {i}")
    def rstamp(self, i):
        if self.ST: self.e(f"s_memrealtime s[88:89]\ns_waitcnt lgkmcnt(0)\nv_writelane_b32 v{VST}, s88, {i}")
    def flush(self):
        if self.ST:
            self.e("s_waitcnt vmcnt(0)")
            self.stamp(30); self.rstamp(31)
            self.e(f"""
            s_mov_b64 exec, -1
            s_lshl_b32 s88, s2, 3
            s_add_u32 s88, s88, s{sW}
            s_lshl_b32 s88, s88, 8
            s_add_u32 s88, s88, {ST_OFF}
            s_mov_b32 s{SWS+2}, 0x1000000
            v_lshlrev_b32 v0, 2, v{LANE}
            buffer_store_dword v{VST}, v0, s[{SWS}:{SWS+3}], s88 offen
            """)
    def srd(self, slot, ptr, nbytes):
        self.e(f"s_mov_b64 s[{slot}:{slot+1}], s[{ptr}:{ptr+1}]\ns_mov_b32 s{slot+2}, {nbytes}\ns_mov_b32 s{slot+3}, 0x20000")
    def signal(self, which, sidx=2):
        self.e(f"""
        s_lshl_b32 s26, s{sidx}, 7
        s_add_u32 s26, s26, {FL_OFF + which*32768}
        v_mov_b32 v{VN}, s{sNONCE}
        s_mov_b64 exec, 1
        buffer_store_dword v{VN}, v{L16}, s[{SWS}:{SWS+3}], s26 offen sc1
        s_mov_b64 exec, -1
        """)
    def ids(self):
        e = self.e
        self.srd(SWS, pWS, WS_USED); self.srd(SRA, pDBG, 256)
        e(f"""
        s_and_b32 s{sHEAD}, s2, 7
        s_lshl_b32 s{sHEAD}, s{sHEAD}, 2
        s_bfe_u32 s26, s2, 0x20003
        s_add_u32 s{sHEAD}, s{sHEAD}, s26
        s_lshr_b32 s{sQT}, s2, 5
        s_lshl_b32 s{sQT}, s{sQT}, 3
        s_add_u32 s{sQT}, s{sQT}, s{sW}
        s_mul_i32 s{sKVO}, s{sHEAD}, {KV_HEAD}
        s_add_u32 s{sKVO}, s{sKVO}, {KV_OFF}
        s_lshr_b32 s26, s2, 6
        s_mul_i32 s26, s26, 144
        s_and_b32 s27, s2, 63
        s_lshl_b32 s{sCA}, s27, 1
        s_add_u32 s{sCA}, s{sCA}, s26
        s_lshr_b32 s{sCC}, s27, 2
        s_add_u32 s{sCC}, s{sCC}, s26
        s_add_u32 s{sCC}, s{sCC}, 128
        """)
    def lds_init(self, t):
        self.e(f"""
        s_lshl_b32 s26, s{sCA}, 1
        s_load_dword s52, s[{pD}:{pD+1}], s26
        s_lshr_b32 s26, s{sCC}, 1
        s_lshl_b32 s26, s26, 2
        s_load_dword s53, s[{pD}:{pD+1}], s26
        v_mov_b64 {vr(244,2)}, 0
        v_mov_b64 {vr(246,2)}, 0
        v_and_b32 v248, {31*16}, v{L16}
        v_add_u32 v248, {UR_BASE + 4096}, v248
        ds_write_b128 v248, {vr(244,4)}
        ds_write_b128 v248, {vr(244,4)} offset:{UR_SZ}
        ds_write_b128 v248, {vr(244,4)} offset:{2*UR_SZ}
        v_and_b32 v248, 48, v{L16}
        v_add_u32 v248, {CNT}, v248
        ds_write_b128 v248, {vr(244,4)}
        """)
    def hdma(self, t):
        e = self.e
        self.srd(SRD_, pH, D*S*2)
        e(f"""
        s_and_b32 s26, s{sW}, 3
        s_lshl_b32 s26, s26, 10
        s_lshl_b32 s27, s{sCA}, 12
        s_lshl_b32 s29, s{sCC}, 12
        v_mov_b32 v{t+1}, s29
        v_lshlrev_b32 v{t}, 11, v{LANE}
        v_and_b32 v{t}, 4096, v{t}
        v_cmp_gt_u32 vcc, 4, v{LANE}
        v_add_u32 v{t}, s27, v{t}
        s_add_u32 s27, s27, s26
        s_add_u32 s28, s27, 4096
        s_add_u32 s29, s29, s26
        v_cndmask_b32 v{t}, v{t+1}, v{t}, vcc
        v_mov_b32 v{VN}, 0
        """)
        for cp in (1, 0):
            for n in range(3):
                e(f"""
                s_add_u32 m0, s26, {H_BASE + n*H_SZ + cp*HO_IN + 32}
                {"s_nop 0" if cp else f"s_add_u32 s{27+n}, s{27+n}, 2"}
                buffer_load_dwordx4 v{L16}, s[{SRD_}:{SRD_+3}], s{27+n} offen lds
                """)
        e(f"""
        buffer_load_dword v249, v{t}, s[{SRD_}:{SRD_+3}], 0 offen
        buffer_load_dword v{VN}, v{VN}, s[{SRA}:{SRA+3}], 0 offen sc1
        """)
    def hfix(self, lbl, t):
        self.e(f"""
        s_cmp_lg_u32 s{sW}, 7
        s_cbranch_scc1 L_hf{lbl}
        v_mul_u32_u24 v{t}, {HO_IN}, v{LANE}
        v_and_b32 v{t+1}, 1, v{LANE}
        v_cmp_eq_u32 vcc, 0, v{t+1}
        v_mov_b64 {vr(240,2)}, 0
        v_mov_b64 {vr(242,2)}, 0
        v_mov_b64 {vr(244,2)}, 0
        v_mov_b32 v246, 0
        v_lshlrev_b32 v{t+1}, 16, v249
        v_cndmask_b32 v247, 0, v{t+1}, vcc
        v_add_u32 v{t}, {H_BASE}, v{t}
        s_mov_b64 exec, 63
        ds_write_b128 v{t}, {vr(240,4)}
        ds_write_b128 v{t}, {vr(244,4)} offset:16
        s_mov_b64 exec, -1
        L_hf{lbl}:
        """)
        self.arrive(cU, t + 2)
    def nonce(self, lbl):
        self.e(f"""
        s_mov_b32 s30, 0
        {lbl}:
        v_readfirstlane_b32 s{sNONCE}, v{VN}
        s_add_u32 s30, s30, 1
        s_cmp_gt_u32 s30, {PBOUND}
        s_cbranch_scc1 {lbl}_d
        s_cmp_lg_u32 s{sNONCE}, 0
        s_cbranch_scc1 {lbl}_d
        v_mov_b32 v{VN}, 0
        s_nop 0
        buffer_load_dword v{VN}, v{VN}, s[{SRA}:{SRA+3}], 0 offen sc1
        s_waitcnt vmcnt(0)
        s_branch {lbl}
        {lbl}_d:
        """)
    def arrive(self, c, tmp, ret=None):
        self.e(f"v_mov_b32 v{tmp}, {CNT + c}\nv_mov_b32 v{tmp+1}, 1\ns_mov_b64 exec, 1")
        if ret is None:
            self.e(f"ds_add_u32 v{tmp}, v{tmp+1}\ns_mov_b64 exec, -1")
        else:
            self.e(f"ds_add_rtn_u32 v{tmp+1}, v{tmp}, v{tmp+1}\ns_mov_b64 exec, -1\ns_waitcnt lgkmcnt(0)\nv_readfirstlane_b32 s{ret}, v{tmp+1}")
    def spin(self, lbl, c, n, tmp, vaddr=None):
        if vaddr is None:
            self.e(f"v_mov_b32 v{tmp}, {CNT + c}"); vaddr = tmp
        self.e(f"""
        s_branch {lbl}
        {lbl}_s:
        s_sleep 1
        {lbl}:
        ds_read_b32 v{tmp+1}, v{vaddr}
        s_waitcnt lgkmcnt(0)
        v_readfirstlane_b32 s30, v{tmp+1}
        s_cmp_lt_u32 s30, {n}
        s_cbranch_scc1 {lbl}_s
        """)
    def poll(self, lbl, vaddr, soffs, tmp):
        e = self.e
        e(f"s_mov_b32 s30, 0\n{lbl}_poll:")
        for i, so in enumerate(soffs):
            e(f"buffer_load_dword v{tmp+i}, v{vaddr}, s[{SWS}:{SWS+3}], s{so} offen sc1")
        e("s_waitcnt vmcnt(0)")
        for i in range(len(soffs)): e(f"v_xor_b32 v{tmp+i}, s{sNONCE}, v{tmp+i}")
        for i in range(1, len(soffs)): e(f"v_or_b32 v{tmp}, v{tmp}, v{tmp+i}")
        e(f"""
        v_cmp_ne_u32 vcc, 0, v{tmp}
        s_add_u32 s30, s30, 1
        s_cmp_gt_u32 s30, {PBOUND}
        s_cbranch_scc1 {lbl}_pdone
        s_cmp_eq_u64 vcc, 0
        s_cbranch_scc1 {lbl}_pdone
        s_sleep {self.PS}
        s_branch {lbl}_poll
        {lbl}_pdone:
        """)

def phase1(g):
    e, X = g.e, g.X
    SLOT = 36864; WOFF = 16384; WROW = 320
    ACC = [0, 16, 32, 48, 64]
    XF = [80, 84]
    WF = [[88, 92, 96, 100, 104], [108, 112, 116, 120, 124]]
    XA = [128, 129, 130, 131]; WA, WB, WE = 132, 133, 134
    DX = [128, 129]; DW = [130, 131, 132, 133, 134]
    T0, T1, T2, T3 = 140, 141, 142, 143
    EP = 144
    sX, sWq = SRB, SRC
    sTT, sCT, sT, sT2, sT3 = 35, 36, 37, 38, 39
    sXO, sWO, sM0, sKB, sST, sDL = 40, 41, 42, 43, 44, 45
    e(f"""
    s_cmp_ge_u32 s2, 256
    s_cbranch_scc1 L_end
    s_load_dwordx16 s[64:79], s[0:1], 0
    s_load_dwordx8 s[80:87], s[0:1], 64
    v_mov_b32 v{TID}, v0
    v_lshrrev_b32 v{T0}, 6, v0
    v_and_b32 v{LANE}, 63, v0
    s_and_b32 s{sT}, s2, 7
    v_readfirstlane_b32 s{sW}, v{T0}
    s_lshr_b32 s{sT2}, s2, 3
    v_lshlrev_b32 v{L16}, 4, v{LANE}
    s_cmp_ge_u32 s{sT2}, 24
    s_cbranch_scc1 L_ssmwg
    s_mul_i32 s{sT3}, s{sT2}, 43
    s_lshr_b32 s{sT3}, s{sT3}, 8
    s_mul_i32 s{sCT}, s{sT3}, 6
    s_sub_u32 s{sT2}, s{sT2}, s{sCT}
    s_lshr_b32 s{sTT}, s{sT}, 1
    s_lshl_b32 s{sTT}, s{sTT}, 2
    s_add_u32 s{sTT}, s{sTT}, s{sT3}
    s_and_b32 s{sCT}, s{sT}, 1
    s_mul_i32 s{sCT}, s{sCT}, 6
    s_add_u32 s{sCT}, s{sCT}, s{sT2}
    s_cmp_lt_u32 s{sW}, 4
    s_cbranch_scc1 L_cons
    """)
    e(f"""
    s_lshl_b32 s{sKB}, s{sT3}, 1
    s_add_u32 s{sKB}, s{sKB}, s{sT2}
    s_lshr_b32 s{sT2}, s{sT2}, 1
    s_add_u32 s{sKB}, s{sKB}, s{sT2}
    s_cmp_ge_u32 s{sKB}, 9
    s_cselect_b32 s{sT}, 9, 0
    s_sub_u32 s{sKB}, s{sKB}, s{sT}
    s_and_b32 s{sT3}, s{sW}, 3
    v_lshrrev_b32 v{T0}, 3, v{LANE}
    s_lshl_b32 s{sT}, s{sTT}, 7
    s_lshl_b32 s{sT2}, s{sT3}, 5
    s_add_u32 s{sT}, s{sT}, s{sT2}
    v_add_u32 v{T0}, s{sT}, v{T0}
    v_mul_u32_u24 v{T0}, 1152, v{T0}
    v_lshrrev_b32 v{T1}, 4, v{LANE}
    v_and_b32 v{T2}, 7, v{LANE}
    v_xor_b32 v{T2}, v{T2}, v{T1}
    v_lshl_add_u32 v{DX[0]}, v{T2}, 4, v{T0}
    v_xor_b32 v{T2}, 4, v{T2}
    v_lshl_add_u32 v{DX[1]}, v{T2}, 4, v{T0}
    v_add_u32 v{DX[1]}, {8*1152}, v{DX[1]}
    s_mul_i32 s{sT}, s{sCT}, 288
    s_and_b32 s{sT}, s{sT}, 0xffffffc0
    s_mul_i32 s{sT2}, s{sT3}, {16*3456}
    s_add_u32 s{sT}, s{sT}, s{sT2}
    """)
    for i in range(5):
        e(f"""
        v_add_u32 v{T0}, {64*i}, v{LANE}
        v_mul_u32_u24 v{T1}, 205, v{T0}
        v_lshrrev_b32 v{T1}, 12, v{T1}
        v_lshrrev_b32 v{T2}, 2, v{T1}
        v_and_b32 v{T2}, 2, v{T2}
        v_xor_b32 v{T0}, v{T0}, v{T2}
        v_mul_u32_u24 v{T1}, {3456-320}, v{T1}
        v_lshl_add_u32 v{T1}, v{T0}, 4, v{T1}
        v_add_u32 v{DW[i]}, s{sT}, v{T1}
        """)
    e(f"""
    s_lshl_b32 s{sM0}, s{sT3}, 12
    s_mul_i32 s46, s{sT3}, 5120
    s_add_u32 s46, s46, {WOFF}
    s_mov_b32 s{sX+2}, {S*D*2}
    s_mov_b32 s{sX+3}, 0x20000
    s_mov_b32 s{sWq+2}, {D*1728*2}
    s_mov_b32 s{sWq+3}, 0x20000
    s_mov_b32 s{sST}, 0
    s_mov_b32 s47, 0
    s_waitcnt lgkmcnt(0)
    s_mov_b64 s[{sX}:{sX+1}], s[{pX}:{pX+1}]
    s_mov_b64 s[{sWq}:{sWq+1}], s[{pWQ}:{pWQ+1}]
    """)
    g.stamp(0); g.rstamp(29)
    e(f"""
    L_prod:
    s_lshl_b32 s{sXO}, s{sKB}, 7
    s_mul_i32 s{sWO}, s{sKB}, {64*3456}
    s_add_u32 s48, s{sM0}, s47
    s_add_u32 s49, s46, s47
    """)
    for i in range(5):
        e(f"""
        s_add_u32 m0, s49, {1024*i}
        s_nop 0
        buffer_load_dwordx4 v{DW[i]}, s[{sWq}:{sWq+3}], s{sWO} offen lds
        """)
        if i < 4:
            e(f"""
            s_add_u32 m0, s48, {1024*i}
            {f"s_add_u32 s{sXO}, s{sXO}, {16*1152}" if i == 2 else "s_nop 0"}
            buffer_load_dwordx4 v{DX[i%2]}, s[{sX}:{sX+3}], s{sXO} offen lds
            """)
    e(f"""
    s_add_u32 s47, s47, {SLOT}
    s_cmp_eq_u32 s47, {3*SLOT}
    s_cselect_b32 s47, 0, s47
    s_add_u32 s{sKB}, s{sKB}, 1
    s_cmp_eq_u32 s{sKB}, 9
    s_cselect_b32 s{sKB}, 0, s{sKB}
    s_add_u32 s{sST}, s{sST}, 1
    s_cmp_lt_u32 s{sST}, 2
    s_cbranch_scc1 L_prod
    s_waitcnt vmcnt(9)
    s_barrier
    s_cmp_lt_u32 s{sST}, 9
    s_cbranch_scc1 L_prod
    """)
    g.ids()
    HL = "hlate" in X
    if not HL: g.hdma(T0)
    e(f"s_waitcnt vmcnt({0 if HL else 8})\ns_barrier\ns_branch L_epi2")
    XF = [[72 + 4*h for h in range(4)], [88 + 4*h for h in range(4)]]
    WF = [104 + 4*i for i in range(5)]
    XA = [[[160, 161], [162, 163]], [[164, 165], [166, 167]]]
    WA = [[168 + i for i in range(5)], [173 + i for i in range(5)]]
    COL = [0, 40, 72, 112]
    e(f"""
    L_cons:
    s_and_b32 s33, s{sW}, 1
    s_lshr_b32 s34, s{sW}, 1
    v_and_b32 v{T0}, 15, v{LANE}
    v_lshrrev_b32 v{T1}, 4, v{LANE}
    v_lshrrev_b32 v{T2}, 1, v{T0}
    v_xor_b32 v{T2}, v{T2}, v{T1}
    v_lshlrev_b32 v{T2}, 4, v{T2}
    v_lshl_add_u32 v{T2}, v{T0}, 7, v{T2}
    s_lshl_b32 s{sT}, s33, 13
    s_lshl_b32 s{sT2}, s34, 12
    s_add_u32 s{sT}, s{sT}, s{sT2}
    v_add_u32 v{XA[0][0][0]}, s{sT}, v{T2}
    v_xor_b32 v{XA[0][0][1]}, 4096, v{XA[0][0][0]}
    v_xor_b32 v{XA[0][1][0]}, 64, v{XA[0][0][0]}
    v_xor_b32 v{XA[0][1][1]}, 64, v{XA[0][0][1]}
    v_bfe_u32 v{T2}, v{LANE}, 2, 2
    v_lshl_add_u32 v{T3}, v{T1}, 3, v{T2}
    v_mul_u32_u24 v{T3}, {WROW}, v{T3}
    v_add_u32 v{T3}, {WOFF}, v{T3}
    s_and_b32 s{sT}, s{sCT}, 1
    s_lshl_b32 s{sT}, s{sT}, 5
    s_mul_i32 s{sT2}, s34, 144
    s_add_u32 s{sT2}, s{sT2}, s{sT}
    v_and_b32 v{T0}, 3, v{LANE}
    v_and_b32 v{T1}, 16, v{LANE}
    v_lshlrev_b32 v{T1}, 1, v{T1}
    v_lshl_add_u32 v{T2}, v{T0}, 3, s{sT2}
    """)
    for t in range(4):
        r = WA[0][t]
        e(f"v_add_u32 v{r}, {COL[t]}, v{T2}\nv_xor_b32 v{r}, v{r}, v{T1}\nv_add_u32 v{r}, v{r}, v{T3}")
    e(f"""
    v_mul_u32_u24 v{T0}, 72, v{T0}
    v_add3_u32 v{T0}, v{T0}, 32, s{sT}
    v_xor_b32 v{T0}, v{T0}, v{T1}
    v_add_u32 v{WA[0][4]}, v{T0}, v{T3}
    s_mov_b32 s{sT}, {2*SLOT}
    """)
    for r in range(160, 164): e(f"v_add_u32 v{r+4}, s{sT}, v{r}")
    for r in range(168, 173): e(f"v_add_u32 v{r+5}, s{sT}, v{r}")
    for i in range(0, 72, 2): e(f"v_mov_b64 {vr(i,2)}, 0")
    e("s_waitcnt lgkmcnt(0)")
    g.stamp(0); g.rstamp(29)
    g.ids()
    g.lds_init(T0)
    e(f"""
    s_or_b32 s{sT}, s2, s{sW}
    s_cmp_lg_u32 s{sT}, 0
    s_cbranch_scc1 L_nononce
    s_memrealtime s[46:47]
    s_waitcnt lgkmcnt(0)
    s_or_b32 s46, s46, 1
    v_mov_b32 v{T0}, s46
    s_mov_b64 exec, 1
    buffer_store_dword v{T0}, v{L16}, s[{SRA}:{SRA+3}], 0 offen sc1
    s_mov_b64 exec, -1
    L_nononce:
    s_mov_b32 s{sST}, 0
    s_and_b32 s48, s{sCT}, 3
    s_lshl_b32 s48, s48, 2
    s_add_u32 s48, s48, s{sW}
    s_lshl_b32 s48, s48, 5
    s_add_u32 s48, s48, s{sTT}
    s_mul_i32 s54, s48, {QI_BLK}
    s_mul_i32 s{sT2}, s48, {KV_CHUNK}
    s_add_u32 s{sT2}, s{sT2}, {KV_OFF}
    s_mov_b32 s55, {KV_HEAD}
    s_cmp_lt_u32 s{sCT}, 4
    s_cselect_b32 s54, s54, s{sT2}
    s_cselect_b32 s55, {QI_HEAD}, s55
    s_cmp_ge_u32 s{sCT}, 8
    s_cselect_b32 s{sT2}, {V_IN}, 0
    s_cselect_b32 s56, 4096, s{sT2}
    s_add_u32 s54, s54, s{sT2}
    s_cmp_lt_u32 s{sCT}, 8
    s_cselect_b32 s56, 3584, s56
    s_add_u32 s55, s55, s54
    s_add_u32 s57, s55, s56
    s_add_u32 s56, s54, s56
    s_waitcnt lgkmcnt(0)
    s_barrier
    """)
    g.stamp(1)
    def so(slot): return (slot // 2, (slot % 2) * SLOT)
    def ldx(slot, k2, h):
        st, off = so(slot)
        return f"ds_read_b128 {vr(XF[k2][h],4)}, v{XA[st][k2][h//2]} offset:{off + 2048*(h%2)}"
    def ldw(slot, k2, i):
        st, off = so(slot)
        return "\n".join(f"ds_read_b64_tr_b16 {vr(WF[i]+2*h2,2)}, v{WA[st][i]} offset:{off + (k2*32 + h2*4)*WROW}" for h2 in range(2))
    def mf(k2, i, h): return f"v_mfma_f32_16x16x32_bf16 {vr(16*i+4*h,4)}, {vr(WF[i],4)}, {vr(XF[k2][h],4)}, {vr(16*i+4*h,4)}"
    def step(k2, nslot, nk2, bar):
        if bar:
            e("s_waitcnt lgkmcnt(8)")
            for h in range(4): e(mf(k2, 0, h))
            e("s_waitcnt lgkmcnt(0)\ns_barrier")
            seq = [(1, 0), (1, 1), (1, 2), (1, 3), (2, 0), (2, 1), (2, 2), (2, 3), (3, 0), (3, 1), (3, 2), (3, 3), (4, 0), (4, 1)]
            post = {0: [ldx(nslot, nk2, 0), ldx(nslot, nk2, 1)], 1: [ldx(nslot, nk2, 2), ldx(nslot, nk2, 3)], 2: [ldw(nslot, nk2, 0)],
                    3: [ldw(nslot, nk2, 1)], 7: [ldw(nslot, nk2, 2)], 11: [ldw(nslot, nk2, 3)], 13: [ldw(nslot, nk2, 4)]}
            for k, (i, h) in enumerate(seq):
                e(mf(k2, i, h))
                for x in post.get(k, []): e(x)
        else:
            for i in range(5):
                w = (14 - 6 - 2*i) + (0 if i == 0 else 4 + 2*i)
                e(f"s_waitcnt lgkmcnt({w})")
                for h in range(4 if i < 4 else 2):
                    e(mf(k2, i, h))
                    if i == 0 and h < 2: e(ldx(nslot, nk2, 2*h)); e(ldx(nslot, nk2, 2*h+1))
                e(ldw(nslot, nk2, i))
    for h in range(4): e(ldx(0, 0, h))
    for i in range(5): e(ldw(0, 0, i))
    lg = len(e.lines)
    def pw(k):
        hd, i = k // 5, k % 5
        so = (54 + hd) if i < 4 else (56 + hd)
        return f"buffer_store_dwordx4 {vr(244,4)}, v{L16}, s[{SWS}:{SWS+3}], s{so} offen offset:{1024*(i%4)} sc1"
    PW = next((int(x[2:]) for x in X if x.startswith("pw")), -1)
    if PW == 9:
        for k in range(10): e(pw(k))
    e("L_gemm:")
    for sl in range(3):
        if PW in (0, 1):
            e(f"s_cmp_lg_u32 s{sST}, {PW}\ns_cbranch_scc1 L_pw{sl}")
            for k in ([0, 1, 2], [3, 4, 5, 6], [7, 8, 9])[sl]: e(pw(k))
            e(f"L_pw{sl}:")
        step(0, sl, 1, False)
        if sl == 2:
            e(f"s_add_u32 s{sST}, s{sST}, 1\ns_cmp_eq_u32 s{sST}, 3\ns_cbranch_scc1 L_gemm_last")
        step(1, (sl + 1) % 3, 0, True)
    e("s_branch L_gemm\nL_gemm_last:")
    for i in range(5):
        e(f"s_waitcnt lgkmcnt({8-2*i})")
        for h in range(4 if i < 4 else 2): e(mf(1, i, h))
    g.stamp(2)
    e(f"v_mov_b32 v{VN}, 0\ns_nop 0\nbuffer_load_dword v{VN}, v{VN}, s[{SRA}:{SRA+3}], 0 offen sc1")
    E0, E1, E2, E3 = 160, 161, 162, 163
    e(f"""
    v_and_b32 v{T3}, 15, v{LANE}
    v_lshrrev_b32 v{T2}, 4, v{LANE}
    v_bfe_u32 v164, v{LANE}, 4, 1
    v_lshrrev_b32 v165, 5, v{LANE}
    s_mov_b32 s46, {f2u(QSCALE):#x}
    s_mov_b32 s47, s46
    s_lshl_b32 s33, s33, 1
    s_add_u32 s33, s33, s34
    s_xor_b32 s49, s33, 1
    s_mul_i32 s34, s34, {4*5120}
    s_cmp_ge_u32 s{sCT}, 8
    s_cbranch_scc1 L_epv
    v_lshlrev_b32 v{T0}, 4, v{T3}
    v_lshl_add_u32 v{T0}, v164, 9, v{T0}
    s_lshl_b32 s{sT}, s33, 7
    s_add_u32 s{sT}, s{sT}, 4096
    v_lshl_add_u32 v{T1}, v{T3}, 2, s{sT}
    s_movk_i32 s48, 256
    s_lshl_b32 s33, s33, 10
    s_lshl_b32 s49, s49, 10
    s_branch L_epc
    L_epv:
    s_mul_i32 s33, s33, 1280
    s_mul_i32 s49, s49, 1280
    v_mul_u32_u24 v{T1}, 40, v{T3}
    v_lshl_add_u32 v{T0}, v164, 4, v{T1}
    v_add3_u32 v{T1}, v{T1}, 32, s33
    s_movk_i32 s48, 640
    L_epc:
    v_lshl_add_u32 v{T0}, v165, 3, v{T0}
    v_mul_u32_u24 v{T2}, {2*5120}, v{T2}
    v_add_u32 v{T1}, v{T1}, v{T2}
    s_add_u32 s33, s33, s34
    s_add_u32 s49, s49, s34
    v_add_u32 v{E0}, s33, v{T0}
    v_add_u32 v{E2}, s49, v{T0}
    v_add_u32 v{E1}, s48, v{E0}
    v_add_u32 v{E3}, s48, v{E2}
    s_cmp_ge_u32 s{sCT}, 4
    s_cbranch_scc1 L_nosc
    """)
    for i in range(0, 72, 2): e(f"v_pk_mul_f32 {vr(i,2)}, {vr(i,2)}, s[46:47]")
    e("L_nosc:")
    for t in range(4):
        for h in range(4):
            R = 72 + 8*t + 2*h; A = 16*t + 4*h
            e(f"v_cvt_pk_bf16_f32 v{R}, v{A}, v{A+1}\nv_cvt_pk_bf16_f32 v{R+1}, v{A+2}, v{A+3}")
            e(f"ds_write_b64 v{E0+h}, {vr(R,2)} offset:{t*5120}")
    DD = 104
    for k in range(4):
        e(f"v_cvt_pk_bf16_f32 v{DD+2*k}, v{64+2*k}, v{64+2*k+1}\nv_mov_b32 v{DD+2*k+1}, 0x3f80")
    e(f"s_cmp_ge_u32 s{sCT}, 8\ns_cbranch_scc1 L_xv")
    for k in range(4): e(f"ds_write_b32 v{T1}, v{DD+2*k} offset:{(k%2)*5120 + (k//2)*64}")
    e("s_branch L_epi1\nL_xv:")
    for k in range(4): e(f"ds_write_b64 v{T1}, {vr(DD+2*k,2)} offset:{(k%2)*5120 + (k//2)*640}")
    e(f"""
    L_epi1:
    s_waitcnt vmcnt(0)
    L_epi2:
    s_waitcnt lgkmcnt(0)
    s_barrier
    """)
    g.stamp(3)
    e(f"s_cmp_lt_u32 s{sW}, 4\ns_cbranch_scc1 L_gapO")
    e(f"""
    s_and_b32 s{sT3}, s{sW}, 3
    s_mul_i32 s{sT}, s{sT3}, 10240
    v_add_u32 v{T0}, s{sT}, v{L16}
    """)
    for i in range(10): e(f"ds_read_b128 {vr(EP+4*i,4)}, v{T0} offset:{1024*i}")
    e(f"""
    s_and_b32 s48, s{sCT}, 3
    s_lshl_b32 s48, s48, 2
    s_add_u32 s48, s48, s{sT3}
    s_lshl_b32 s48, s48, 5
    s_add_u32 s48, s48, s{sTT}
    s_mul_i32 s{sT}, s48, {QI_BLK}
    s_mul_i32 s{sT2}, s48, {KV_CHUNK}
    s_add_u32 s{sT2}, s{sT2}, {KV_OFF}
    s_mov_b32 s49, {KV_HEAD}
    s_cmp_lt_u32 s{sCT}, 4
    s_cselect_b32 s{sT}, s{sT}, s{sT2}
    s_cselect_b32 s49, {QI_HEAD}, s49
    s_cmp_ge_u32 s{sCT}, 8
    s_cselect_b32 s{sT2}, {V_IN}, 0
    s_cselect_b32 s{sT3}, -1, 0
    s_add_u32 s{sT}, s{sT}, s{sT2}
    """)
    for hd in range(2):
        e(f"s_add_u32 s{sT2}, s{sT}, 4096")
        for i in range(4):
            e(f"s_waitcnt lgkmcnt({9-5*hd-i})")
            e(f"buffer_store_dwordx4 {vr(EP+20*hd+4*i,4)}, v{L16}, s[{SWS}:{SWS+3}], s{sT} offen offset:{1024*i} sc1")
        e(f"""
        s_mov_b32 exec_hi, s{sT3}
        s_waitcnt lgkmcnt({5-5*hd})
        buffer_store_dwordx4 {vr(EP+20*hd+16,4)}, v{L16}, s[{SWS}:{SWS+3}], s{sT2} offen sc1
        s_mov_b32 exec_hi, -1
        s_add_u32 s{sT}, s{sT}, s49
        """)
    if HL: g.hdma(T0)
    e(f"""
    s_lshl_b32 s27, s{sCT}, 4
    s_add_u32 s27, s27, s{sTT}
    """)
    if not HL:
        e("s_waitcnt vmcnt(10)")
        g.hfix("a", T0)
    g.attn_setup()
    e("s_waitcnt vmcnt(0)")
    if HL: g.hfix("a", T0)
    g.nonce("L_n1")
    g.arrive(cS, T0, 30)
    e("s_cmp_lg_u32 s30, 3\ns_cbranch_scc1 L_gapY")
    g.signal(0, 27)
    e("s_branch L_gapY")

    KR, VRg, WR, KF, WFp, U, VT, OUT = 0, 11, 20, 32, 54, 62, 78, 84
    KB, VB = 0, 41216
    e(f"""
    L_ssmwg:
    s_lshl_b32 s{sTT}, s{sT}, 3
    s_add_u32 s{sTT}, s{sTT}, s{sT2}
    s_sub_u32 s{sTT}, s{sTT}, 24
    s_mul_i32 s{sT}, s{sTT}, 36864
    v_lshlrev_b32 v{T0}, 4, v{TID}
    v_add_u32 v{T1}, s{sT}, v{T0}
    v_subrev_u32 v{T0}, {3*1152}, v{T1}
    s_lshl_b32 s{sM0}, s{sW}, 10
    s_add_u32 s{SRB+2}, s{sT}, 36864
    s_mov_b32 s{SRB+3}, 0x20000
    s_add_u32 s{SRC+2}, s{sT}, 36864
    s_mov_b32 s{SRC+3}, 0x20000
    s_waitcnt lgkmcnt(0)
    s_mov_b64 s[{SRB}:{SRB+1}], s[{pK}:{pK+1}]
    s_mov_b64 s[{SRC}:{SRC+1}], s[{pV}:{pV+1}]
    """)
    g.stamp(0); g.rstamp(29)
    for i in range(5):
        e(f"""
        s_add_u32 s46, s{sW}, {8*i}
        s_mul_i32 s46, s46, 57
        s_lshr_b32 s46, s46, 9
        s_lshl_b32 s46, s46, 5
        s_add_u32 s46, s46, s{sM0}
        s_add_u32 m0, s46, {KB + 8192*i}
        s_nop 0
        buffer_load_dwordx4 v{T0}, s[{SRB}:{SRB+3}], 0 offen lds
        s_add_u32 m0, s46, {VB + 8192*i}
        v_add_u32 v{T0}, 8192, v{T0}
        buffer_load_dwordx4 v{T1}, s[{SRC}:{SRC+3}], 0 offen lds
        v_add_u32 v{T1}, 8192, v{T1}
        """)
    g.srd(SRD_, pSH, D*8)
    e(f"v_lshrrev_b32 v{T2}, 2, v{TID}\nv_lshlrev_b32 v{T3}, 4, v{T2}")
    for r in range(3):
        e(f"buffer_load_dwordx4 {vr(WR+4*r,4)}, v{T3}, s[{SRD_}:{SRD_+3}], 0 offen offset:{2048*r}" if r < 2 else
          f"v_add_u32 v{T3}, 4096, v{T3}\nbuffer_load_dwordx4 {vr(WR+4*r,4)}, v{T3}, s[{SRD_}:{SRD_+3}], 0 offen")
    g.ids()
    g.lds_init(T0)
    e(f"""
    v_and_b32 v{T1}, 3, v{TID}
    v_sub_u32 v{T0}, 3, v{T1}
    v_mul_u32_u24 v{T0}, {8*1152+32}, v{T0}
    v_lshl_add_u32 v{T0}, v{T2}, 2, v{T0}
    v_lshlrev_b32 v{T2}, 7, v{T2}
    v_lshl_add_u32 v{T1}, v{T1}, 4, v{T2}
    s_mul_i32 s48, s{sTT}, 36864
    s_add_u32 s48, s48, {UT_OFF}
    s_mov_b32 s{sST}, 0
    s_waitcnt vmcnt(0) lgkmcnt(0)
    s_barrier
    """)
    g.stamp(1)
    e(f"s_cmp_lt_u32 s{sW}, 4\ns_cbranch_scc1 L_sl0")
    g.hdma(92)
    e(f"L_sl0:\nL_ssml:")
    for j in range(11): e(f"ds_read_b32 v{KR+j}, v{T0} offset:{KB + j*1152 + (32 if j >= 8 else 0)}")
    for j in range(8): e(f"ds_read_b32 v{VRg+j}, v{T0} offset:{VB + j*1152}")
    for j in range(4):
        for ch in range(2):
            src = WR + 2*ch + j//2
            e(f"v_lshlrev_b32 v{WFp+2*j+ch}, 16, v{src}" if j % 2 == 0 else f"v_and_b32 v{WFp+2*j+ch}, 0xffff0000, v{src}")
    for i in range(0, 8, 2): e(f"v_mov_b64 {vr(WR+i,2)}, {vr(WR+4+i,2)}")
    e("s_waitcnt lgkmcnt(8)")
    for j in range(11): e(f"v_lshlrev_b32 v{KF+2*j}, 16, v{KR+j}\nv_and_b32 v{KF+2*j+1}, 0xffff0000, v{KR+j}")
    e("s_waitcnt lgkmcnt(0)")
    for t in range(8):
        u = vr(U+2*t, 2)
        e(f"""
        v_pk_mul_f32 {u}, {vr(KF+2*t,2)}, {vr(WFp+6,2)}
        v_lshlrev_b32 v{VT+2*(t%2)}, 16, v{VRg+t}
        v_pk_fma_f32 {u}, {vr(KF+2*(t+1),2)}, {vr(WFp+4,2)}, {u}
        v_and_b32 v{VT+2*(t%2)+1}, 0xffff0000, v{VRg+t}
        v_pk_fma_f32 {u}, {vr(KF+2*(t+2),2)}, {vr(WFp+2,2)}, {u}
        v_pk_fma_f32 {u}, {vr(KF+2*(t+3),2)}, {vr(WFp+0,2)}, {u}
        v_pk_mul_f32 {u}, {u}, {vr(VT+2*(t%2),2)}
        """)
    for ch in range(2):
        for j in range(4):
            e(f"v_cvt_pk_bf16_f32 v{OUT+4*ch+j}, v{U+2*(7-2*j)+ch}, v{U+2*(6-2*j)+ch}")
    e(f"""
    buffer_store_dwordx4 {vr(OUT,4)}, v{T1}, s[{SWS}:{SWS+3}], s48 offen sc1
    buffer_store_dwordx4 {vr(OUT+4,4)}, v{T1}, s[{SWS}:{SWS+3}], s48 offen offset:64 sc1
    v_add_u32 v{T0}, 512, v{T0}
    s_add_u32 s48, s48, 16384
    s_add_u32 s{sST}, s{sST}, 1
    s_cmp_lt_u32 s{sST}, 2
    s_cbranch_scc1 L_ssml
    s_cmp_eq_u32 s{sST}, 3
    s_cbranch_scc1 L_ssmd
    s_cmp_lt_u32 s{sW}, 2
    s_cbranch_scc1 L_ssml
    L_ssmd:
    s_cmp_ge_u32 s{sW}, 4
    s_cbranch_scc1 L_sd1
    v_mov_b32 v{VN}, 0
    s_nop 0
    buffer_load_dword v{VN}, v{VN}, s[{SRA}:{SRA+3}], 0 offen sc1
    L_sd1:
    s_waitcnt vmcnt(0)
    s_barrier
    """)
    g.stamp(3)
    e(f"s_cmp_lt_u32 s{sW}, 4\ns_cbranch_scc1 L_gapO")
    g.nonce("L_n2")
    e(f"s_cmp_lg_u32 s{sW}, 4\ns_cbranch_scc1 L_sd2")
    g.signal(1, sTT)
    e("L_sd2:")
    g.hfix("b", T0)
    g.attn_setup()
    g.arrive(cS, T0)

SA, SB, O, Q = 0, 32, 64, 80
K0, K1 = 84, 88
V = [92, 96, 100, 104]
QX, KX, IDX = 108, 110, 112
AK, AV, AKX = 113, 114, 115
aT0, aT1, aT2 = 117, 118, 119
sQM, sQXo = 54, 55
sKD, sKS = 56, 57
NK0 = 10

def attn_setup(g):
    e = g.e; T0, T1 = aT0, aT1
    e(f"""
    v_lshrrev_b32 v{T0}, 5, v{LANE}
    v_bfe_u32 v{T1}, v{LANE}, 2, 2
    v_lshl_add_u32 v{T0}, v{T0}, 3, v{T1}
    v_mul_u32_u24 v{AV}, 40, v{T0}
    v_and_b32 v{T0}, 1, v{LANE}
    v_lshlrev_b32 v{T0}, 4, v{T0}
    v_bfe_u32 v{T1}, v{LANE}, 1, 1
    v_lshl_add_u32 v{T0}, v{T1}, 3, v{T0}
    v_and_b32 v{T1}, 16, v{LANE}
    v_cmp_eq_u32 vcc, 0, v{T1}
    v_lshlrev_b32 v{AKX}, 2, v{LANE}
    v_mov_b32 v{AK}, v{L16}
    v_cndmask_b32 v{T0}, 32, v{T0}, vcc
    v_add_u32 v{AV}, v{AV}, v{T0}
    v_and_b32 v{T0}, 19, v{LANE}
    v_cmp_lt_u32 vcc, 16, v{T0}
    v_mov_b32 v{T1}, 0x100000
    v_mov_b32 v{KX+1}, 0x3f803f80
    v_cndmask_b32 v{AV}, v{AV}, v{T1}, vcc
    v_mov_b32 v{QX+1}, 0
    v_mov_b32 v{IDX}, 0xdddddddd
    v_and_b32 v{aT2}, 124, v{AKX}
    s_lshl_b32 s37, s{sHEAD}, 4
    s_lshr_b32 s38, s{sQT}, 2
    s_add_u32 s37, s37, s38
    s_mul_i32 s37, s37, {QI_BLK}
    s_and_b32 s38, s{sQT}, 3
    s_lshl_b32 s{sQM}, s38, 10
    s_add_u32 s{sQM}, s{sQM}, s37
    s_lshl_b32 s{sQXo}, s38, 7
    s_add_u32 s{sQXo}, s{sQXo}, s37
    s_add_u32 s{sQXo}, s{sQXo}, 4096
    s_and_b32 s{sKD}, s{sW}, 3
    s_lshl_b32 s{sKD}, s{sKD}, 10
    s_cmp_lt_u32 s{sW}, 4
    s_cselect_b32 s37, {NK0*4096}, 0
    s_add_u32 s{sKD}, s{sKD}, s37
    s_add_u32 s{sKS}, s{sKD}, s{sKVO}
    s_lshr_b32 s37, s2, 5
    s_mul_i32 s37, s37, {2*KV_CHUNK}
    s_add_u32 s{sKS}, s{sKS}, s37
    s_add_u32 s61, s{sKVO}, {KV_HEAD}
    s_cmp_ge_u32 s{sKS}, s61
    s_cselect_b32 s62, {KV_HEAD}, 0
    s_sub_u32 s{sKS}, s{sKS}, s62
    """)
    for i in range(0, 16, 2): e(f"v_mov_b64 {vr(O+i,2)}, 0")
    for i in range(0, 8, 2): e(f"v_mov_b64 {vr(SB+24+i,2)}, 0")
    e(f"v_mov_b64 {vr(V[3],2)}, 0\nv_mov_b64 {vr(V[3]+2,2)}, 0")


def kv1():
    return f"""s_mov_b32 m0, s{sKD}
    s_add_u32 s{sKD}, s{sKD}, 4096
    buffer_load_dwordx4 v{L16}, s[{SWS}:{SWS+3}], s{sKS} offen sc1 lds
    s_add_u32 s{sKS}, s{sKS}, 4096
    s_cmp_ge_u32 s{sKS}, s61
    s_cselect_b32 s62, {KV_HEAD}, 0
    s_sub_u32 s{sKS}, s{sKS}, s62"""

QS_BASE = 98304
def gap(g):
    e, X = g.e, g.X
    T0, T1, T2, T3 = 140, 141, 142, 143
    ACC = 120
    def Af(buf, m): return (136 if buf == 0 else 200) + 4*m
    def Bf(buf, ep): return (168 if buf == 0 else 0) + 4*ep
    AA, BA, cT0, cT1, cT2, LA, LB = 32, 33, 34, 35, 36, 37, 38
    AH = [39, 40, 41]; CT = 42
    def loads(buf, nf, top, roff):
        out = []
        for m in range(nf):
            base = AA if m < 2 else AH[m // 2 - 1]
            o = ((m % 2) * 512 + roff) // 4
            out.append(f"ds_read2_b32 {vr(Af(buf,m),2)}, v{base} offset0:{o} offset1:{o+1}")
            out.append(f"ds_read2_b32 {vr(Af(buf,m)+2,2)}, v{base} offset0:{o+2} offset1:{o+3}")
            ep = top - m
            out.append(f"ds_read_b128 {vr(Bf(buf,ep),4)}, v{BA} offset:{(7-ep)*512 + roff}")
        return out
    def epi_tile(acc, ur, sD, dst):
        e(f"""
        v_and_b32 v{dst+2}, 0xffff0000, v{ur+1}
        v_lshlrev_b32 v{dst+3}, 16, v{ur+1}
        v_fmac_f32 v{acc}, s{sD}, v{dst+2}
        v_fmac_f32 v{acc+1}, s{sD}, v{dst+3}
        v_and_b32 v{dst+2}, 0xffff0000, v{ur}
        v_lshlrev_b32 v{dst+3}, 16, v{ur}
        v_fmac_f32 v{acc+2}, s{sD}, v{dst+2}
        v_fmac_f32 v{acc+3}, s{sD}, v{dst+3}
        v_cvt_pk_bf16_f32 v{dst}, v{acc}, v{acc+1}
        v_cvt_pk_bf16_f32 v{dst+1}, v{acc+2}, v{acc+3}
        """)
    def rr(tiles):
        per = [[(ti, mm, n - mm) for mm in range(n + 1)] for ti, n in enumerate(tiles)]
        out = []
        while any(per):
            for p in per:
                if p: out.append(p.pop(0))
        return out
    sT, sT2, sL, sC = 37, 38, 39, 41
    def lanes():
        e(f"""
        v_and_b32 v{cT0}, 15, v{LANE}
        v_lshrrev_b32 v{cT1}, 4, v{LANE}
        v_lshlrev_b32 v{cT2}, 1, v{cT0}
        v_lshl_add_u32 v{LA}, v{cT1}, 4, v{cT2}
        v_and_b32 v{cT2}, 1, v{cT0}
        v_mul_u32_u24 v{cT2}, {HO_IN + 2}, v{cT2}
        v_add3_u32 v{AA}, v{LA}, v{cT2}, s40
        v_sub_u32 v{cT2}, 15, v{cT0}
        v_lshlrev_b32 v{cT2}, 5, v{cT2}
        v_lshl_add_u32 v{LB}, v{cT1}, 4, v{cT2}
        v_add_u32 v{BA}, s{sT2}, v{LB}
        v_lshlrev_b32 v{cT2}, 3, v{cT1}
        v_lshl_add_u32 v{cT2}, v{cT0}, 5, v{cT2}
        v_lshrrev_b32 v{cT0}, 1, v{cT0}
        v_mul_u32_u24 v{cT0}, 36864, v{cT0}
        v_and_or_b32 v{cT0}, v{cT2}, 63, v{cT0}
        """)
        for k in range(3): e(f"v_add_u32 v{AH[k]}, {1024*(k+1)}, v{AA}")
    e("L_gapY:")
    g.stamp(4)
    e(f"""
    s_lshr_b32 s26, s{sCC}, 1
    s_lshl_b32 s26, s26, 2
    s_load_dword s53, s[{pD}:{pD+1}], s26
    s_and_b32 s43, s{sW}, 3
    s_lshl_b32 s{sT2}, s43, 7
    s_add_u32 s40, s{sT2}, {H_BASE + 2*H_SZ}
    s_add_u32 s{sT2}, s{sT2}, {UR_BASE + 2*UR_SZ}
    """)
    lanes()
    for i in range(0, 8, 2): e(f"v_mov_b64 {vr(ACC+i,2)}, 0")
    g.spin("L_spU2", cU, 5, CT)
    e("s_setprio 2")
    e(f"""
    s_and_b32 s{sT}, s2, 3
    s_cmp_eq_u32 s{sT}, 1
    s_cbranch_scc1 L_cq1
    s_cmp_eq_u32 s{sT}, 2
    s_cbranch_scc1 L_cq2
    s_cmp_eq_u32 s{sT}, 3
    s_cbranch_scc1 L_cq3
    """)
    for qn in range(4):
        if qn: e(f"L_cq{qn}:")
        tiles = [7 - qn, qn]; nf = 8 - qn
        e(f"s_mov_b32 s42, 0\nL_cql{qn}:")
        for l in loads(0, nf, tiles[0], 0): e(l)
        e("s_waitcnt lgkmcnt(0)")
        for ti, mm, ep in rr(tiles):
            e(f"v_mfma_f32_16x16x32_bf16 {vr(ACC+4*ti,4)}, {vr(Af(0,mm),4)}, {vr(Bf(0,ep),4)}, {vr(ACC+4*ti,4)}")
        for r in (AA, BA, *AH): e(f"v_add_u32 v{r}, 64, v{r}")
        e(f"s_add_u32 s42, s42, 1\ns_cmp_lt_u32 s42, 2\ns_cbranch_scc1 L_cql{qn}")
        if qn < 3: e("s_branch L_cqd")
    e(f"""
    L_cqd:
    s_lshl_b32 s{sT2}, s43, 11
    s_add_u32 s{sT2}, s{sT2}, {CP_BASE}
    v_add_u32 v{cT1}, s{sT2}, v{L16}
    s_sub_u32 s{sT2}, 7, s{sT}
    s_bitcmp1_b32 s{sW}, 0
    s_cselect_b32 s58, s{sT}, s{sT2}
    s_nop 1
    ds_write_b128 v{cT1}, {vr(ACC,4)}
    ds_write_b128 v{cT1}, {vr(ACC+4,4)} offset:1024
    """)
    g.arrive(cP, CT)
    e(f"s_cmp_lt_u32 s{sW}, 6\ns_cbranch_scc1 L_cfin")
    g.spin("L_spP", cP, 4, CT)
    e(f"""
    s_and_b32 s37, s{sW}, 1
    s_lshl_b32 s37, s37, 10
    s_add_u32 s37, s37, {CP_BASE}
    v_add_u32 v{cT1}, s37, v{L16}
    s_lshl_b32 s37, s58, 9
    s_sub_u32 s37, {UR_BASE + 2*UR_SZ + 4088}, s37
    v_sub_u32 v{AA}, s37, v{cT2}
    ds_read_b128 {vr(136,4)}, v{cT1}
    ds_read_b128 {vr(140,4)}, v{cT1} offset:2048
    ds_read_b128 {vr(144,4)}, v{cT1} offset:4096
    ds_read_b128 {vr(148,4)}, v{cT1} offset:6144
    ds_read_b64 {vr(200,2)}, v{AA}
    s_lshl_b32 s37, s53, 16
    s_and_b32 s38, s53, 0xffff0000
    s_bitcmp1_b32 s{sCC}, 0
    s_cselect_b32 s37, s38, s37
    s_lshl_b32 s41, s{sCC}, 6
    s_mul_i32 s38, s58, {8*36864}
    s_add_u32 s41, s41, s38
    s_add_u32 s41, s41, {YT_OFF}
    s_waitcnt lgkmcnt(0)
    """)
    for i in range(4): e(f"v_add_f32 v{136+i}, v{136+i}, v{140+i}\nv_add_f32 v{144+i}, v{144+i}, v{148+i}")
    for i in range(4): e(f"v_add_f32 v{136+i}, v{136+i}, v{144+i}")
    epi_tile(136, 200, 37, 152)
    e(f"""
    buffer_store_dwordx2 {vr(152,2)}, v{cT0}, s[{SWS}:{SWS+3}], s41 offen sc1
    L_cfin:
    """)
    e("s_setprio 0")
    e(f"""
    s_cmp_lg_u32 s{sW}, 4
    s_cbranch_scc1 L_gy2
    s_lshr_b32 s37, s{sHEAD}, 3
    v_lshrrev_b32 v{T0}, 4, v{LANE}
    v_add_u32 v{T1}, 1, v{T0}
    v_cmp_gt_u32 vcc, 32, v{LANE}
    v_and_b32 v{T2}, 15, v{LANE}
    v_and_b32 v{T3}, 1, v{LANE}
    v_cndmask_b32 v{T1}, 0, v{T1}, vcc
    v_lshl_add_u32 v{T1}, v{T1}, 2, s37
    s_lshr_b32 s37, s2, 5
    s_lshl_b32 s37, s37, 1
    v_add_u32 v{T3}, s37, v{T3}
    v_cndmask_b32 v{T2}, v{T3}, v{T2}, vcc
    v_lshl_add_u32 v{T2}, v{T1}, 4, v{T2}
    v_lshlrev_b32 v{T2}, 7, v{T2}
    s_mov_b32 s28, {FL_OFF}
    """)
    g.poll("L_s1", T2, [28], T0)
    g.arrive(cF1, T0)
    e("L_gy2:")
    g.spin("L_spF1", cF1, 1, T0)
    g.spin("L_spS", cS, 4, T0)
    g.stamp(5)
    e(kv1()); e(kv1())
    e(f"""
    buffer_load_dwordx4 {vr(Q,4)}, v{L16}, s[{SWS}:{SWS+3}], s{sQM} offen sc1
    buffer_load_dword v{QX}, v{aT2}, s[{SWS}:{SWS+3}], s{sQXo} offen sc1
    s_mul_i32 s37, s43, 1280
    s_add_u32 m0, s37, {QS_BASE}
    s_sub_u32 s38, s{sQM}, {QI_BLK}
    buffer_load_dwordx4 v{L16}, s[{SWS}:{SWS+3}], s38 offen sc1 lds
    s_add_u32 m0, s37, {QS_BASE + 1024}
    s_sub_u32 s38, s{sQXo}, {QI_BLK}
    buffer_load_dword v{aT2}, s[{SWS}:{SWS+3}], s38 offen sc1 lds
    """)
    for n in range(2, NK0): e(kv1())
    e(f"s_waitcnt vmcnt({NK0-2})\ns_barrier\ns_branch L_e2")
    e("L_gapO:\ns_waitcnt vmcnt(0)")
    g.nonce("L_n3")
    e(f"""
    s_cmp_lg_u32 s{sW}, 0
    s_cbranch_scc1 L_go1
    s_mov_b32 s27, {FL_OFF + 32768}
    v_lshlrev_b32 v{cT0}, 7, v{LANE}
    """)
    g.poll("L_su", cT0, [27], cT1)
    e(f"""
    v_lshrrev_b32 v{cT0}, 2, v{LANE}
    v_sub_u32 v{cT0}, 15, v{cT0}
    v_mul_u32_u24 v{cT0}, 36864, v{cT0}
    v_and_b32 v{cT1}, 48, v{L16}
    v_add_u32 v{cT0}, v{cT0}, v{cT1}
    s_lshl_b32 s37, s{sCA}, 6
    s_lshl_b32 s38, s{sCC}, 6
    """)
    for n in (2, 0, 1):
        for p in range(4):
            base = UT_OFF + (48 - 16*p) * 36864 + (64 if n == 1 else 0)
            e(f"""
            s_mov_b32 m0, {UR_BASE + n*UR_SZ + p*1024}
            s_add_u32 s39, s{38 if n == 2 else 37}, {base}
            buffer_load_dwordx4 v{cT0}, s[{SWS}:{SWS+3}], s39 offen sc1 lds
            """)
    e("L_go1:")
    g.attn_setup()
    e(f"""
    s_lshr_b32 s{sT}, s{sW}, 1
    s_mul_i32 s40, s{sT}, {H_SZ}
    s_add_u32 s40, s40, {H_BASE}
    s_mul_i32 s{sL}, s{sT}, {UR_SZ}
    s_add_u32 s{sL}, s{sL}, {UR_BASE}
    s_mov_b32 s{sT2}, s{sL}
    """)
    lanes()
    e(f"s_cmp_lg_u32 s{sW}, 0\ns_cbranch_scc1 L_go2\ns_waitcnt vmcnt(0)")
    g.arrive(cU, CT)
    e("L_go2:")
    g.spin("L_spU", cU, 5, CT)
    g.stamp(4)
    e(f"s_bitcmp1_b32 s{sW}, 0\ns_cbranch_scc1 L_set1")
    for si, tiles in enumerate(([7, 6, 1, 0], [5, 4, 3, 2])):
        nf = max(tiles) + 1; top = tiles[0]
        if si: e("L_set1:")
        mfl = rr(tiles)
        for l in loads(0, nf, top, 0): e(l)
        for i in range(0, 16, 2): e(f"v_mov_b64 {vr(ACC+i,2)}, 0")
        e(f"s_mov_b32 s42, 0\nL_cl{si}:")
        for r in range(2):
            buf = r
            nxt = loads(buf ^ 1, nf, top, 64 * (r + 1))
            e("s_waitcnt lgkmcnt(0)")
            for k, (ti, mm, ep) in enumerate(mfl):
                e(f"v_mfma_f32_16x16x32_bf16 {vr(ACC+4*ti,4)}, {vr(Af(buf,mm),4)}, {vr(Bf(buf,ep),4)}, {vr(ACC+4*ti,4)}")
                for _ in range(2):
                    if nxt: e(nxt.pop(0))
            assert not nxt
        for r in (AA, BA, *AH): e(f"v_add_u32 v{r}, 128, v{r}")
        e(f"""
        s_add_u32 s42, s42, 1
        s_cmp_lt_u32 s42, 4
        s_cbranch_scc1 L_cl{si}
        v_sub_u32 v{AA}, 504, v{cT2}
        v_add_u32 v{AA}, s{sL}, v{AA}
        """)
        for ti, n in enumerate(tiles): e(f"ds_read_b64 {vr(200+2*ti,2)}, v{AA} offset:{3584-512*n}")
        e(f"""
        s_lshl_b32 s{sT}, s52, 16
        s_and_b32 s{sT2}, s52, 0xffff0000
        s_bitcmp1_b32 s{sW}, 1
        s_cselect_b32 s{sT}, s{sT2}, s{sT}
        s_cselect_b32 s{sT2}, 64, 0
        s_lshl_b32 s{sC}, s{sCA}, 6
        s_add_u32 s{sC}, s{sC}, s{sT2}
        s_waitcnt lgkmcnt(0)
        """)
        for ti, n in enumerate(tiles):
            epi_tile(ACC + 4*ti, 200 + 2*ti, sT, 208 + 4*ti)
            e(f"""
            s_add_u32 s{sT2}, s{sC}, {YT_OFF + n*8*36864}
            buffer_store_dwordx2 {vr(208+4*ti,2)}, v{cT0}, s[{SWS}:{SWS+3}], s{sT2} offen sc1
            """)
        if si == 0: e("s_branch L_cend")
    e("L_cend:")
    g.stamp(5)
    e(f"""
    s_mul_i32 s37, s{sW}, 1280
    s_add_u32 s37, s37, {QS_BASE}
    v_add_u32 v{cT1}, s37, v{L16}
    v_add_u32 v{cT2}, s37, v{AKX}
    s_barrier
    ds_read_b128 {vr(Q,4)}, v{cT1}
    ds_read_b32 v{QX}, v{cT2} offset:1024
    L_e2:
    """)

def phase2(g):
    e, X = g.e, g.X
    T0, T1, T2 = aT0, aT1, aT2
    def koff(b, t): return (b // 2) * KV_CHUNK + (b % 2) * 2048 + t * 1024
    def kxoff(b): return (b // 2) * KV_CHUNK + KX_IN + (b % 2) * 256
    def voff(b, gq, half): return (b // 2) * KV_CHUNK + V_IN + ((b % 2) * 64 + gq * 16 + half * 4) * 40
    def ldK(reg, b, t): e(f"ds_read_b128 {vr(reg,4)}, v{AK} offset:{koff(b,t)}")
    def ldKX(b): e(f"ds_read_b32 v{KX}, v{AKX} offset:{kxoff(b)}")
    def ldV(gq, b):
        e(f"ds_read_b64_tr_b16 {vr(V[gq],2)}, v{AV} offset:{voff(b,gq,0)}")
        e(f"ds_read_b64_tr_b16 {vr(V[gq]+2,2)}, v{AV} offset:{voff(b,gq,1)}")
    def m2b(T): e(f"v_mfma_f32_32x32x4_2b_bf16 {vr(T,32)}, {vr(KX,2)}, {vr(QX,2)}, 0")
    def mx16(T, Kr): e(f"v_mfma_f32_32x32x16_bf16 {vr(T,16)}, {vr(Kr,4)}, {vr(Q,4)}, {vr(T,16)}")
    def msm(gq, P): e(f"v_smfmac_f32_32x32x32_bf16 {vr(O,16)}, {vr(V[gq],4)}, {vr(P+8*gq,8)}, v{IDX}")
    def qk_simple(T):
        m2b(T)
        e("s_nop 15\ns_nop 1")
        mx16(T, K0); mx16(T + 16, K1)
        e("s_nop 11")
    g.stamp(6)
    ldKX(0); ldK(K0, 0, 0); ldK(K1, 0, 1)
    ldV(0, 0); ldV(1, 0); ldV(2, 0)
    e("s_waitcnt lgkmcnt(8)")
    m2b(SA)
    e("s_nop 15\ns_nop 0\ns_waitcnt lgkmcnt(6)")
    mx16(SA, K0); mx16(SA + 16, K1)
    e("s_nop 10")
    e(f"v_max3_f32 v{T0}, v{SA}, v{SA+1}, v{SA+2}")
    e(f"v_max3_f32 v{T1}, v{SA+3}, v{SA+4}, v{SA+5}")
    for i in range(6, 30, 4):
        e(f"v_max3_f32 v{T0}, v{T0}, v{SA+i}, v{SA+i+1}")
        e(f"v_max3_f32 v{T1}, v{T1}, v{SA+i+2}, v{SA+i+3}")
    e(f"v_max3_f32 v{T0}, v{T0}, v{SA+30}, v{SA+31}")
    e(f"""
    v_max_f32 v{T0}, v{T0}, v{T1}
    v_mov_b32 v{T1}, v{T0}
    s_nop 1
    v_permlane32_swap_b32 v{T0}, v{T1}
    v_max_f32 v{T0}, v{T0}, v{T1}
    v_cvt_pk_bf16_f32 v{T1}, -v{T0}, -v{T0}
    v_and_b32 v{T2}, 0xffff0000, v{T1}
    v_sub_f32 v{T2}, -v{T0}, v{T2}
    v_cvt_pk_bf16_f32 v{QX+1}, -v{T0}, v{T2}
    s_nop 1
    """)
    qk_simple(SA)
    ldKX(1); ldK(K0, 1, 0); ldK(K1, 1, 1)
    e(f"s_cmp_lt_u32 s{sW}, 4\ns_cbranch_scc1 L_e3\ns_waitcnt vmcnt(0)\nL_e3:\ns_waitcnt lgkmcnt(0)\ns_barrier")
    g.stamp(7)

    def iteration(b, Sx, Tx, extra):
        ev = {
            2: lambda: (e("s_waitcnt lgkmcnt(6)"), msm(3, Tx), ldV(3, b)),
            6: lambda: (m2b(Tx), ldKX(b + 2)),
            14: lambda: (msm(0, Sx), ldV(0, b + 1)),
            18: lambda: (e("s_waitcnt lgkmcnt(5)"), msm(1, Sx), ldV(1, b + 1)),
            22: lambda: (mx16(Tx, K0), ldK(K0, b + 2, 0)),
            26: lambda: (msm(2, Sx), ldV(2, b + 1)),
            30: lambda: (mx16(Tx + 16, K1), ldK(K1, b + 2, 1)),
        }
        for i in range(32):
            if i in ev:
                ev[i]()
                if extra:
                    x = extra.pop(0)
                    if x: e(x)
            e(f"v_exp_f32 v{Sx+i}, v{Sx+i}")


    YR, QR, PF = 200, 216, 232
    def hook_kv():
        e(f"""
        s_cmp_ge_u32 s{sW}, 4
        s_cbranch_scc1 L_hk1
        s_mov_b32 s37, 0
        L_kvl:
        """)
        e(kv1())
        e(f"""
        s_add_u32 s37, s37, 1
        s_cmp_lt_u32 s37, {38 - NK0}
        s_cbranch_scc1 L_kvl
        L_hk1:
        """)
    def hook_pf(k):
        e(f"s_cmp_ge_u32 s{sW}, 4\ns_cbranch_scc1 L_pf{k}")
        if k == 0:
            g.srd(SRB, pWO, D*D*2)
            e(f"""
            s_lshr_b32 s40, s2, 3
            s_mul_i32 s41, s40, 43
            s_lshr_b32 s41, s41, 8
            s_mul_i32 s41, s41, 6
            s_sub_u32 s41, s40, s41
            s_mul_i32 s41, s41, 192
            s_and_b32 s41, s41, 0xffffff80
            s_cmp_ge_u32 s40, 24
            s_cselect_b32 s41, 0x40000000, s41
            v_mul_u32_u24 v{PF+1}, 1152, v{TID}
            """)
        if k < 4:
            e(f"buffer_load_dword v{PF}, v{PF+1}, s[{SRB}:{SRB+3}], s41 offen offset:{128*(k%2)}")
            if k % 2: e(f"s_add_u32 s41, s41, {256*1152}")
        else:
            e(f"buffer_load_dword v{PF}, v{PF+1}, s[{SRB}:{SRB+3}], s41 offen\nbuffer_load_dword v{PF}, v{PF+1}, s[{SRB}:{SRB+3}], s41 offen offset:128")
        e(f"L_pf{k}:")
    def hook_p3ld():
        A = PF + 2
        e(f"""
        s_cmp_ge_u32 s{sW}, 3
        s_cbranch_scc1 L_p3l
        s_and_b32 s38, s2, 3
        s_lshl_b32 s46, s38, 13
        s_add_u32 s46, s46, {FL_OFF + 3*32768}
        v_lshlrev_b32 v{A}, 7, v{LANE}
        """)
        g.poll("L_s3", A, [46], A + 1)
        g.srd(SRD_, pQ, S*D*2)
        e(f"""
        s_lshr_b32 s37, s2, 2
        s_mul_i32 s37, s37, {32*1152}
        s_mul_i32 s38, s38, 288
        s_add_u32 s37, s37, s38
        s_add_u32 s38, s37, {4*1152}
        s_mul_i32 s44, s2, 9216
        s_add_u32 s44, s44, {YT_OFF}
        v_lshrrev_b32 v{A}, 2, v{TID}
        v_and_b32 v{A+1}, 3, v{TID}
        v_lshlrev_b32 v{A+2}, 8, v{A}
        v_lshl_add_u32 v{A+2}, v{A+1}, 4, v{A+2}
        v_mul_u32_u24 v{A+1}, {8*1152}, v{A+1}
        v_lshl_add_u32 v{A}, v{A}, 3, v{A+1}
        v_cmp_gt_u32 vcc, 144, v{TID}
        s_and_b64 exec, exec, vcc
        """)
        for c in range(4):
            e(f"buffer_load_dwordx4 {vr(YR+4*c,4)}, v{A+2}, s[{SWS}:{SWS+3}], s44 offen offset:{64*c} sc1")
        for t in range(8):
            e(f"buffer_load_dwordx2 {vr(QR+2*t,2)}, v{A}, s[{SRD_}:{SRD_+3}], s{37 if t < 4 else 38} offen offset:{(t%4)*1152}")
        e("s_mov_b64 exec, -1\nL_p3l:")
    DV = [240, 241, 242]
    sWD, sWSo = 48, 49
    def wo_setup():
        g.srd(SRB, pWO, D*D*2)
        for i in range(3):
            e(f"""
            v_add_u32 v{243}, {64*i}, v{LANE}
            v_mul_u32_u24 v{244}, 171, v{243}
            v_lshrrev_b32 v{244}, 11, v{244}
            v_mul_u32_u24 v{244}, {1152-192}, v{244}
            v_lshl_add_u32 v{DV[i]}, v{243}, 4, v{244}
            """)
        e(f"""
        s_lshr_b32 s40, s2, 3
        s_mul_i32 s41, s40, 43
        s_lshr_b32 s41, s41, 8
        s_mul_i32 s41, s41, 6
        s_sub_u32 s41, s40, s41
        s_mul_i32 s41, s41, 192
        s_cmp_ge_u32 s40, 24
        s_cselect_b32 s41, 0x40000000, s41
        s_mul_i32 s{sWD}, s{sW}, 3072
        s_mul_i32 s{sWSo}, s{sW}, {16*1152}
        s_add_u32 s{sWSo}, s{sWSo}, s41
        """)
    def wo_list():
        out = []
        for k in range(5):
            for i in range(3):
                t = f"s_add_u32 m0, s{sWD}, {k*8*3072 + i*1024}\n"
                t += (f"s_add_u32 s{sWSo}, s{sWSo}, {128*1152}\n" if (i == 0 and k) else "s_nop 0\n")
                t += f"buffer_load_dwordx4 v{DV[i]}, s[{SRB}:{SRB+3}], s{sWSo} offen lds"
                out.append(t)
        return out

    base = 0
    def sp(l, pat):
        out = [None] * 14
        for x, p in zip(l, pat): out[p] = x
        return out
    for c in range(16):
        extra = []
        if c == 0: hook_kv()
        if c == 3:
            e(f"s_waitcnt vmcnt(0)\ns_barrier\ns_cmp_lg_u32 s{sW}, 3\ns_cbranch_scc1 L_hk2")
            g.signal(3)
            e("L_hk2:"); g.stamp(8)
        if 4 <= c <= 8: hook_pf(c - 4)
        if c == 11: hook_p3ld()
        if c == 14:
            wo_setup(); e("s_barrier"); g.stamp(9)
            wl = wo_list(); extra = sp(wl[:10], [0, 1, 3, 4, 6, 7, 8, 10, 11, 13])
        if c == 15: extra = wl[10:]
        if c - base == 4:
            for r in (AK, AV, AKX): e(f"v_add_u32 v{r}, {4*KV_CHUNK}, v{r}")
            base = c
        iteration(2 * (c - base), SA, SB, extra)
        iteration(2 * (c - base) + 1, SB, SA, extra)
        assert not extra
    e("s_waitcnt lgkmcnt(0)")
    msm(3, SB)
    g.stamp(10)
    e("s_nop 3")
    e(f"""
    s_mul_i32 s39, s{sQT}, {36*1024}
    s_lshl_b32 s46, s{sHEAD}, 10
    s_add_u32 s39, s39, {O_OFF}
    s_add_u32 s46, s46, s39
    s_lshl_b32 s47, s{sHEAD}, 7
    s_add_u32 s47, s47, s39
    s_add_u32 s47, s47, {32*1024}
    v_mov_b32 v{SA+4}, 0x7f7fffff
    v_mov_b32 v{T0}, v{O+10}
    v_mov_b32 v{T1}, v{O+10}
    v_add_f32 v{T2}, |v{O}|, |v{O+1}|
    v_add_f32 v{SA}, |v{O+2}|, |v{O+3}|
    v_permlane32_swap_b32 v{T0}, v{T1}
    v_add_f32 v{SA+1}, |v{O+4}|, |v{O+5}|
    v_add_f32 v{SA+2}, |v{O+6}|, |v{O+7}|
    v_add_f32 v{SA+3}, |v{O+8}|, |v{O+9}|
    v_add_f32 v{T2}, v{T2}, v{SA}
    v_add_f32 v{SA+1}, v{SA+1}, v{SA+2}
    v_add_f32 v{T2}, v{T2}, v{SA+1}
    v_cmp_nge_f32 vcc, 0x4e800000, v{T0}
    v_cmp_nle_f32 s[40:41], v{T2}, v{SA+4}
    v_cmp_nle_f32 s[42:43], v{SA+3}, v{SA+4}
    s_or_b64 s[40:41], vcc, s[40:41]
    v_cmp_nle_f32 vcc, 0x30800000, v{T0}
    s_or_b32 s40, s40, s42
    s_or_b64 s[40:41], vcc, s[40:41]
    s_cbranch_scc1 L_slow
    L_afin:
    v_rcp_f32 v{T0}, v{T0}
    v_lshlrev_b32 v{T1}, 2, v{LANE}
    """)
    OS = 112
    for i in range(10): e(f"v_mul_f32 v{O+i}, v{O+i}, v{T0}")
    for i in range(5): e(f"v_cvt_pk_bf16_f32 v{OS+i}, v{O+2*i}, v{O+2*i+1}")
    e(f"""
    buffer_store_dwordx4 {vr(OS,4)}, v{L16}, s[{SWS}:{SWS+3}], s46 offen sc1
    s_mov_b32 exec_hi, 0
    buffer_store_dword v{OS+4}, v{T1}, s[{SWS}:{SWS+3}], s47 offen sc1
    s_mov_b32 exec_hi, -1
    """)

    def tail():
        M = T2; sIT = 37
        GV, GX = 120, 121
        e(f"""
        L_slow:
        v_mov_b32 v{QX+1}, 0
        v_mov_b32 v{M}, 0xff800000
        s_mov_b32 s44, 0
        v_and_b32 v{T0}, 31, v{LANE}
        v_lshrrev_b32 v{T1}, 5, v{LANE}
        v_mul_u32_u24 v{GV}, 320, v{T1}
        v_and_b32 v{T1}, 3, v{T0}
        v_lshl_add_u32 v{GV}, v{T1}, 1, v{GV}
        v_bfe_u32 v{T1}, v{T0}, 2, 1
        v_lshl_add_u32 v{GV}, v{T1}, 4, v{GV}
        v_bfe_u32 v{T1}, v{T0}, 3, 1
        v_lshl_add_u32 v{GV}, v{T1}, 3, v{GV}
        v_bfe_u32 v{T1}, v{T0}, 4, 1
        v_lshl_add_u32 v{GV}, v{T1}, 5, v{GV}
        v_cmp_gt_u32 vcc, 20, v{T0}
        v_mov_b32 v{T1}, 0x40000000
        v_lshlrev_b32 v{GX}, 2, v{LANE}
        v_cndmask_b32 v{GV}, v{T1}, v{GV}, vcc
        L_slow_pass:
        s_mov_b32 s{sIT}, 0
        L_slow_loop:
        s_lshr_b32 s40, s{sIT}, 1
        s_mul_i32 s40, s40, {KV_CHUNK}
        s_add_u32 s40, s40, s{sKVO}
        s_and_b32 s41, s{sIT}, 1
        s_lshl_b32 s42, s41, 11
        s_add_u32 s42, s42, s40
        s_lshl_b32 s43, s41, 8
        s_add_u32 s43, s43, s40
        s_add_u32 s43, s43, {KX_IN}
        s_mul_i32 s41, s41, 2560
        s_add_u32 s41, s41, s40
        s_add_u32 s41, s41, {V_IN}
        buffer_load_dword v{KX}, v{GX}, s[{SWS}:{SWS+3}], s43 offen sc1
        buffer_load_dwordx4 {vr(K0,4)}, v{L16}, s[{SWS}:{SWS+3}], s42 offen sc1
        buffer_load_dwordx4 {vr(K1,4)}, v{L16}, s[{SWS}:{SWS+3}], s42 offen offset:1024 sc1
        s_waitcnt vmcnt(0)
        """)
        qk_simple(SA)
        e("s_cmp_eq_u32 s44, 0\ns_cbranch_scc0 L_slow_pv")
        for i in range(0, 32, 2): e(f"v_max3_f32 v{M}, v{M}, v{SA+i}, v{SA+i+1}")
        e("s_branch L_slow_nx\nL_slow_pv:")
        for gq in range(4):
            for j in range(8):
                e(f"buffer_load_ushort v{SB+8*gq+j}, v{GV}, s[{SWS}:{SWS+3}], s41 offen offset:{(16*gq+j)*40} sc1")
        for i in range(32): e(f"v_sub_f32 v{SA+i}, v{SA+i}, v{M}")
        for i in range(32): e(f"v_exp_f32 v{SA+i}, v{SA+i}")
        e("s_waitcnt vmcnt(0)")
        for gq in range(4):
            for j in range(4):
                e(f"v_lshl_or_b32 v{V[gq]+j}, v{SB+8*gq+2*j+1}, 16, v{SB+8*gq+2*j}")
        e("s_nop 1")
        for gq in range(4): msm(gq, SA)
        e(f"""
        s_nop 7
        L_slow_nx:
        s_add_u32 s{sIT}, s{sIT}, 1
        s_cmp_lt_u32 s{sIT}, 32
        s_cbranch_scc1 L_slow_loop
        s_cmp_eq_u32 s44, 0
        s_cbranch_scc0 L_slow_done
        v_mov_b32 v{T1}, v{M}
        s_nop 1
        v_permlane32_swap_b32 v{M}, v{T1}
        v_max_f32 v{M}, v{M}, v{T1}
        """)
        for i in range(16): e(f"v_mov_b32 v{O+i}, 0")
        e(f"""
        s_mov_b32 s44, 1
        s_branch L_slow_pass
        L_slow_done:
        s_nop 11
        v_mov_b32 v{T0}, v{O+10}
        v_mov_b32 v{T1}, v{O+10}
        s_nop 1
        v_permlane32_swap_b32 v{T0}, v{T1}
        s_nop 0
        s_branch L_afin
        """)
    return tail

def sig_last(g, lbl, c, n, which, tmp):
    g.arrive(c, tmp, 30)
    g.e(f"s_cmp_lg_u32 s30, {n-1}\ns_cbranch_scc1 {lbl}")
    g.signal(which)
    g.e(f"{lbl}:")

def phase3(g):
    e, X = g.e, g.X
    sOUT = SRC
    g.srd(sOUT, pOUT, S*1152*2)
    e(f"s_cmp_ge_u32 s{sW}, 4\ns_cbranch_scc1 L_grpY")
    YR, QR = 200, 216
    OUTR, PO, QF = 16, 41, 48
    e(f"""
    v_lshrrev_b32 v0, 2, v{TID}
    v_and_b32 v1, 3, v{TID}
    v_mul_u32_u24 v{PO}, {8*2304}, v1
    v_lshl_add_u32 v{PO}, v0, 3, v{PO}
    s_lshr_b32 s45, s2, 2
    s_mul_i32 s45, s45, {32*2304}
    s_and_b32 s38, s2, 3
    s_mul_i32 s38, s38, 288
    s_add_u32 s45, s45, s38
    s_add_u32 s45, s45, 1152
    s_waitcnt vmcnt(0)
    """)
    sig_last(g, "L_sgA1", cA, 8, 2, 2)
    g.stamp(11)
    e(f"s_cmp_eq_u32 s{sW}, 3\ns_cbranch_scc1 L_endf")
    g.spin("L_spA1", cA, 8, 2)
    e(f"v_cmp_gt_u32 vcc, 144, v{TID}\ns_and_b64 exec, exec, vcc")
    for t in range(8):
        for cp in range(2):
            b = 4 + 2 * cp; a = 8 + 2 * cp
            e(f"v_lshlrev_b32 v{a}, 16, v{QR+2*t+cp}\nv_and_b32 v{a+1}, 0xffff0000, v{QR+2*t+cp}")
            for k in range(2):
                src = YR + 4*(2*cp+k) + t//2
                e(f"v_lshlrev_b32 v{b+k}, 16, v{src}" if t % 2 == 0 else f"v_and_b32 v{b+k}, 0xffff0000, v{src}")
            e(f"v_pk_mul_f32 {vr(a,2)}, {vr(a,2)}, {vr(b,2)}")
            e(f"v_cvt_pk_bf16_f32 v{OUTR+2*t+cp}, v{a}, v{a+1}")
        e(f"buffer_store_dwordx2 {vr(OUTR+2*t,2)}, v{PO}, s[{sOUT}:{sOUT+3}], s45 offen")
        e(f"s_add_u32 s45, s45, 2304")
    e("s_branch L_endf")

    OF, ACC, WF = 0, 72, 120
    WA, WX = 144, 145
    T0, T1, T2, T3 = 150, 151, 152, 153
    sTB, sFB, sT, sT2, sG, sTW, sKH, sIDX = 33, 34, 35, 36, 37, 38, 39, 40
    RB = 122880
    e(f"""
    L_grpY:
    s_lshr_b32 s{sIDX}, s2, 3
    s_and_b32 s{sT}, s2, 7
    s_mul_i32 s{sT2}, s{sIDX}, 43
    s_lshr_b32 s{sT2}, s{sT2}, 8
    s_mul_i32 s{sFB}, s{sT2}, 6
    s_sub_u32 s{sFB}, s{sIDX}, s{sFB}
    s_lshl_b32 s{sTB}, s{sT}, 2
    s_add_u32 s{sTB}, s{sTB}, s{sT2}
    s_mul_i32 s45, s{sFB}, 192
    s_lshl_b32 s46, s{sT}, 12
    s_add_u32 s46, s46, {FL_OFF + 2*32768}
    s_and_b32 s{sTW}, s{sW}, 1
    s_bfe_u32 s{sKH}, s{sW}, 0x10001
    s_lshl_b32 s{sT}, s{sTB}, 1
    s_add_u32 s{sT}, s{sT}, s{sTW}
    s_mul_i32 s{sT}, s{sT}, {36*1024}
    s_add_u32 s{sT}, s{sT}, {O_OFF}
    s_lshl_b32 s{sT2}, s{sKH}, 14
    s_add_u32 s43, s{sT}, s{sT2}
    s_lshl_b32 s{sT2}, s{sKH}, 11
    s_add_u32 s44, s{sT}, s{sT2}
    s_add_u32 s44, s44, 0x8000
    v_lshrrev_b32 v{T0}, 5, v{LANE}
    v_bfe_u32 v{T1}, v{LANE}, 2, 2
    v_and_b32 v{T2}, 3, v{LANE}
    v_lshlrev_b32 v{T2}, 3, v{T2}
    v_and_b32 v{T3}, 16, v{LANE}
    v_lshl_add_u32 v{T2}, v{T3}, 1, v{T2}
    v_mul_u32_u24 v{T1}, 192, v{T1}
    s_mul_i32 s{sT}, s{sKH}, {288*192}
    v_add3_u32 v{T2}, v{T2}, v{T1}, s{sT}
    v_mul_u32_u24 v{T1}, {4*192}, v{T0}
    v_add_u32 v{WA}, v{T2}, v{T1}
    v_mul_u32_u24 v{T1}, {72*192}, v{T0}
    v_add_u32 v{WX}, v{T2}, v{T1}
    v_and_b32 v{T3}, 31, v{LANE}
    v_lshlrev_b32 v4, 7, v{T3}
    v_lshlrev_b32 v{T3}, 2, v{T3}
    v_lshl_add_u32 v{T3}, v{T0}, 9, v{T3}
    s_waitcnt vmcnt(0)
    """)
    sig_last(g, "L_sgA3", cA, 8, 2, T0)
    g.stamp(11)
    e(f"""
    s_cmp_ge_u32 s{sIDX}, 24
    s_cbranch_scc1 L_endf
    s_cmp_lg_u32 s{sW}, 4
    s_cbranch_scc1 L_p2w
    """)
    g.poll("L_s2", 4, [46], 0)
    g.arrive(cF2, T0)
    e("L_p2w:")
    g.spin("L_spF2", cF2, 1, T0)
    g.stamp(12)
    for i in range(16):
        if i % 4 == 0 and i: e(f"s_add_u32 s43, s43, 4096")
        e(f"buffer_load_dwordx4 {vr(OF+4*i,4)}, v{L16}, s[{SWS}:{SWS+3}], s43 offen offset:{(i%4)*1024} sc1")
    for i in range(8):
        e(f"buffer_load_dword v{OF+64+i}, v{T3}, s[{SWS}:{SWS+3}], s44 offen offset:{(i//4)*1024 + (i%4)*128} sc1")
    g.spin("L_spA2", cA, 8, T0)
    def ldw(ks, buf):
        for ft in range(3):
            for rd in range(2):
                if ks < 16: off = (18*ks + 2*(ks % 2) + 8*rd) * 192 + ft*64; a = WA
                else: off = (144*(ks-16) + 36*rd + 16) * 192 + ft*64; a = WX
                e(f"ds_read_b64_tr_b16 {vr(WF+12*buf+4*ft+2*rd,2)}, v{a} offset:{off}")
    ldw(0, 0)
    for ks in range(18):
        buf = ks % 2
        n = 23 - ks if ks < 16 else (4 if ks == 16 else 0)
        if ks < 17:
            ldw(ks+1, buf ^ 1)
            e(f"s_waitcnt vmcnt({n}) lgkmcnt(6)")
        else:
            e("s_waitcnt vmcnt(0) lgkmcnt(0)")
        for ft in range(3):
            c = "0" if ks == 0 else vr(ACC+16*ft,16)
            e(f"v_mfma_f32_32x32x16_bf16 {vr(ACC+16*ft,16)}, {vr(WF+12*buf+4*ft,4)}, {vr(OF+4*ks,4)}, {c}")
    g.stamp(13)
    e(f"""
    s_and_b32 s{sT}, s{sW}, 3
    s_xor_b32 s{sT2}, s{sT}, 2
    s_mul_i32 s{sT}, s{sT}, 6144
    s_mul_i32 s{sT2}, s{sT2}, 6144
    s_add_u32 s{sT}, s{sT}, {RB}
    s_add_u32 s{sT2}, s{sT2}, {RB}
    v_add_u32 v{T0}, s{sT}, v{L16}
    v_add_u32 v{T1}, s{sT2}, v{L16}
    s_lshl_b32 s{sT}, s{sTW}, 2
    s_add_u32 s{sT}, s{sT}, {CNT + cR}
    v_mov_b32 v{T2}, s{sT}
    v_mov_b32 v{T3}, 1
    s_cmp_eq_u32 s{sKH}, 0
    s_cbranch_scc0 L_kh1
    """)
    def red(kh):
        own, oth = 8*kh, 8*(1-kh)
        for ft in range(3):
            for gq in range(2):
                e(f"ds_write_b128 v{T0}, {vr(ACC+16*ft+oth+4*gq,4)} offset:{(2*ft+gq)*1024}")
        e(f"s_mov_b64 exec, 1\nds_add_u32 v{T2}, v{T3}\ns_mov_b64 exec, -1")
        g.spin(f"L_spR{kh}", None, 2, T2, vaddr=T2)
        for ft in range(3):
            for gq in range(2):
                e(f"ds_read_b128 {vr(OF+8*ft+4*gq,4)}, v{T1} offset:{(2*ft+gq)*1024}")
        for ft in range(3):
            e(f"s_waitcnt lgkmcnt({4-2*ft})")
            for i in range(8): e(f"v_add_f32 v{OF+8*ft+i}, v{OF+8*ft+i}, v{ACC+16*ft+own+i}")
    red(0)
    e("s_branch L_ost\nL_kh1:")
    red(1)
    e("L_ost:")
    for ft in range(3):
        for i in range(4): e(f"v_cvt_pk_bf16_f32 v{OF+24+4*ft+i}, v{OF+8*ft+2*i}, v{OF+8*ft+2*i+1}")
    e(f"""
    v_and_b32 v{T0}, 31, v{LANE}
    v_mul_u32_u24 v{T0}, 2304, v{T0}
    v_lshrrev_b32 v{T1}, 5, v{LANE}
    v_lshl_add_u32 v{T0}, v{T1}, 4, v{T0}
    s_lshl_b32 s{sT}, s{sTB}, 1
    s_add_u32 s{sT}, s{sT}, s{sTW}
    s_mul_i32 s{sT}, s{sT}, {32*2304}
    s_lshl_b32 s{sT2}, s{sKH}, 5
    s_add_u32 s{sT}, s{sT}, s{sT2}
    s_add_u32 s{sT}, s{sT}, s45
    """)
    for ft in range(3):
        b = OF + 24 + 4*ft
        e(f"v_permlane32_swap_b32 v{b}, v{b+2}\nv_permlane32_swap_b32 v{b+1}, v{b+3}")
    for ft in range(3):
        b = OF + 24 + 4*ft
        e(f"buffer_store_dwordx4 {vr(b,4)}, v{T0}, s[{sOUT}:{sOUT+3}], s{sT} offen offset:{ft*64}")
    e("L_endf:")
    g.flush()
    e("L_end:\ns_endpgm")

def build(X=()):
    g = G(X)
    g.e(f".globl {NAME}\n.p2align 8\n.type {NAME},@function\n{NAME}:")
    g.attn_setup = lambda: attn_setup(g)
    phase1(g)
    gap(g)
    tail = phase2(g)
    phase3(g)
    tail()
    hdr = open("concat_heads__softmax_full_mha__ssm_conv_h3__prompt.s.ref").read().split("; Override")[0]
    s = hdr + "; @launch grid=(256,1,1) block=(512,1,1) lds=163840\n"
    s += '.amdgcn_target "amdgcn-amd-amdhsa--gfx950"\n.text\n' + g.e.text()
    s += '.section .rodata,"a"\n.p2align 6\n' + kernel_desc(NAME, 256)
    return s

if __name__ == "__main__":
    open(sys.argv[1], "w").write(build(tuple(sys.argv[2:])))
```
